```python
import torch

def _softmax(x, axis=-1):
    return torch.softmax(x, dim=axis)
def _gelu(x):
    return torch.nn.functional.gelu(x, approximate="tanh")
def _silu(x):
    return torch.nn.functional.silu(x)
def _sigmoid(x):
    return torch.sigmoid(x)
def _layernorm(x, axis=-1, eps=1e-5):
    m = x.mean(dim=axis, keepdim=True)
    v = x.var(dim=axis, keepdim=True, unbiased=False)
    return (x - m) / torch.sqrt(v + eps)
def _scatter_add(tgt, idx, src, axis=0):
    return tgt.clone().index_add_(axis, idx, src)
def _segment_sum(src, seg, n):
    out = torch.zeros((n,) + src.shape[1:], dtype=src.dtype)
    return out.index_add_(0, seg, src)
def _pad(x, pw):
    flat = tuple(v for pair in reversed(pw) for v in pair)
    return torch.nn.functional.pad(x, flat)

kernel_name = 'concat_heads__gqa_block_cached__gqa_block_cached__near_ridge'

def setup_inputs():

    _w = (lambda a: (lambda t: t.to(torch.bfloat16) if t.is_floating_point() else t)(torch.as_tensor(a)))
    def _A_setup():
        B, Sq, D = 16, 96, 640
        Hq, Hkv, Sk, Dh = 32, 32, 512, 128
        assert Hq % Hkv == 0, (Hq, Hkv)
        return {
            "x": _w((lambda *s: torch.randn(*s, dtype=torch.bfloat16) * 0.8)(B, Sq, D)),
            "k_cache": _w((lambda *s: torch.randn(*s, dtype=torch.bfloat16) * 0.8)(B, Hkv, Sk, Dh)),
            "v_cache": _w((lambda *s: torch.randn(*s, dtype=torch.bfloat16) * 0.05)(B, Hkv, Sk, Dh)),
            "wq": _w((lambda *s: torch.randn(*s, dtype=torch.bfloat16) * 0.8)(D, Hq * Dh) * (D ** -0.5)),
            "wo": _w((lambda *s: torch.randn(*s, dtype=torch.bfloat16) * 0.05)(Hq * Dh, D) * ((Hq * Dh) ** -0.5)),
        }
    _A_in = _A_setup()

    def _B_setup():
        B, Sq, D = 16, 96, 640
        Hq, Hkv, Sk, Dh = 32, 32, 512, 128
        assert Hq % Hkv == 0, (Hq, Hkv)
        return {
            "x": _w((lambda *s: torch.randn(*s, dtype=torch.bfloat16) * 0.8)(B, Sq, D)),
            "k_cache": _w((lambda *s: torch.randn(*s, dtype=torch.bfloat16) * 0.8)(B, Hkv, Sk, Dh)),
            "v_cache": _w((lambda *s: torch.randn(*s, dtype=torch.bfloat16) * 0.05)(B, Hkv, Sk, Dh)),
            "wq": _w((lambda *s: torch.randn(*s, dtype=torch.bfloat16) * 0.8)(D, Hq * Dh) * (D ** -0.5)),
            "wo": _w((lambda *s: torch.randn(*s, dtype=torch.bfloat16) * 0.05)(Hq * Dh, D) * ((Hq * Dh) ** -0.5)),
        }
    _B_in = _B_setup()

    return {
        "A_x": _A_in["x"],
        "A_k_cache": _A_in["k_cache"],
        "A_v_cache": _A_in["v_cache"],
        "A_wq": _A_in["wq"],
        "A_wo": _A_in["wo"],
        "B_x": _B_in["x"],
        "B_k_cache": _B_in["k_cache"],
        "B_v_cache": _B_in["v_cache"],
        "B_wq": _B_in["wq"],
        "B_wo": _B_in["wo"],
    }

def reference(A_x, A_k_cache, A_v_cache, A_wq, A_wo, B_x, B_k_cache, B_v_cache, B_wq, B_wo):
    def _A_ref(x, k_cache, v_cache, wq, wo):
        B, Sq, D = x.shape
        Hq, Dh = 32, 128
        Hkv = k_cache.shape[1]
        rep = Hq // Hkv
        q = (lambda x, *d: x.permute(*d))((x @ wq).reshape(B, Sq, Hq, Dh), 0, 2, 1, 3)
        k = (lambda x, n, axis: torch.repeat_interleave(x, n, dim=axis))(k_cache, rep, axis=1)
        v = (lambda x, n, axis: torch.repeat_interleave(x, n, dim=axis))(v_cache, rep, axis=1)
        scores = torch.einsum("bhqd,bhkd->bhqk", q, k) * (Dh ** -0.5)
        p = _softmax(scores, axis=-1)
        o = torch.einsum("bhqk,bhkd->bhqd", p, v)
        return (lambda x, *d: x.permute(*d))(o, 0, 2, 1, 3).reshape(B, Sq, Hq * Dh) @ wo

    def _B_ref(x, k_cache, v_cache, wq, wo):
        B, Sq, D = x.shape
        Hq, Dh = 32, 128
        Hkv = k_cache.shape[1]
        rep = Hq // Hkv
        q = (lambda x, *d: x.permute(*d))((x @ wq).reshape(B, Sq, Hq, Dh), 0, 2, 1, 3)
        k = (lambda x, n, axis: torch.repeat_interleave(x, n, dim=axis))(k_cache, rep, axis=1)
        v = (lambda x, n, axis: torch.repeat_interleave(x, n, dim=axis))(v_cache, rep, axis=1)
        scores = torch.einsum("bhqd,bhkd->bhqk", q, k) * (Dh ** -0.5)
        p = _softmax(scores, axis=-1)
        o = torch.einsum("bhqk,bhkd->bhqd", p, v)
        return (lambda x, *d: x.permute(*d))(o, 0, 2, 1, 3).reshape(B, Sq, Hq * Dh) @ wo

    a = _A_ref(A_x, A_k_cache, A_v_cache, A_wq, A_wo)
    b = _B_ref(B_x, B_k_cache, B_v_cache, B_wq, B_wo)
    return torch.concatenate([a, b], axis=-1)
```

```python
import re

def regs_of(tok):
    tok = tok.strip()
    tok = tok.lstrip('-').strip('|')
    m = re.fullmatch(r'([vsa])\[(\d+):(\d+)\]', tok)
    if m:
        return m.group(1), set(range(int(m.group(2)), int(m.group(3)) + 1))
    m = re.fullmatch(r'([vsa])(\d+)', tok)
    if m:
        return m.group(1), {int(m.group(2))}
    if tok == 'vcc':
        return 's', {106, 107}
    if tok == 'vcc_lo':
        return 's', {106}
    if tok == 'm0':
        return 's', {124}
    if tok == 'exec':
        return 's', {126, 127}
    return None, set()

TRANS = ('v_exp_f32', 'v_rcp_f32', 'v_log_f32', 'v_rsq_f32', 'v_sqrt_f32')

class I:
    def __init__(self, text):
        self.text = text
        t = text.split(';')[0].strip()
        self.op = t.split()[0] if t else ''
        rest = t[len(self.op):].strip()
        ops = [o.strip() for o in rest.split(',')] if rest else []
        toks = []
        for o in ops:
            toks.append(o.split()[0] if o else o)
        self.mods = rest
        self.vr = set(); self.vw = set(); self.sr = set(); self.sw = set()
        self.kind = 'other'
        self.mfA = set(); self.mfB = set(); self.mfC = set(); self.mfD = set()
        op = self.op
        def rd(tok):
            k, r = regs_of(tok)
            if k == 'v': self.vr |= r
            elif k == 's': self.sr |= r
        def wr(tok):
            k, r = regs_of(tok)
            if k == 'v': self.vw |= r
            elif k == 's': self.sw |= r
        if op.endswith(':') or op == '' or op.startswith('.'):
            self.kind = 'label'
        elif op.startswith('v_mfma'):
            self.kind = 'mfma'
            self.mfD = regs_of(toks[0])[1]
            self.mfA = regs_of(toks[1])[1]
            self.mfB = regs_of(toks[2])[1]
            k, r = regs_of(toks[3])
            self.mfC = r if k == 'v' else set()
            self.vw = set(self.mfD); self.vr = self.mfA | self.mfB | self.mfC
        elif op.startswith('ds_read'):
            self.kind = 'dsr'; wr(toks[0]); rd(toks[1])
        elif op.startswith('ds_write'):
            self.kind = 'dsw'
            for t_ in toks: rd(t_)
        elif op.startswith('buffer_load'):
            if re.search(r'\blds\b', rest):
                self.kind = 'dma'
                for t_ in toks: rd(t_)
                self.sr |= {124}
            else:
                self.kind = 'vld'; wr(toks[0])
                for t_ in toks[1:]: rd(t_)
        elif op.startswith('global_load'):
            self.kind = 'vld'; wr(toks[0])
            for t_ in toks[1:]: rd(t_)
        elif op.startswith('buffer_store') or op.startswith('global_store') or 'atomic' in op:
            self.kind = 'vst'
            for t_ in toks: rd(t_)
            if op.startswith('buffer_store'):
                self.data = regs_of(toks[0])[1]
            else:
                self.data = regs_of(toks[1])[1]
            self.wide = op.endswith('x4') or op.endswith('x3')
        elif op.startswith('v_'):
            self.kind = 'valu'
            if op.startswith('v_cmp'):
                wr(toks[0])
                for t_ in toks[1:]: rd(t_)
            elif op.startswith('v_permlane32_swap') or op.startswith('v_permlane16_swap'):
                wr(toks[0]); wr(toks[1]); rd(toks[0]); rd(toks[1])
            elif op.startswith('v_readfirstlane') or op.startswith('v_readlane'):
                wr(toks[0])
                for t_ in toks[1:]: rd(t_)
            else:
                wr(toks[0])
                for t_ in toks[1:]: rd(t_)
                if op.startswith('v_fmac') or op.startswith('v_dot2c') or op.startswith('v_mac'):
                    rd(toks[0])
                if op.startswith('v_cndmask') and len(toks) == 3:
                    self.sr |= {106, 107}
        elif op.startswith('s_'):
            self.kind = 'salu'
            if op in ('s_waitcnt', 's_barrier', 's_nop', 's_endpgm', 's_sleep', 's_setprio') or op.startswith('s_cbranch') or op == 's_branch':
                self.kind = op if not op.startswith('s_cbranch') else 's_cbranch'
            elif op.startswith('s_cmp') or op.startswith('s_bitcmp'):
                for t_ in toks: rd(t_)
            else:
                wr(toks[0])
                for t_ in toks[1:]: rd(t_)
        self.trans = op.replace('_e32', '').replace('_e64', '') in TRANS
    def states(self):
        if self.kind == 'label': return 0
        if self.kind == 's_nop':
            return int(self.text.split()[1], 0) + 1
        return 1

def need_states(p, c):
    n = 0
    if p.kind == 'valu':
        if c.kind == 'mfma' and (p.vw & c.vr): n = max(n, 2)
        if c.kind == 'valu':
            if p.trans and not c.trans and (p.vw & c.vr): n = max(n, 1)
            if c.op.startswith('v_permlane') and (p.vw & c.vr): n = max(n, 2)
            if (c.op.startswith('v_readfirstlane') or c.op.startswith('v_readlane')) and (p.vw & c.vr): n = max(n, 1)
            if p.sw & c.sr: n = max(n, 2)
            if 'dpp' in c.mods and (p.vw & c.vr): n = max(n, 2)
        if c.kind in ('dma', 'vld', 'vst') and (p.sw & c.sr): n = max(n, 5)
        if c.kind == 'mfma' and (p.sw & {126, 127}): n = max(n, 4)
    if p.kind == 'mfma':
        if c.kind == 'mfma':
            if p.mfD & (c.mfA | c.mfB): n = max(n, 12)
            if (p.mfD & c.mfC) and p.mfD != c.mfC: n = max(n, 10)
        elif c.kind in ('valu', 'dsr', 'dsw', 'dma', 'vld', 'vst'):
            if p.mfD & (c.vr | c.vw): n = max(n, 12)
            if c.kind == 'valu' and (p.mfC & c.vw): n = max(n, 7)
    if p.kind == 'salu' and 124 in p.sw and c.kind == 'dma': n = max(n, 1)
    if p.kind == 'vst' and getattr(p, 'wide', False):
        if c.kind == 'valu' and (p.data & c.vw): n = max(n, 2)
        elif (p.data & c.vw): n = max(n, 1)
    return n

class Block:
    def __init__(self, name=None):
        self.ins = []
        self.name = name
        self.pend = []
    def raw(self, text):
        self.ins.append(I(text))
    def __call__(self, text):
        for line in text.split('\n'):
            line = line.strip()
            if line: self.emit(line)
    def emit(self, text):
        ins = I(text)
        touched = ins.vr | ins.vw
        if touched and self.pend:
            last = -1
            for k, d in enumerate(self.pend):
                if d & touched: last = k
            if last >= 0:
                n = len(self.pend) - 1 - last
                n = min(n, 14)
                self.ins.append(I('s_waitcnt lgkmcnt(%d)' % n))
                self.pend = self.pend[len(self.pend) - n:] if n else []
        if ins.kind == 'dsr':
            self.pend.append(set(ins.vw))
        elif ins.kind == 'dsw':
            self.pend.append(set())
        if ins.op == 's_waitcnt':
            m = re.search(r'lgkmcnt\((\d+)\)', text)
            if m:
                n = int(m.group(1))
                self.pend = self.pend[len(self.pend) - n:] if n and n < len(self.pend) else ([] if n == 0 else self.pend)
        self.ins.append(ins)

def fix_hazards(ins, pred_tails):
    out = []
    for c in ins:
        if c.kind in ('label', 's_nop', 's_waitcnt', 's_barrier', 's_cbranch', 's_branch', 'salu', 's_sleep', 's_setprio', 's_endpgm'):
            out.append(c); continue
        add = 0
        for tail in (pred_tails or [[]]):
            seq = tail + out
            dist = 0
            for p in reversed(seq):
                if dist >= 20: break
                n = need_states(p, c)
                if n > dist: add = max(add, n - dist)
                dist += p.states()
        if add:
            out.append(I('s_nop %d' % (add - 1)))
        out.append(c)
    return out

def text_of(ins):
    s = []
    for i in ins:
        if i.kind == 'label': s.append(i.text)
        else: s.append('    ' + i.text)
    return '\n'.join(s)
```

```python
import sys, math
sys.path.insert(0, 'gen')
from asmlib import *

KN = "concat_heads__gqa_block_cached__gqa_block_cached__near_ridge_kernel"
OPT = dict(stamps=0, nt=1, rot=1)
for a in sys.argv[2:]:
    k, v = a.split('='); OPT[k] = int(v)

SLOT = 32768
WBASE = 98304
OBUF = 139264
LDS_BYTES = 163840
MF = 'v_mfma_f32_32x32x16_bf16'
NT = ' nt' if OPT['nt'] else ''

sWAVE = 3
sK, sV, sX, sWQ, sWO, sWS, sOUT = 4, 8, 12, 16, 20, 24, 28
sDBG = 32
sU, sCNT = 34, 35
sB, sBR, sH0, sME, sGRP = 62, 63, 64, 65, 66
sKVO, sWQO, sXO, sKC, sMS, sT, sWOB, sWS_, sJ = 67, 68, 69, 70, 71, 72, 73, 74, 75
sKSI, sKSC, sT2, sT3, sDELTA, sSLOT, sROT, sISLD, sWL = 76, 77, 78, 79, 80, 81, 82, 83, 84
sSC = 86
sTHR = 88
sST0 = 90
sROT8 = 92
def srd(n): return 's[%d:%d]' % (n, n + 3)
def vr(a, n): return 'v[%d:%d]' % (a, a + n - 1)

class Prog:
    def __init__(self):
        self.blocks = []; self.preds = {}
    def block(self, name, preds, pend=None, label=True):
        b = Block(name)
        if pend is not None: b.pend = list(pend)
        if label: b.raw(name + ':')
        self.blocks.append(b); self.preds[name] = preds
        return b
    def tails(self, name, need=20, depth=0):
        res = []
        for p in self.preds[name]:
            pb = [b for b in self.blocks if b.name == p][0]
            ins = pb.ins
            st = sum(i.states() for i in ins)
            if st >= need or depth > 3 or not self.preds[p]:
                res.append(list(ins[-40:]))
            else:
                for t in self.tails(p, need - st, depth + 1):
                    res.append(t + list(ins))
        return res
    def finish(self):
        for b in self.blocks:
            b.ins = fix_hazards(b.ins, self.tails(b.name))
        return '\n'.join(text_of(b.ins) for b in self.blocks)

P = Prog()

e = P.block('L_entry', [], label=False)
e('s_cmp_ge_u32 s2, 256')
e('s_cbranch_scc1 L_end')
if OPT['stamps']:
    e('s_memrealtime s[%d:%d]' % (sST0, sST0 + 1))
e('s_load_dwordx16 s[36:51], s[0:1], 0')
e('s_load_dwordx8 s[52:59], s[0:1], 64')
e('s_load_dwordx2 s[60:61], s[0:1], 96')
e('v_lshrrev_b32 v1, 6, v0')
e('v_and_b32 v0, 63, v0')
e('v_readfirstlane_b32 s%d, v1' % sWAVE)
e('s_and_b32 s%d, s2, 7' % sT)
e('s_lshr_b32 s%d, s2, 3' % sT2)
e('s_lshr_b32 s%d, s%d, 2' % (sBR, sT))
e('s_and_b32 s%d, s%d, 3' % (sT, sT))
e('s_lshr_b32 s%d, s%d, 1' % (sB, sT2))
e('s_and_b32 s%d, s%d, 1' % (sT2, sT2))
e('s_lshl_b32 s%d, s%d, 1' % (sME, sT))
e('s_add_u32 s%d, s%d, s%d' % (sME, sME, sT2))
e('s_lshl_b32 s%d, s%d, 2' % (sH0, sME))
e('s_lshl_b32 s%d, s%d, 4' % (sGRP, sBR))
e('s_add_u32 s%d, s%d, s%d' % (sGRP, sGRP, sB))
if OPT['rot']:
    e('s_mul_i32 s%d, s%d, 5' % (sT2, sT2))
    e('s_add_u32 s%d, s%d, s%d' % (sROT, sB, sT2))
    e('s_cmp_ge_u32 s%d, 10' % sROT)
    e('s_cselect_b32 s%d, 10, 0' % sT2)
    e('s_sub_u32 s%d, s%d, s%d' % (sROT, sROT, sT2))
    e('s_cmp_ge_u32 s%d, 10' % sROT)
    e('s_cselect_b32 s%d, 10, 0' % sT2)
    e('s_sub_u32 s%d, s%d, s%d' % (sROT, sROT, sT2))
    e('s_and_b32 s%d, s%d, 7' % (sROT8, sB))
else:
    e('s_mov_b32 s%d, 0' % sROT)
    e('s_mov_b32 s%d, 0' % sROT8)
e('s_waitcnt lgkmcnt(0)')
e('s_cmp_eq_u32 s%d, 0' % sBR)
for (dst, a, b_, size) in ((sX, 36, 46, 16*96*640*2), (sK, 38, 48, 16*32*512*128*2), (sV, 40, 50, 16*32*512*128*2),
                           (sWQ, 42, 52, 640*4096*2), (sWO, 44, 54, 640*4096*2)):
    e('s_cselect_b64 s[%d:%d], s[%d:%d], s[%d:%d]' % (dst, dst + 1, a, a + 1, b_, b_ + 1))
    e('s_mov_b32 s%d, %d' % (dst + 2, size))
    e('s_mov_b32 s%d, 0x20000' % (dst + 3))
for (dst, a, size) in ((sOUT, 56, 16*96*1280*2), (sWS, 60, 293339136)):
    e('s_mov_b64 s[%d:%d], s[%d:%d]' % (dst, dst + 1, a, a + 1))
    e('s_mov_b32 s%d, %d' % (dst + 2, size))
    e('s_mov_b32 s%d, 0x20000' % (dst + 3))
for d in (sX, sK, sV, sWQ, sWO, sOUT, sWS):
    e('s_and_b32 s%d, s%d, 0xffff' % (d + 1, d + 1))
e('s_mov_b64 s[%d:%d], s[58:59]' % (sDBG, sDBG + 1))
e('s_mov_b32 s%d, 0' % sU)
e('v_lshrrev_b32 v1, 5, v0')
e('v_bfe_u32 v3, v0, 2, 2')
e('v_lshl_add_u32 v2, v1, 3, v3')
e('v_lshlrev_b32 v2, 8, v2')
e('v_bfe_u32 v4, v0, 4, 1')
e('v_lshl_add_u32 v2, v4, 5, v2')
e('v_and_b32 v4, 1, v0')
e('v_lshl_add_u32 v2, v4, 4, v2')
e('v_bfe_u32 v4, v0, 1, 1')
e('v_lshl_add_u32 v2, v4, 3, v2')
e('s_cmp_ge_u32 s%d, 3' % sWAVE)
e('s_cbranch_scc1 L_gemm')

OA, QF, SA, SB, KF, VF, NM, PP, aK, aT, aX, LS, TM = 0, 64, 96, 112, 128, 160, 192, 208, 216, 224, 228, 232, 234
aOW = 244
a = P.block('L_att', ['L_entry'])
for t in range(4):
    a('v_xor_b32 v5, %d, v3' % t)
    a('v_lshl_add_u32 v%d, v5, 6, v2' % (aT + t))
a('v_and_b32 v5, 0x13, v0')
a('v_bfe_u32 v6, v0, 2, 1')
a('v_lshl_or_b32 v5, v6, 3, v5')
a('v_bfe_u32 v6, v0, 3, 1')
a('v_lshl_or_b32 v5, v6, 2, v5')
a('v_and_b32 v6, 15, v5')
a('v_xor_b32 v6, v6, v1')
a('v_lshlrev_b32 v6, 4, v6')
a('v_lshl_add_u32 v6, v5, 8, v6')
a('v_add_u32 v6, %d, v6' % (2 * SLOT))
for s in range(8):
    a('v_xor_b32 v%d, %d, v6' % (aK + s, 32 * s))
a('v_and_b32 v5, 31, v0')
a('v_bfe_u32 v6, v0, 1, 3')
a('v_xor_b32 v6, v6, v1')
a('v_lshlrev_b32 v6, 4, v6')
a('v_lshl_add_u32 v6, v5, 7, v6')
a('s_lshl_b32 s%d, s%d, 12' % (sT, sWAVE))
a('s_add_u32 s%d, s%d, 16384' % (sT, sT))
a('v_add_u32 v6, s%d, v6' % sT)
for s in range(4):
    a('v_xor_b32 v%d, %d, v6' % (aX + s, 32 * s))
a('s_lshl_b32 s%d, s%d, 10' % (sT, sWAVE))
a('s_add_u32 s%d, s%d, %d' % (sT, sT, OBUF))
a('v_lshlrev_b32 v%d, 4, v0' % aOW)
a('v_add_u32 v%d, s%d, v%d' % (aOW, sT, aOW))
import struct
SCALE = (128 ** -0.5) * math.log2(math.e)
a('s_mov_b32 s%d, 0x%08x' % (sSC, struct.unpack('<I', struct.pack('<f', SCALE))[0]))
a('s_mov_b32 s%d, 0x42000000' % sTHR)
a('s_mov_b32 s%d, 0' % sSLOT)
a('s_barrier')

FQ = [KF, KF + 16, VF, VF + 16]
def q_reads(b, ks):
    b('ds_read_b128 %s, v%d' % (vr(SA + 4 * ks, 4), aX + ks))
    for t in range(4):
        for jj in range(2):
            b('ds_read_b64_tr_b16 %s, v%d offset:%d' % (vr(FQ[ks] + 4 * t + 2 * jj, 2), aT + t, ks * 4096 + jj * 1024))
def q_mfma(b, ks, first=False):
    for t in range(4):
        c = '0' if first else vr(OA + 16 * t, 16)
        b('%s %s, %s, %s, %s' % (MF, vr(OA + 16 * t, 16), vr(FQ[ks] + 4 * t, 4), vr(SA + 4 * ks, 4), c))
def next_slot(b):
    b('s_add_u32 s%d, s%d, %d' % (sT, sSLOT, SLOT))
    b('s_cmp_eq_u32 s%d, %d' % (sT, 3 * SLOT))
    b('s_cselect_b32 s%d, 0, s%d' % (sT, sT))
    b('s_sub_u32 s%d, s%d, s%d' % (sDELTA, sT, sSLOT))
    b('s_mov_b32 s%d, s%d' % (sSLOT, sT))
def adv(b, base, n):
    for i in range(n):
        b('v_add_u32 v%d, s%d, v%d' % (base + i, sDELTA, base + i))

q0 = P.block('L_att_unit', ['L_att', 'L_att_drain2'])
q_reads(q0, 0); q_reads(q0, 1)
q_mfma(q0, 0, first=True)
q_reads(q0, 2); q_reads(q0, 3)
q_mfma(q0, 1); q_mfma(q0, 2)
q0('s_mov_b32 s%d, 9' % sCNT)
q0('s_waitcnt lgkmcnt(0)')
q0('s_barrier')
ql = P.block('L_att_q', ['L_att_unit', 'L_att_q'])
next_slot(ql)
adv(ql, aX, 4); adv(ql, aT, 4)
q_reads(ql, 0); q_reads(ql, 1)
q_mfma(ql, 3)
q_reads(ql, 2); q_reads(ql, 3)
q_mfma(ql, 0); q_mfma(ql, 1); q_mfma(ql, 2)
ql('s_sub_u32 s%d, s%d, 1' % (sCNT, sCNT))
ql('s_cmp_lg_u32 s%d, 0' % sCNT)
ql('s_waitcnt lgkmcnt(0)')
ql('s_barrier')
ql('s_cbranch_scc1 L_att_q')

def k_read(b, s, tile):
    b('ds_read_b128 %s, v%d offset:%d' % (vr(KF + 4 * s, 4), aK + s, tile * 8192))
def v_read(b, sp, t, tile):
    for jj in range(2):
        b('ds_read_b64_tr_b16 %s, v%d offset:%d' % (vr(VF + 16 * sp + 4 * t + 2 * jj, 2), aT + t, 16384 + tile * 8192 + sp * 4096 + jj * 1024))
def s_mfma(b, s, X, c0):
    c = c0 if s == 0 else vr(X, 16)
    b('%s %s, %s, %s, %s' % (MF, vr(X, 16), vr(KF + 4 * s, 4), vr(QF + 4 * s, 4), c))
def pv_mfma(b, sp, t, first=False):
    c = '0' if (first and sp == 0) else vr(OA + 16 * t, 16)
    b('%s %s, %s, %s, %s' % (MF, vr(OA + 16 * t, 16), vr(VF + 16 * sp + 4 * t, 4), vr(PP + 4 * sp, 4), c))
def softmax_ops(X):
    ops = []
    for i in range(8):
        ops.append('v_exp_f32 v%d, v%d' % (X + 2 * i, X + 2 * i))
        ops.append('v_exp_f32 v%d, v%d' % (X + 2 * i + 1, X + 2 * i + 1))
        if i >= 1:
            ops.append('v_cvt_pk_bf16_f32 v%d, v%d, v%d' % (PP + i - 1, X + 2 * i - 2, X + 2 * i - 1))
    ops.append('v_cvt_pk_bf16_f32 v%d, v%d, v%d' % (PP + 7, X + 14, X + 15))
    return ops
def add_ops(X):
    return ['v_add_f32 v%d, v%d, v%d' % (LS + (i & 1), LS + (i & 1), X + i) for i in range(16)]
def max_ops(X):
    ops = ['v_max3_f32 v%d, v%d, v%d, v%d' % (TM, X, X + 1, X + 2)]
    for i in range(6):
        ops.append('v_max3_f32 v%d, v%d, v%d, v%d' % (TM, TM, X + 3 + 2 * i, X + 4 + 2 * i))
    ops.append('v_max_f32 v%d, v%d, v%d' % (TM, TM, X + 15))
    return ops
def spread(ops, n):
    out = []; k = 0
    for i in range(n):
        m = (len(ops) * (i + 1)) // n
        out.append(ops[k:m]); k = m
    return out

def phase_S(b, Xnew, Xold, ktile_next=None, pre=0):
    ops = softmax_ops(Xold)
    for o in ops[:pre]: b(o)
    g = spread(ops[pre:], 8)
    for s in range(8):
        s_mfma(b, s, Xnew, vr(NM, 16))
        for o in g[s]: b(o)
def phase_PV(b, Xcur, Xnext, vtile, ktile, first=False):
    ops = add_ops(Xcur)
    mx = max_ops(Xnext) if Xnext is not None else []
    g = spread(ops, 4) + spread(mx, 4)
    i = 0
    for sp in range(2):
        for t in range(4):
            pv_mfma(b, sp, t, first)
            if ktile is not None: k_read(b, i, ktile)
            if vtile is not None: v_read(b, sp, t, vtile)
            for o in g[i]: b(o)
            i += 1
slow = []
def check(b, X, name, nxt_preds):
    b('v_cmp_lt_f32 vcc, s%d, v%d' % (sTHR, TM))
    b('s_cbranch_vccnz L_slow_%s' % name)
    slow.append((name, X, b.name))
    return P.block('L_back_%s' % name, [b.name, 'L_slow_%s' % name], pend=b.pend)

a0 = P.block('L_att_a0', ['L_att_q'])
next_slot(a0)
adv(a0, aT, 4)
for s in range(8):
    a0('v_subrev_u32 v%d, %d, v%d' % (aK + s, SLOT, aK + s))
for s in range(8): k_read(a0, s, 0)
q_mfma(a0, 3)
a0('v_mov_b32 v%d, 0' % LS)
a0('v_mov_b32 v%d, 0' % (LS + 1))
for ks in range(8):
    base = OA + 16 * (ks >> 1) + 8 * (ks & 1)
    for i in range(8):
        a0('v_mul_f32 v%d, s%d, v%d' % (base + i, sSC, base + i))
    for i in range(4):
        a0('v_cvt_pk_bf16_f32 v%d, v%d, v%d' % (QF + 4 * ks + i, base + 2 * i, base + 2 * i + 1))
i = 0
for s in range(8):
    s_mfma(a0, s, SA, '0')
    k_read(a0, s, 1)
    v_read(a0, s >> 2, s & 3, 0)
for o in max_ops(SA): a0(o)
a0('v_mov_b32 v%d, v%d' % (TM + 1, TM))
a0('v_permlane32_swap_b32 v%d, v%d' % (TM, TM + 1))
a0('v_max_f32 v%d, v%d, v%d' % (TM, TM, TM + 1))
for i in range(16):
    a0('v_sub_f32 v%d, v%d, v%d' % (SA + i, SA + i, TM))
for i in range(16):
    a0('v_mul_f32 v%d, -1.0, v%d' % (NM + i, TM))
phase_S(a0, SB, SA)
phase_PV(a0, SA, SB, 1, None, first=True)
a0b = check(a0, SB, 'a0', None)
a0b('s_mov_b32 s%d, 7' % sCNT)
a0b('s_waitcnt lgkmcnt(0)')
a0b('s_barrier')
al = P.block('L_att_a', ['L_back_a0', 'L_back_a2'])
next_slot(al)
adv(al, aK, 8)
for s in range(8): k_read(al, s, 0)
adv(al, aT, 4)
phase_S(al, SA, SB, pre=8)
phase_PV(al, SB, SA, 0, 1)
al1 = check(al, SA, 'a1', None)
phase_S(al1, SB, SA)
phase_PV(al1, SA, SB, 1, None)
al2 = check(al1, SB, 'a2', None)
al2('s_sub_u32 s%d, s%d, 1' % (sCNT, sCNT))
al2('s_cmp_lg_u32 s%d, 0' % sCNT)
al2('s_waitcnt lgkmcnt(0)')
al2('s_barrier')
al2('s_cbranch_scc1 L_att_a')
d = P.block('L_att_drain', ['L_back_a2'])
for o in softmax_ops(SB): d(o)
phase_PV(d, SB, None, None, None)
d('v_add_f32 v%d, v%d, v%d' % (TM, LS, LS + 1))
d('v_mov_b32 v%d, v%d' % (TM + 1, TM))
d('v_permlane32_swap_b32 v%d, v%d' % (TM, TM + 1))
d('v_add_f32 v%d, v%d, v%d' % (TM, TM, TM + 1))
d('v_rcp_f32 v%d, v%d' % (TM, TM))
next_slot(d)
adv(d, aT, 4)
for ks in range(8):
    base = OA + 16 * (ks >> 1) + 8 * (ks & 1)
    for i in range(8):
        d('v_mul_f32 v%d, v%d, v%d' % (base + i, TM, base + i))
    for i in range(4):
        d('v_cvt_pk_bf16_f32 v%d, v%d, v%d' % (QF + 4 * ks + i, base + 2 * i, base + 2 * i + 1))
    d('ds_write_b128 v%d, %s offset:%d' % (aOW, vr(QF + 4 * ks, 4), ks * 3072))
d('s_add_u32 s%d, s%d, 1' % (sU, sU))
d('s_cmp_lt_u32 s%d, 4' % sU)
d2 = P.block('L_att_drain2', ['L_att_drain'], pend=d.pend)
d2('s_waitcnt lgkmcnt(0)')
d2('s_cbranch_scc1 L_att_unit')
d3 = P.block('L_att_fin', ['L_att_drain2'])
d3('s_barrier')
d3('s_branch L_pub')

AF, BF, aW, aO, aOB, vK, vV, vWQ, vX, vWO = 192, 208, 232, 236, 237, 238, 239, 240, 241, 242
g = P.block('L_gemm', ['L_entry'])
g('s_sub_u32 s%d, s%d, 3' % (sT3, sWAVE))
g('s_sub_u32 s%d, s%d, 4' % (sJ, sWAVE))
g('s_lshl_b32 s%d, s%d, 13' % (sWL, sT3))
g('s_add_u32 s%d, s%d, %d' % (sWL, sWL, WBASE))
for t in range(4):
    g('v_xor_b32 v5, %d, v3' % t)
    g('v_lshl_add_u32 v5, v5, 6, v2')
    g('v_add_u32 v%d, s%d, v5' % (aW + t, sWL))
g('v_lshlrev_b32 v%d, 4, v0' % aOB)
g('v_add_u32 v%d, %d, v%d' % (aOB, OBUF, aOB))
g('v_lshrrev_b32 v4, 4, v0')
g('v_and_b32 v5, 15, v0')
g('v_lshlrev_b32 v6, 2, v4')
g('v_xor_b32 v6, v6, v5')
g('v_lshlrev_b32 v6, 4, v6')
g('v_lshl_add_u32 v%d, v4, 8, v6' % vV)
g('v_lshl_add_u32 v%d, v4, 13, v6' % vWQ)
g('v_mul_u32_u24 v7, 1280, v4')
g('v_add_u32 v%d, v7, v6' % vWO)
g('v_xor_b32 v6, v5, v4')
g('s_lshl_b32 s%d, s%d, 2' % (sT, sJ))
g('s_and_b32 s%d, s%d, 12' % (sT, sT))
g('v_xor_b32 v6, s%d, v6' % sT)
g('v_lshlrev_b32 v6, 4, v6')
g('v_lshl_add_u32 v%d, v4, 8, v6' % vK)
g('v_and_b32 v6, 7, v0')
g('v_xor_b32 v6, v6, v4')
g('s_and_b32 s%d, s%d, 4' % (sT, sT))
g('v_xor_b32 v6, s%d, v6' % sT)
g('v_lshlrev_b32 v6, 4, v6')
g('v_lshrrev_b32 v7, 3, v0')
g('v_mul_u32_u24 v7, 1280, v7')
g('v_add_u32 v%d, v7, v6' % vX)
def unit_bases(b, uplus):
    b('s_add_u32 s%d, s%d, s%d' % (sT, sH0, sU))
    if uplus: b('s_add_u32 s%d, s%d, %d' % (sT, sT, uplus))
    b('s_lshl_b32 s%d, s%d, 8' % (sWQO, sT))
    b('s_mov_b32 s%d, s%d' % (sKC, sROT))
def kv_base(b):
    b('s_add_u32 s%d, s%d, s%d' % (sT, sH0, sU))
    b('s_lshl_b32 s%d, s%d, 5' % (sT2, sB))
    b('s_add_u32 s%d, s%d, s%d' % (sT, sT, sT2))
    b('s_lshl_b32 s%d, s%d, 17' % (sKVO, sT))
    b('s_lshl_b32 s%d, s%d, 10' % (sT2, sJ))
    b('s_add_u32 s%d, s%d, s%d' % (sKVO, sKVO, sT2))
def wo_base(b, uplus):
    b('s_add_u32 s%d, s%d, s%d' % (sT, sH0, sU))
    if uplus: b('s_add_u32 s%d, s%d, %d' % (sT, sT, uplus))
    b('s_mul_i32 s%d, s%d, %d' % (sWOB, sT, 128 * 1280))
    b('s_lshl_b32 s%d, s%d, 8' % (sT, sT3))
    b('s_add_u32 s%d, s%d, s%d' % (sWOB, sWOB, sT))
    b('s_mov_b32 s%d, s%d' % (sKSI, sROT8))
    b('s_mov_b32 s%d, s%d' % (sKSC, sROT8))
def adv_ms(b):
    b('s_add_u32 s%d, s%d, %d' % (sMS, sMS, SLOT))
    b('s_cmp_eq_u32 s%d, %d' % (sMS, 3 * SLOT))
    b('s_cselect_b32 s%d, 0, s%d' % (sMS, sMS))
def issue_Q(b):
    b('s_lshl_b32 s%d, s%d, 12' % (sT2, sJ))
    b('s_add_u32 m0, s%d, s%d' % (sMS, sT2))
    b('s_lshl_b32 s%d, s%d, 19' % (sT, sKC))
    b('s_add_u32 s%d, s%d, s%d' % (sT, sT, sWQO))
    b('s_lshl_b32 s%d, s%d, 17' % (sT2, sJ))
    b('s_add_u32 s%d, s%d, s%d' % (sT, sT, sT2))
    for m in range(4):
        if m: b('s_add_u32 s%d, s%d, %d' % (sT, sT, 32768 - 1024))
        b('buffer_load_dwordx4 v%d, %s, s%d offen offset:%d lds' % (vWQ, srd(sWQ), sT, m * 1024))
    b('s_lshl_b32 s%d, s%d, 10' % (sT2, sJ))
    b('s_add_u32 s%d, s%d, 16384' % (sT2, sT2))
    b('s_add_u32 m0, s%d, s%d' % (sMS, sT2))
    b('s_lshl_b32 s%d, s%d, 7' % (sT, sKC))
    b('s_add_u32 s%d, s%d, s%d' % (sT, sT, sXO))
    for m in range(3):
        if m:
            b('s_add_u32 m0, m0, 4096')
            b('s_add_u32 s%d, s%d, %d' % (sT, sT, 4 * 10240))
        b('buffer_load_dwordx4 v%d, %s, s%d offen lds' % (vX, srd(sX), sT))
    b('s_add_u32 s%d, s%d, 1' % (sKC, sKC))
    b('s_cmp_eq_u32 s%d, 10' % sKC)
    b('s_cselect_b32 s%d, 0, s%d' % (sKC, sKC))
    adv_ms(b)
def issue_A(b):
    b('s_lshl_b32 s%d, s%d, 10' % (sT2, sJ))
    b('s_add_u32 m0, s%d, s%d' % (sMS, sT2))
    b('s_mov_b32 s%d, s%d' % (sT, sKVO))
    for m in range(4):
        if m:
            b('s_add_u32 m0, m0, 4096')
            b('s_add_u32 s%d, s%d, 4096' % (sT, sT))
        b('buffer_load_dwordx4 v%d, %s, s%d offen%s lds' % (vK, srd(sK), sT, NT))
    b('s_mul_i32 s%d, s%d, 3072' % (sT, sJ))
    b('s_add_u32 s%d, s%d, s%d' % (sT, sT, sKVO))
    b('s_lshl_b32 s%d, s%d, 12' % (sT2, sJ))
    b('s_add_u32 s%d, s%d, 16384' % (sT2, sT2))
    b('s_add_u32 m0, s%d, s%d' % (sMS, sT2))
    b('s_add_u32 s%d, s%d, 16384' % (sKVO, sKVO))
    for m in range(4):
        b('buffer_load_dwordx4 v%d, %s, s%d offen offset:%d%s lds' % (vV, srd(sV), sT, m * 1024, NT))
    adv_ms(b)
def issue_W(b):
    b('s_mov_b32 m0, s%d' % sWS_)
    b('s_mul_i32 s%d, s%d, %d' % (sT, sKSI, 16 * 1280))
    b('s_add_u32 s%d, s%d, s%d' % (sT, sT, sWOB))
    for m in range(4):
        if m: b('s_add_u32 s%d, s%d, 4096' % (sT, sT))
        b('buffer_load_dwordx4 v%d, %s, s%d offen offset:%d lds' % (vWO, srd(sWO), sT, m * 1024))
    b('s_xor_b32 s%d, s%d, 4096' % (sWS_, sWS_))
    b('s_add_u32 s%d, s%d, 1' % (sKSI, sKSI))
    b('s_and_b32 s%d, s%d, 7' % (sKSI, sKSI))
def compute_W(b):
    b('s_mul_i32 s%d, s%d, 3072' % (sT, sKSC))
    b('v_add_u32 v%d, s%d, v%d' % (aO, sT, aOB))
    for qt in range(3):
        b('ds_read_b128 %s, v%d offset:%d' % (vr(BF + 4 * qt, 4), aO, qt * 1024))
    for t in range(4):
        for jj in range(2):
            b('ds_read_b64_tr_b16 %s, v%d offset:%d' % (vr(AF + 4 * t + 2 * jj, 2), aW + t, jj * 1024))
    b('s_add_u32 s%d, s%d, 1' % (sKSC, sKSC))
    b('s_and_b32 s%d, s%d, 7' % (sKSC, sKSC))
    for t in range(4):
        for qt in range(3):
            acc = vr((qt * 4 + t) * 16, 16)
            b('%s %s, %s, %s, %s' % (MF, acc, vr(AF + 4 * t, 4), vr(BF + 4 * qt, 4), acc))
    for t in range(4):
        b('v_xor_b32 v%d, 4096, v%d' % (aW + t, aW + t))

g('s_mul_i32 s%d, s%d, 122880' % (sXO, sB))
g('s_mul_i32 s%d, s%d, 10240' % (sT, sJ))
g('s_add_u32 s%d, s%d, s%d' % (sXO, sXO, sT))
g('s_mov_b32 s%d, 0' % sMS)
g('s_mov_b32 s%d, s%d' % (sWS_, sWL))
unit_bases(g, 0)
g('s_cmp_eq_u32 s%d, 3' % sWAVE)
g('s_cbranch_scc1 L_g_pro2')
g1 = P.block('L_g_pro1', ['L_gemm'])
issue_Q(g1); issue_Q(g1)
g2 = P.block('L_g_pro2', ['L_gemm', 'L_g_pro1'])
for i in range(192): g2('v_mov_b32 v%d, 0' % i)
g2('s_waitcnt vmcnt(7)')
g2('s_barrier')

uid = [0]
def gstep(name, preds, M, W, C, last_unit_skipM=False, tail=None):
    n = name
    b = P.block(n, preds)
    cur = n
    if W == 'cond':
        b('s_cmp_eq_u32 s%d, 0' % sU)
        b('s_cbranch_scc1 %s_w' % n)
        b1 = P.block(n + '_w0', [cur], label=False); issue_W(b1)
        b = P.block(n + '_w', [cur, n + '_w0']); cur = n + '_w'
    elif W == 'last':
        b('s_cmp_lg_u32 s%d, 3' % sU)
        b('s_cbranch_scc1 %s_w' % n)
        b1 = P.block(n + '_w0', [cur], label=False); wo_base_keepC(b1); issue_W(b1)
        b = P.block(n + '_w', [cur, n + '_w0']); cur = n + '_w'
    if last_unit_skipM:
        b('s_cmp_eq_u32 s%d, 3' % sU)
        b('s_cselect_b32 s%d, 0, s%d' % (sT, sISLD))
        b('s_mov_b32 s85, s%d' % sT)
    else:
        b('s_mov_b32 s85, s%d' % sISLD)
    b('s_cmp_eq_u32 s85, 0')
    b('s_cbranch_scc1 %s_m' % n)
    b1 = P.block(n + '_m0', [cur], label=False)
    if M == 'Q': issue_Q(b1)
    elif M == 'Qn':
        unit_bases(b1, 1); issue_Q(b1)
    elif M == 'A': issue_A(b1)
    elif M == 'A0':
        kv_base(b1); issue_A(b1)
    b = P.block(n + '_m', [cur, n + '_m0']); cur = n + '_m'
    if C:
        b('s_cmp_eq_u32 s%d, 0' % sU)
        b('s_cbranch_scc1 %s_c' % n)
        b1 = P.block(n + '_c0', [cur], label=False); compute_W(b1)
        b1('s_waitcnt lgkmcnt(0)')
        b = P.block(n + '_c', [cur, n + '_c0']); cur = n + '_c'
    b('s_cmp_lg_u32 s85, 0')
    b('s_cbranch_scc1 %s_v' % n)
    b1 = P.block(n + '_v0', [cur], label=False)
    if W == 'last':
        b1('s_waitcnt vmcnt(4)')
    else:
        b1('s_waitcnt vmcnt(0)')
    b = P.block(n + '_v', [cur, n + '_v0']); cur = n + '_v'
    b('s_waitcnt vmcnt(%d)' % (7 if M[0] == 'Q' else 8))
    if tail: tail(b)
    b('s_barrier')
    return b, cur
def wo_base_keepC(b):
    b('s_add_u32 s%d, s%d, s%d' % (sT, sH0, sU))
    b('s_mul_i32 s%d, s%d, %d' % (sWOB, sT, 128 * 1280))
    b('s_lshl_b32 s%d, s%d, 8' % (sT, sT3))
    b('s_add_u32 s%d, s%d, s%d' % (sWOB, sWOB, sT))
    b('s_mov_b32 s%d, s%d' % (sKSI, sROT8))
def dec(b):
    b('s_sub_u32 s%d, s%d, 1' % (sCNT, sCNT))
    b('s_cmp_lg_u32 s%d, 0' % sCNT)

g2('s_cmp_lg_u32 s%d, 3' % sWAVE)
g2('s_cselect_b32 s%d, 1, 0' % sISLD)
gu = P.block('L_g_unit', ['L_g_pro2', 'L_g17_v'])
gu('s_mov_b32 s%d, 8' % sCNT)
wo_base(gu, -1)
b, cur = gstep('L_gq', ['L_g_unit', 'L_gq_v'], 'Q', None, False, tail=dec)
b('s_cbranch_scc1 L_gq')
b, cur = gstep('L_g8', [cur], 'A0', None, False)
b, cur = gstep('L_g9', [cur], 'A', 'cond', False)
b('s_mov_b32 s%d, 6' % sCNT)
b, cur = gstep('L_ga', [cur, 'L_ga_v'], 'A', 'cond', True, tail=dec)
b('s_cbranch_scc1 L_ga')
b, cur = gstep('L_g16', [cur], 'Qn', 'cond', True, last_unit_skipM=True)
def incu(b):
    b('s_add_u32 s%d, s%d, 1' % (sU, sU))
    b('s_cmp_lt_u32 s%d, 4' % sU)
b, cur = gstep('L_g17', [cur], 'Q', 'last', True, last_unit_skipM=True, tail=incu)
b('s_cbranch_scc1 L_g_unit')
ep = P.block('L_g_ep', [cur])
issue_W(ep)
ep('s_mov_b32 s%d, s%d' % (sKSC, sROT8))
ep('s_mov_b32 s%d, 6' % sCNT)
ep('s_barrier')
el = P.block('L_g_epl', ['L_g_ep', 'L_g_epl'])
el('s_waitcnt vmcnt(4)')
compute_W(el)
el('s_waitcnt lgkmcnt(0)')
issue_W(el)
dec(el)
el('s_cbranch_scc1 L_g_epl')
e2 = P.block('L_g_ep2', ['L_g_epl'])
e2('s_waitcnt vmcnt(4)')
compute_W(e2)
e2('s_waitcnt vmcnt(0)')
compute_W(e2)
e2('s_lshl_b32 s%d, s%d, 3' % (sT, sGRP))
e2('s_add_u32 s%d, s%d, s%d' % (sT, sT, sME))
e2('s_mul_i32 s%d, s%d, 122880' % (sT, sT))
e2('s_mul_i32 s%d, s%d, 24576' % (sT2, sT3))
e2('s_add_u32 s%d, s%d, s%d' % (sT, sT, sT2))
e2('v_subrev_u32 v%d, %d, v%d' % (aO, OBUF, aOB))
for tile in range(12):
    base = tile * 16
    for i in range(8):
        e2('v_cvt_pk_bf16_f32 v%d, v%d, v%d' % (base + i, base + 2 * i, base + 2 * i + 1))
    if tile and tile % 2 == 0:
        e2('s_add_u32 s%d, s%d, 4096' % (sT, sT))
    for h in range(2):
        e2('buffer_store_dwordx4 %s, v%d, %s, s%d offen offset:%d sc1' % (vr(base + 4 * h, 4), aO, srd(sWS), sT, ((tile & 1) * 2 + h) * 1024))
e2('s_waitcnt vmcnt(0)')

pb = P.block('L_pub', ['L_g_ep2', 'L_att_fin'])
pb('s_barrier')
pb('s_cmp_lg_u32 s%d, 0' % sWAVE)
pb('s_cbranch_scc1 L_red')
pl0 = P.block('L_poll0', ['L_pub'])
pl0('s_mov_b64 exec, 1')
pl0('s_lshl_b32 s%d, s%d, 3' % (sT, sGRP))
pl0('v_mov_b32 v200, s%d' % sT)
pl0('v_mov_b32 v201, 1')
pl0('global_atomic_add v200, v201, s[%d:%d] sc1' % (sDBG, sDBG + 1))
pl0('s_mov_b32 s%d, 0x100000' % sCNT)
pl = P.block('L_poll', ['L_poll0', 'L_poll'])
pl('global_load_dword v202, v200, s[%d:%d] sc1' % (sDBG, sDBG + 1))
pl('s_waitcnt vmcnt(0)')
pl('v_readfirstlane_b32 s%d, v202' % sT)
pl('s_sub_u32 s%d, s%d, 1' % (sCNT, sCNT))
pl('s_cmp_eq_u32 s%d, 0' % sCNT)
pl('s_cbranch_scc1 L_polld')
pl('s_cmp_lt_u32 s%d, 8' % sT)
pl('s_cbranch_scc1 L_poll')
pd = P.block('L_polld', ['L_poll'])
pd('s_mov_b64 exec, -1')
r = P.block('L_red', ['L_polld', 'L_pub'])
r('s_barrier')
r('v_mbcnt_lo_u32_b32 v200, -1, 0')
r('v_mbcnt_hi_u32_b32 v200, -1, v200')
r('v_lshlrev_b32 v201, 4, v200')
r('v_and_b32 v202, 31, v200')
r('v_mul_u32_u24 v202, 2560, v202')
r('v_lshrrev_b32 v203, 5, v200')
r('v_lshl_add_u32 v202, v203, 4, v202')
r('s_mul_i32 s%d, s%d, 15' % (sKC, sME))
r('s_lshl_b32 s%d, s%d, 1' % (sT, sWAVE))
r('s_add_u32 s%d, s%d, s%d' % (sKC, sKC, sT))
r('s_mul_i32 s%d, s%d, %d' % (sT, sGRP, 8 * 122880))
r('s_lshl_b32 s%d, s%d, 10' % (sT2, sKC))
r('s_add_u32 s%d, s%d, s%d' % (sT, sT, sT2))
for src in range(8):
    if src: r('s_add_u32 s%d, s%d, 122880' % (sT, sT))
    for p in range(2):
        r('buffer_load_dwordx4 %s, v201, %s, s%d offen offset:%d sc1' % (vr(64 * p + 4 * src, 4), srd(sWS), sT, p * 1024))
def out_off(b, dst, chunk):
    b('s_mul_i32 s%d, s%d, 43' % (sT, chunk))
    b('s_lshr_b32 s%d, s%d, 10' % (sT, sT))
    b('s_mul_i32 s%d, s%d, 24' % (sT2, sT))
    b('s_sub_u32 s%d, s%d, s%d' % (sT2, chunk, sT2))
    b('s_lshl_b32 s%d, s%d, 8' % (dst, sT))
    b('s_and_b32 s%d, s%d, 7' % (sT, sT2))
    b('s_lshl_b32 s%d, s%d, 5' % (sT, sT))
    b('s_add_u32 s%d, s%d, s%d' % (dst, dst, sT))
    b('s_lshr_b32 s%d, s%d, 3' % (sT2, sT2))
    b('s_mul_i32 s%d, s%d, %d' % (sT2, sT2, 32 * 2560))
    b('s_add_u32 s%d, s%d, s%d' % (dst, dst, sT2))
    b('s_mul_i32 s%d, s%d, %d' % (sT2, sB, 96 * 2560))
    b('s_add_u32 s%d, s%d, s%d' % (dst, dst, sT2))
    b('s_mul_i32 s%d, s%d, 1280' % (sT2, sBR))
    b('s_add_u32 s%d, s%d, s%d' % (dst, dst, sT2))
out_off(r, sKSI, sKC)
r('s_add_u32 s%d, s%d, 1' % (sKC, sKC))
out_off(r, sKSC, sKC)
r('s_mov_b32 s%d, 0xffff0000' % sT)
def reduce_chunk(b, p):
    acc = 140 + 8 * p
    for src in range(8):
        if p == 0: b('s_waitcnt vmcnt(%d)' % (15 - 2 * src))
        elif src == 0: b('s_waitcnt vmcnt(1)')
        for i in range(4):
            x = 64 * p + 4 * src + i
            if src == 0:
                b('v_lshlrev_b32 v%d, 16, v%d' % (acc + 2 * i, x))
                b('v_and_b32 v%d, s%d, v%d' % (acc + 2 * i + 1, sT, x))
            else:
                b('v_lshlrev_b32 v160, 16, v%d' % x)
                b('v_and_b32 v161, s%d, v%d' % (sT, x))
                b('v_add_f32 v%d, v%d, v160' % (acc + 2 * i, acc + 2 * i))
                b('v_add_f32 v%d, v%d, v161' % (acc + 2 * i + 1, acc + 2 * i + 1))
    for i in range(4):
        b('v_cvt_pk_bf16_f32 v%d, v%d, v%d' % (acc + i, acc + 2 * i, acc + 2 * i + 1))
    b('buffer_store_dwordx4 %s, v202, %s, s%d offen' % (vr(acc, 4), srd(sOUT), sKSI if p == 0 else sKSC))
reduce_chunk(r, 0)
r('s_cmp_eq_u32 s%d, 7' % sWAVE)
r('s_cbranch_scc1 L_fin')
r2 = P.block('L_red2', ['L_red'])
reduce_chunk(r2, 1)
f = P.block('L_fin', ['L_red2', 'L_red'])
if OPT['stamps']:
    f('s_waitcnt vmcnt(0)')
    f('s_cmp_lg_u32 s%d, 0' % sWAVE)
    f('s_cbranch_scc1 L_end')
    f('s_memrealtime s[%d:%d]' % (sT, sT + 1))
    f('s_waitcnt lgkmcnt(0)')
    f('v_mov_b32 v0, s%d' % sST0)
    f('v_mov_b32 v1, s%d' % (sST0 + 1))
    f('v_mov_b32 v2, s%d' % sT)
    f('v_mov_b32 v3, s%d' % (sT + 1))
    f('s_lshl_b32 s%d, s2, 4' % sT2)
    f('s_add_u32 s%d, s%d, %d' % (sT2, sT2, 64 << 20))
    f('v_mov_b32 v4, 0')
    f('s_mov_b64 exec, 1')
    f('buffer_store_dwordx4 v[0:3], v4, %s, s%d offen' % (srd(sWS), sT2))
en = P.block('L_end', ['L_fin'])
en('s_endpgm')

for (name, X, frm) in slow:
    s = P.block('L_slow_%s' % name, [frm])
    s('s_nop 15')
    s('v_mov_b32 v%d, v%d' % (TM + 1, TM))
    s('v_permlane32_swap_b32 v%d, v%d' % (TM, TM + 1))
    s('v_max3_f32 v%d, v%d, v%d, 0' % (TM, TM, TM + 1))
    s('v_exp_f32 v%d, -v%d' % (TM + 1, TM))
    for i in range(16):
        s('v_sub_f32 v%d, v%d, v%d' % (X + i, X + i, TM))
        s('v_sub_f32 v%d, v%d, v%d' % (NM + i, NM + i, TM))
    for i in range(64):
        s('v_mul_f32 v%d, v%d, v%d' % (OA + i, TM + 1, OA + i))
    s('v_mul_f32 v%d, v%d, v%d' % (LS, TM + 1, LS))
    s('v_mul_f32 v%d, v%d, v%d' % (LS + 1, TM + 1, LS + 1))
    s('s_nop 1')
    s('s_branch L_back_%s' % name)

body = P.finish()
hdr = open('concat_heads__gqa_block_cached__gqa_block_cached__near_ridge.s.ref').read().split('; Override launch')[0]
out = hdr + """; Override launch geometry by editing the next line (default: block=256,
; grid=ceil(out_elems/256), lds=0). Harness parses it; keep it on one line.
; @launch grid=(256,1,1) block=(512,1,1) lds=%d
.amdgcn_target "amdgcn-amd-amdhsa--gfx950"
.text
.globl %s
.p2align 8
.type %s,@function
%s:
%s
.section .rodata,"a"
.p2align 6
.amdhsa_kernel %s
  .amdhsa_next_free_vgpr 256
  .amdhsa_next_free_sgpr 102
  .amdhsa_accum_offset 256
  .amdhsa_group_segment_fixed_size 0
  .amdhsa_kernarg_size 104
  .amdhsa_user_sgpr_count 2
  .amdhsa_user_sgpr_kernarg_segment_ptr 1
  .amdhsa_system_sgpr_workgroup_id_x 1
.end_amdhsa_kernel
""" % (LDS_BYTES, KN, KN, KN, body, KN)
open(sys.argv[1], 'w').write(out)
```

```python
import re

def regs_of(tok):
    tok = tok.strip()
    tok = tok.lstrip('-').strip('|')
    m = re.fullmatch(r'([vsa])\[(\d+):(\d+)\]', tok)
    if m:
        return m.group(1), set(range(int(m.group(2)), int(m.group(3)) + 1))
    m = re.fullmatch(r'([vsa])(\d+)', tok)
    if m:
        return m.group(1), {int(m.group(2))}
    if tok == 'vcc':
        return 's', {106, 107}
    if tok == 'vcc_lo':
        return 's', {106}
    if tok == 'm0':
        return 's', {124}
    if tok == 'exec':
        return 's', {126, 127}
    if tok == 'exec_hi':
        return 's', {127}
    return None, set()

TRANS = ('v_exp_f32', 'v_rcp_f32', 'v_log_f32', 'v_rsq_f32', 'v_sqrt_f32')

class I:
    def __init__(self, text):
        self.text = text
        t = text.split(';')[0].strip()
        self.op = t.split()[0] if t else ''
        rest = t[len(self.op):].strip()
        ops = [o.strip() for o in rest.split(',')] if rest else []
        toks = []
        for o in ops:
            toks.append(o.split()[0] if o else o)
        self.mods = rest
        self.vr = set(); self.vw = set(); self.sr = set(); self.sw = set()
        self.kind = 'other'
        self.mfA = set(); self.mfB = set(); self.mfC = set(); self.mfD = set()
        op = self.op
        def rd(tok):
            k, r = regs_of(tok)
            if k == 'v': self.vr |= r
            elif k == 's': self.sr |= r
        def wr(tok):
            k, r = regs_of(tok)
            if k == 'v': self.vw |= r
            elif k == 's': self.sw |= r
        if op.endswith(':') or op == '' or op.startswith('.'):
            self.kind = 'label'
        elif op.startswith('v_mfma'):
            self.kind = 'mfma'
            self.mfD = regs_of(toks[0])[1]
            self.mfA = regs_of(toks[1])[1]
            self.mfB = regs_of(toks[2])[1]
            k, r = regs_of(toks[3])
            self.mfC = r if k == 'v' else set()
            self.vw = set(self.mfD); self.vr = self.mfA | self.mfB | self.mfC
        elif op.startswith('ds_read'):
            self.kind = 'dsr'; wr(toks[0]); rd(toks[1])
        elif op.startswith('ds_write'):
            self.kind = 'dsw'
            for t_ in toks: rd(t_)
        elif op.startswith('buffer_load'):
            if re.search(r'\blds\b', rest):
                self.kind = 'dma'
                for t_ in toks: rd(t_)
                self.sr |= {124}
            else:
                self.kind = 'vld'; wr(toks[0])
                for t_ in toks[1:]: rd(t_)
        elif op.startswith('global_load'):
            self.kind = 'vld'; wr(toks[0])
            for t_ in toks[1:]: rd(t_)
        elif op.startswith('buffer_store') or op.startswith('global_store') or 'atomic' in op:
            self.kind = 'vst'
            for t_ in toks: rd(t_)
            if op.startswith('buffer_store'):
                self.data = regs_of(toks[0])[1]
            else:
                self.data = regs_of(toks[1])[1]
            self.wide = op.endswith('x4') or op.endswith('x3')
        elif op.startswith('v_'):
            self.kind = 'valu'
            if op.startswith('v_cmp'):
                wr(toks[0])
                for t_ in toks[1:]: rd(t_)
            elif op.startswith('v_permlane32_swap') or op.startswith('v_permlane16_swap'):
                wr(toks[0]); wr(toks[1]); rd(toks[0]); rd(toks[1])
            elif op.startswith('v_readfirstlane') or op.startswith('v_readlane'):
                wr(toks[0])
                for t_ in toks[1:]: rd(t_)
            else:
                wr(toks[0])
                for t_ in toks[1:]: rd(t_)
                if op.startswith('v_fmac') or op.startswith('v_dot2c') or op.startswith('v_mac'):
                    rd(toks[0])
                if op.startswith('v_cndmask') and len(toks) == 3:
                    self.sr |= {106, 107}
        elif op.startswith('s_'):
            self.kind = 'salu'
            if op in ('s_waitcnt', 's_barrier', 's_nop', 's_endpgm', 's_sleep', 's_setprio') or op.startswith('s_cbranch') or op == 's_branch':
                self.kind = op if not op.startswith('s_cbranch') else 's_cbranch'
            elif op.startswith('s_cmp') or op.startswith('s_bitcmp'):
                for t_ in toks: rd(t_)
            else:
                wr(toks[0])
                for t_ in toks[1:]: rd(t_)
        self.trans = op.replace('_e32', '').replace('_e64', '') in TRANS
    def states(self):
        if self.kind == 'label': return 0
        if self.kind == 's_nop':
            return int(self.text.split()[1], 0) + 1
        return 1

def need_states(p, c):
    n = 0
    if p.kind == 'valu':
        if c.kind == 'mfma' and (p.vw & c.vr): n = max(n, 2)
        if c.kind == 'valu':
            if p.trans and not c.trans and (p.vw & c.vr): n = max(n, 1)
            if c.op.startswith('v_permlane') and (p.vw & c.vr): n = max(n, 2)
            if (c.op.startswith('v_readfirstlane') or c.op.startswith('v_readlane')) and (p.vw & c.vr): n = max(n, 1)
            if p.sw & c.sr: n = max(n, 2)
            if 'dpp' in c.mods and (p.vw & c.vr): n = max(n, 2)
        if c.kind in ('dma', 'vld', 'vst') and (p.sw & c.sr): n = max(n, 5)
        if c.kind == 'mfma' and (p.sw & {126, 127}): n = max(n, 4)
    if p.kind == 'mfma':
        if c.kind == 'mfma':
            if p.mfD & (c.mfA | c.mfB): n = max(n, 12)
            if (p.mfD & c.mfC) and p.mfD != c.mfC: n = max(n, 10)
        elif c.kind in ('valu', 'dsr', 'dsw', 'dma', 'vld', 'vst'):
            if p.mfD & (c.vr | c.vw): n = max(n, 12)
            if c.kind == 'valu' and (p.mfC & c.vw): n = max(n, 7)
    if p.kind == 'salu' and 124 in p.sw and c.kind == 'dma': n = max(n, 1)
    if p.kind == 'vst' and getattr(p, 'wide', False):
        if c.kind == 'valu' and (p.data & c.vw): n = max(n, 2)
        elif (p.data & c.vw): n = max(n, 1)
    return n

class Block:
    def __init__(self, name=None):
        self.ins = []
        self.name = name
        self.pend = []
    def raw(self, text):
        self.ins.append(I(text))
    def __call__(self, text):
        for line in text.split('\n'):
            line = line.strip()
            if line: self.emit(line)
    def waitfor(self, regs):
        regs = set(regs); last = -1
        for k, d in enumerate(self.pend):
            if d & regs: last = k
        if last >= 0:
            n = min(len(self.pend) - 1 - last, 14)
            self.emit('s_waitcnt lgkmcnt(%d)' % n)
    def emit(self, text):
        ins = I(text)
        touched = ins.vr | ins.vw
        if touched and self.pend:
            last = -1
            for k, d in enumerate(self.pend):
                if d & touched: last = k
            if last >= 0:
                n = len(self.pend) - 1 - last
                n = min(n, 14)
                self.ins.append(I('s_waitcnt lgkmcnt(%d)' % n))
                self.pend = self.pend[len(self.pend) - n:] if n else []
        if ins.kind == 'dsr':
            self.pend.append(set(ins.vw))
        elif ins.kind == 'dsw':
            self.pend.append(set())
        if ins.op == 's_waitcnt':
            m = re.search(r'lgkmcnt\((\d+)\)', text)
            if m:
                n = int(m.group(1))
                self.pend = self.pend[len(self.pend) - n:] if n and n < len(self.pend) else ([] if n == 0 else self.pend)
        self.ins.append(ins)

def fix_hazards(ins, pred_tails):
    out = []
    for c in ins:
        if c.kind in ('label', 's_nop', 's_waitcnt', 's_barrier', 's_cbranch', 's_branch', 'salu', 's_sleep', 's_setprio', 's_endpgm'):
            out.append(c); continue
        add = 0
        for tail in (pred_tails or [[]]):
            seq = tail + out
            dist = 0
            for p in reversed(seq):
                if dist >= 20: break
                n = need_states(p, c)
                if n > dist: add = max(add, n - dist)
                dist += p.states()
        if add:
            out.append(I('s_nop %d' % (add - 1)))
        out.append(c)
    return out

def text_of(ins):
    s = []
    for i in ins:
        if i.kind == 'label': s.append(i.text)
        else: s.append('    ' + i.text)
    return '\n'.join(s)
```

```python
import sys, math, struct
sys.path.insert(0, 'gen')
from asmlib import *

KN = "concat_heads__gqa_block_cached__gqa_block_cached__near_ridge_kernel"
OPT = dict(stamps=0, nt=1, rot=1, prof=0, pfA=1, pfB=1, thr=0, prio=1)
for a in sys.argv[2:]:
    k, v = a.split('='); OPT[k] = int(v)

SLOT = 32768
WBASE = 98304
WSZ = 20480
OBUF = 139264
LDS_BYTES = 163840
MF = 'v_mfma_f32_32x32x16_bf16'
NT = ' nt' if OPT['nt'] else ''

sWAVE = 3
sK, sV, sX, sWQ, sWO, sWS, sOUT = 4, 8, 12, 16, 20, 24, 28
sDBG = 32
sU, sCNT = 34, 35
sB, sBR, sH0, sME, sGRP = 62, 63, 64, 65, 66
sKVO, sWQO, sXO, sKC, sMS, sT, sT1, sWOB, sWSL = 67, 68, 69, 70, 71, 72, 73, 74, 75
sKSI, sKSC, sT2, sT3, sDELTA, sSLOT, sROT, sLJ, sDW, sTBL = 76, 77, 78, 79, 80, 81, 82, 83, 84, 85
sSC, sCLS, sTHR = 86, 87, 88
sST0 = 90
sROT8 = 92
sPI = 93
sPA, sPB, sPC = 94, 96, 98
sJ8, sJ2 = 36, 37
def srd(n): return 's[%d:%d]' % (n, n + 3)
def vr(a, n): return 'v[%d:%d]' % (a, a + n - 1)

class Prog:
    def __init__(self):
        self.blocks = []; self.preds = {}
    def block(self, name, preds, pend=None, label=True):
        b = Block(name)
        if pend is not None: b.pend = list(pend)
        if label: b.raw(name + ':')
        self.blocks.append(b); self.preds[name] = preds
        return b
    def tails(self, name, need=20, depth=0):
        res = []
        for p in self.preds[name]:
            pb = [b for b in self.blocks if b.name == p]
            assert pb, (name, p)
            ins = pb[0].ins
            st = sum(i.states() for i in ins)
            if st >= need or depth > 3 or not self.preds[p]:
                res.append(list(ins[-40:]))
            else:
                for t in self.tails(p, need - st, depth + 1):
                    res.append(t + list(ins))
        return res
    def finish(self):
        for b in self.blocks:
            b.ins = fix_hazards(b.ins, self.tails(b.name))
        return '\n'.join(text_of(b.ins) for b in self.blocks)

P = Prog()
def pstamp(b, reg):
    if OPT['prof']: b('s_memtime s[%d:%d]' % (reg, reg + 1))
def pwrite(b, regs):
    if OPT['prof']:
        for r_ in regs:
            b('s_mov_b32 m0, s%d' % sPI)
            b('s_nop 0')
            b('v_writelane_b32 v250, s%d, m0' % (r_,))
            b('s_add_u32 s%d, s%d, 1' % (sPI, sPI))
def pshift(b):
    if OPT['prof']:
        for i in (254, 253, 252, 251): b('v_mov_b32 v%d, v%d' % (i, i - 1))
        b('s_mov_b32 s%d, 0' % sPI)
def weave(b, mf, fill):
    assert len(mf) == len(fill), (len(mf), len(fill))
    for m, f in zip(mf, fill):
        b(m)
        for o in f:
            if callable(o): o(b)
            else: b(o)
def split(ops, counts):
    out = []; k = 0
    for c in counts:
        out.append(list(ops[k:k + c])); k += c
    assert k >= len(ops), (k, len(ops))
    return out
def spread(ops, n):
    out = []; k = 0
    for i in range(n):
        m = (len(ops) * (i + 1)) // n
        out.append(list(ops[k:m])); k = m
    return out
def zipf(*lists):
    return [sum((l[i] for l in lists), []) for i in range(len(lists[0]))]

e = P.block('L_entry', [], label=False)
e('s_cmp_ge_u32 s2, 256')
e('s_cbranch_scc1 L_end')
if OPT['stamps']:
    e('s_memrealtime s[%d:%d]' % (sST0, sST0 + 1))
e('s_load_dwordx16 s[36:51], s[0:1], 0')
e('s_load_dwordx8 s[52:59], s[0:1], 64')
e('s_load_dwordx2 s[60:61], s[0:1], 96')
e('v_lshrrev_b32 v1, 6, v0')
e('v_and_b32 v0, 63, v0')
e('v_readfirstlane_b32 s%d, v1' % sWAVE)
e('s_and_b32 s%d, s2, 7' % sT)
e('s_lshr_b32 s%d, s2, 3' % sT2)
e('s_lshr_b32 s%d, s%d, 2' % (sBR, sT))
e('s_and_b32 s%d, s%d, 3' % (sT, sT))
e('s_lshr_b32 s%d, s%d, 1' % (sB, sT2))
e('s_and_b32 s%d, s%d, 1' % (sT2, sT2))
e('s_lshl_b32 s%d, s%d, 1' % (sME, sT))
e('s_add_u32 s%d, s%d, s%d' % (sME, sME, sT2))
e('s_lshl_b32 s%d, s%d, 2' % (sH0, sME))
e('s_lshl_b32 s%d, s%d, 4' % (sGRP, sBR))
e('s_add_u32 s%d, s%d, s%d' % (sGRP, sGRP, sB))
e('s_and_b32 s%d, s%d, 1' % (sCLS, sB))
if OPT['rot']:
    e('s_mul_i32 s%d, s%d, 5' % (sT2, sT2))
    e('s_add_u32 s%d, s%d, s%d' % (sROT, sB, sT2))
    e('s_cmp_ge_u32 s%d, 10' % sROT)
    e('s_cselect_b32 s%d, 10, 0' % sT2)
    e('s_sub_u32 s%d, s%d, s%d' % (sROT, sROT, sT2))
    e('s_cmp_ge_u32 s%d, 10' % sROT)
    e('s_cselect_b32 s%d, 10, 0' % sT2)
    e('s_sub_u32 s%d, s%d, s%d' % (sROT, sROT, sT2))
    e('s_and_b32 s%d, s%d, 7' % (sROT8, sB))
else:
    e('s_mov_b32 s%d, 0' % sROT)
    e('s_mov_b32 s%d, 0' % sROT8)
e('v_lshrrev_b32 v1, 5, v0')
e('v_bfe_u32 v3, v0, 2, 2')
e('v_lshl_add_u32 v2, v1, 3, v3')
e('v_lshlrev_b32 v2, 8, v2')
e('v_bfe_u32 v4, v0, 4, 1')
e('v_lshl_add_u32 v2, v4, 5, v2')
e('v_and_b32 v4, 1, v0')
e('v_lshl_add_u32 v2, v4, 4, v2')
e('v_bfe_u32 v4, v0, 1, 1')
e('v_lshl_add_u32 v2, v4, 3, v2')
e('s_mov_b32 s%d, 0' % sU)
if OPT['prof']: e('s_mov_b32 s%d, 0' % sPI)
e('s_waitcnt lgkmcnt(0)')
e('s_cmp_eq_u32 s%d, 0' % sBR)
for (dst, a, b_, size) in ((sX, 36, 46, 16*96*640*2), (sK, 38, 48, 16*32*512*128*2), (sV, 40, 50, 16*32*512*128*2),
                           (sWQ, 42, 52, 640*4096*2), (sWO, 44, 54, 640*4096*2)):
    e('s_cselect_b64 s[%d:%d], s[%d:%d], s[%d:%d]' % (dst, dst + 1, a, a + 1, b_, b_ + 1))
    e('s_mov_b32 s%d, %d' % (dst + 2, size))
    e('s_mov_b32 s%d, 0x20000' % (dst + 3))
for (dst, a, size) in ((sOUT, 56, 16*96*1280*2), (sWS, 60, 293339136)):
    e('s_mov_b64 s[%d:%d], s[%d:%d]' % (dst, dst + 1, a, a + 1))
    e('s_mov_b32 s%d, %d' % (dst + 2, size))
    e('s_mov_b32 s%d, 0x20000' % (dst + 3))
for d in (sX, sK, sV, sWQ, sWO, sOUT, sWS):
    e('s_and_b32 s%d, s%d, 0xffff' % (d + 1, d + 1))
e('s_mov_b64 s[%d:%d], s[58:59]' % (sDBG, sDBG + 1))
e('s_cmp_ge_u32 s%d, 3' % sWAVE)
e('s_cbranch_scc1 L_gemm')

OA, QF, SA, SB, F0, F1, NM, PP, aK, aT, aX, LS, TM, aOW = 0, 64, 96, 112, 128, 160, 192, 208, 216, 224, 228, 232, 234, 236
QA = [SB, NM, QF, QF + 16]
QP = [QF + 8, QF + 24, QF, QF + 16]
def qf(ks): return QP[ks >> 1] + 4 * (ks & 1)
TBL_REG = 0x21021021
TBL_PF = 0x24302143
a = P.block('L_att', ['L_entry'])
for t in range(4):
    a('v_xor_b32 v5, %d, v3' % t)
    a('v_lshl_add_u32 v%d, v5, 6, v2' % (aT + t))
a('v_and_b32 v5, 0x13, v0')
a('v_bfe_u32 v6, v0, 2, 1')
a('v_lshl_or_b32 v5, v6, 3, v5')
a('v_bfe_u32 v6, v0, 3, 1')
a('v_lshl_or_b32 v5, v6, 2, v5')
a('v_and_b32 v6, 15, v5')
a('v_xor_b32 v6, v6, v1')
a('v_lshlrev_b32 v6, 4, v6')
a('v_lshl_add_u32 v6, v5, 8, v6')
for s in range(8):
    a('v_xor_b32 v%d, %d, v6' % (aK + s, 32 * s))
a('v_and_b32 v5, 31, v0')
a('v_bfe_u32 v6, v0, 1, 3')
a('v_xor_b32 v6, v6, v1')
a('v_lshlrev_b32 v6, 4, v6')
a('v_lshl_add_u32 v6, v5, 7, v6')
a('s_lshl_b32 s%d, s%d, 12' % (sT, sWAVE))
a('s_add_u32 s%d, s%d, 16384' % (sT, sT))
a('v_add_u32 v6, s%d, v6' % sT)
for s in range(4):
    a('v_xor_b32 v%d, %d, v6' % (aX + s, 32 * s))
a('s_lshl_b32 s%d, s%d, 10' % (sT, sWAVE))
a('s_add_u32 s%d, s%d, %d' % (sT, sT, OBUF))
a('v_lshlrev_b32 v%d, 4, v0' % aOW)
a('v_add_u32 v%d, s%d, v%d' % (aOW, sT, aOW))
SCALE = (128 ** -0.5) * math.log2(math.e)
a('s_mov_b32 s%d, 0x%08x' % (sSC, struct.unpack('<I', struct.pack('<f', SCALE))[0]))
a('s_mov_b32 s%d, 0x42000000' % sTHR)
a('s_mov_b32 s%d, 0' % sSLOT)
a('s_cmp_eq_u32 s%d, 0' % sCLS)
a('s_cselect_b32 s%d, 0x%x, 0x%x' % (sTBL, TBL_PF if OPT['pfA'] else TBL_REG, TBL_PF if OPT['pfB'] else TBL_REG) if OPT['pfA'] == OPT['pfB']
  else 's_mov_b32 s%d, 0x%x' % (sTBL, TBL_PF if OPT['pfA'] else TBL_REG))
if OPT['pfA'] != OPT['pfB']:
    a('s_cselect_b32 s%d, s%d, 0x%x' % (sTBL, sTBL, TBL_PF if OPT['pfB'] else TBL_REG))
pstamp(a, sPC)
a('s_barrier')

FQ = [F0, F0 + 16, F1, F1 + 16]
def q_reads(ks):
    o = ['ds_read_b128 %s, v%d' % (vr(SA + 4 * ks, 4), aX + ks)]
    for t in range(4):
        for jj in range(2):
            o.append('ds_read_b64_tr_b16 %s, v%d offset:%d' % (vr(FQ[ks] + 4 * t + 2 * jj, 2), aT + t, ks * 4096 + jj * 1024))
    return o
def q_mf(ks, t, first=False):
    c = '0' if first else vr(QA[t], 16)
    return '%s %s, %s, %s, %s' % (MF, vr(QA[t], 16), vr(FQ[ks] + 4 * t, 4), vr(SA + 4 * ks, 4), c)
def q_regs(ks): return set(range(FQ[ks], FQ[ks] + 16)) | set(range(SA + 4 * ks, SA + 4 * ks + 4))
def next_slot():
    return ['s_add_u32 s%d, s%d, %d' % (sT, sSLOT, SLOT),
            's_cmp_eq_u32 s%d, %d' % (sT, 3 * SLOT),
            's_cselect_b32 s%d, 0, s%d' % (sT, sT),
            's_sub_u32 s%d, s%d, s%d' % (sDELTA, sT, sSLOT),
            's_mov_b32 s%d, s%d' % (sSLOT, sT)]
def tbl_slot():
    return ['s_and_b32 s%d, s%d, 7' % (sT, sTBL),
            's_lshl_b32 s%d, s%d, 15' % (sT, sT),
            's_lshr_b32 s%d, s%d, 4' % (sTBL, sTBL),
            's_sub_u32 s%d, s%d, s%d' % (sDELTA, sT, sSLOT),
            's_mov_b32 s%d, s%d' % (sSLOT, sT)]
def adv(base, n, s=None):
    return ['v_add_u32 v%d, s%d, v%d' % (base + i, sDELTA if s is None else s, base + i) for i in range(n)]
def W(regs): return lambda b: b.waitfor(regs)
def endstep(b, loop=None):
    b('s_waitcnt lgkmcnt(0)')
    pwrite(b, [sPC]); pstamp(b, sPC)
    if loop:
        b('s_sub_u32 s%d, s%d, 1' % (sCNT, sCNT))
        b('s_cmp_lg_u32 s%d, 0' % sCNT)
    b('s_barrier')
    if loop: b('s_cbranch_scc1 %s' % loop)

def k_read(F, s, tile): return 'ds_read_b128 %s, v%d offset:%d' % (vr(F + 4 * s, 4), aK + s, tile * 8192)
def v_read(F, i, tile):
    sp, t = i >> 2, i & 3
    return ['ds_read_b64_tr_b16 %s, v%d offset:%d' % (vr(F + 4 * i + 2 * jj, 2), aT + t, 16384 + tile * 8192 + sp * 4096 + jj * 1024) for jj in range(2)]
def s_mf(F, s, X, c): return '%s %s, %s, %s, %s' % (MF, vr(X, 16), vr(F + 4 * s, 4), vr(qf(s), 4), c)
def pv_mf(F, i, first=False):
    sp, t = i >> 2, i & 3
    c = '0' if (first and sp == 0) else vr(OA + 16 * t, 16)
    return '%s %s, %s, %s, %s' % (MF, vr(OA + 16 * t, 16), vr(F + 4 * i, 4), vr(PP + 4 * sp, 4), c)
def softmax_ops(X, adds=False):
    ops = []
    for i in range(8):
        ops.append('v_exp_f32 v%d, v%d' % (X + 2 * i, X + 2 * i))
        ops.append('v_exp_f32 v%d, v%d' % (X + 2 * i + 1, X + 2 * i + 1))
        if i >= 1:
            ops.append('v_cvt_pk_bf16_f32 v%d, v%d, v%d' % (PP + i - 1, X + 2 * i - 2, X + 2 * i - 1))
            if adds: ops += add_ops(X)[2 * i - 2:2 * i]
    ops.append('v_cvt_pk_bf16_f32 v%d, v%d, v%d' % (PP + 7, X + 14, X + 15))
    if adds: ops += add_ops(X)[14:16]
    return ops
def add_ops(X):
    return ['v_add_f32 v%d, v%d, v%d' % (LS + (i & 1), LS + (i & 1), X + i) for i in range(16)]
def max_ops(X):
    ops = ['v_max3_f32 v%d, v%d, v%d, v%d' % (TM, X, X + 1, X + 2)]
    for i in range(6):
        ops.append('v_max3_f32 v%d, v%d, v%d, v%d' % (TM, TM, X + 3 + 2 * i, X + 4 + 2 * i))
    ops.append('v_max_f32 v%d, v%d, v%d' % (TM, TM, X + 15))
    return ops
CMP = 'v_cmp_lt_f32 vcc, s%d, v%d' % (sTHR, TM)
slow = []
def check(b, X, name):
    b('s_cbranch_vccnz L_slow_%s' % name)
    slow.append((name, X, b.name))
    return P.block('L_back_%s' % name, [b.name, 'L_slow_%s' % name], pend=b.pend)
def rng(a, n): return set(range(a, a + n))

def q_tail_fill():
    return None
def q_step(b, extra=None):
    mf = [q_mf(2, t) for t in range(4)] + [q_mf(3, t) for t in range(4)] + [q_mf(0, t) for t in range(4)] + [q_mf(1, t) for t in range(4)]
    r01 = q_reads(0) + q_reads(1); r23 = q_reads(2) + q_reads(3)
    fill = split(r01, [3] * 6) + split(r23, [3] * 6) + [next_slot(), adv(aX, 4), adv(aT, 4), []]
    fill[7] = fill[7] + [W(q_regs(0))]
    fill[11] = fill[11] + [W(q_regs(1))]
    if extra:
        ex = spread(extra, 16)
        fill = [f + x for f, x in zip(fill, ex)]
    weave(b, mf, fill)

q0 = P.block('L_att_q0', ['L_att'])
for o in q_reads(0) + q_reads(1): q0(o)
q0.waitfor(q_regs(0))
weave(q0, [q_mf(0, t, True) for t in range(4)] + [q_mf(1, t) for t in range(4)],
      split(q_reads(2) + q_reads(3), [6, 6, 6]) + [[W(q_regs(1))], next_slot(), adv(aX, 4), adv(aT, 4), ['s_mov_b32 s%d, 9' % sCNT]])
endstep(q0)
ql = P.block('L_att_q', ['L_att_q0', 'L_att_q', 'L_att_q1'])
q_step(ql)
endstep(ql, 'L_att_q')

a0 = P.block('L_att_a0', ['L_att_q'])
def pack(src, dst, mul):
    o = []
    for h in range(2):
        o += ['v_mul_f32 v%d, %s, v%d' % (src + 8 * h + i, mul, src + 8 * h + i) for i in range(8)]
        o += ['v_cvt_pk_bf16_f32 v%d, v%d, v%d' % (dst + 4 * h + i, src + 8 * h + 2 * i, src + 8 * h + 2 * i + 1) for i in range(4)]
    return o
sc = 's%d' % sSC
mf = []
for t in (2, 3, 0, 1): mf += [q_mf(2, t), q_mf(3, t)]
ts = tbl_slot()
kr = [k_read(F0, s, 0) for s in (4, 5, 6, 7, 0, 1, 2, 3)]
ak = adv(aK, 8, sSLOT); ak = ak[4:] + ak[:4]
pk2 = pack(QA[2], QP[2], sc)
fill = [ts, ak[:4] + kr[:2], ak[4:] + kr[2:4], kr[4:] + ['v_mov_b32 v%d, 0' % LS, 'v_mov_b32 v%d, 0' % (LS + 1)]] + split(pk2, [6, 6, 6, 6])
fill[7] = fill[7] + adv(aT, 4)
weave(a0, mf, fill)
order = (4, 5, 6, 7, 0, 1, 2, 3)
rest = pack(QA[3], QP[3], sc) + pack(QA[0], QP[0], sc) + pack(QA[1], QP[1], sc)
vr0 = sum((v_read(F1, i, 0) for i in range(8)), [])
mf = [s_mf(F0, s, SA, '0' if n == 0 else vr(SA, 16)) for n, s in enumerate(order)]
pieces = split(rest, [6, 6, 12, 12, 12, 12, 12, 0])
fill = [[k_read(F0, order[n], 1)] + vr0[2 * n:2 * n + 2] + pieces[n] for n in range(8)]
a0.waitfor(rng(F0, 32))
weave(a0, mf, fill)
for o in max_ops(SA): a0(o)
a0('v_mov_b32 v%d, v%d' % (TM + 1, TM))
a0('v_permlane32_swap_b32 v%d, v%d' % (TM, TM + 1))
a0('v_max_f32 v%d, v%d, v%d' % (TM, TM, TM + 1))
for i in range(16):
    a0('v_mul_f32 v%d, -1.0, v%d' % (NM + i, TM))
subs = ['v_sub_f32 v%d, v%d, v%d' % (SA + i, SA + i, TM) for i in range(16)]
for o in subs[:4]: a0(o)
sm = softmax_ops(SA)
fill = [subs[4 + 2 * n:6 + 2 * n] + sm[3 * n:3 * n + 3] for n in range(8)]
a0.waitfor(rng(F0, 32))
weave(a0, [s_mf(F0, s, SB, vr(NM, 16) if s == 0 else vr(SB, 16)) for s in range(8)], fill)
def phase_pv0(b, Fa, Fb, first=False, ak=False, cnt=None):
    b.waitfor(rng(Fb, 32))
    vr1 = sum((v_read(Fa, i, 1) for i in range(8)), [])
    ad = add_ops(SA); mx = max_ops(SB)
    fill = zipf(split(vr1, [4, 4, 4, 4, 0, 0, 0, 0]), split(ad, [2, 2, 1, 1, 2, 3, 1, 4]), split(mx, [0, 0, 1, 1, 3, 3, 0, 0]))
    fill[6] = [CMP] + fill[6]
    if ak:
        fill[4] = fill[4] + tbl_slot(); fill[5] = fill[5] + adv(aK, 8)
    fill[6] = fill[6] + adv(aT, 4)
    if cnt: fill[7] = fill[7] + [cnt]
    weave(b, [pv_mf(Fb, i, first) for i in range(8)], fill)
phase_pv0(a0, F0, F1, first=True, ak=True, cnt='s_mov_b32 s%d, 4' % sCNT)
a0b = check(a0, SB, 'a0')
endstep(a0b)

def a_step(b, Fa, Fb, nm):
    for s in range(8): b(k_read(Fa, s, 0))
    sm = softmax_ops(SB, adds=True)
    HEAD = 12
    for o in sm[:HEAD]: b(o)
    fill = spread(sm[HEAD:], 8)
    fill[3] = fill[3] + [W(rng(Fa + 16, 16))]
    b.waitfor(rng(Fa, 16))
    weave(b, [s_mf(Fa, s, SA, vr(NM, 16) if s == 0 else vr(SA, 16)) for s in range(8)], fill)
    kr = [k_read(Fa, s, 1) for s in range(8)]
    fill = zipf(split(kr, [2, 2, 2, 2, 0, 0, 0, 0]), [v_read(Fb, i, 0) for i in range(8)],
                split(max_ops(SA), [0, 2, 2, 2, 2, 0, 0, 0]))
    ts = tbl_slot(); ak = adv(aK, 8)
    fill[0] = fill[0] + ts[:2]; fill[4] = fill[4] + ts[2:4]; fill[5] = fill[5] + [CMP, ts[4]] + ak[:2]
    fill[6] = fill[6] + ak[2:6]; fill[7] = fill[7] + ak[6:]
    weave(b, [pv_mf(Fb, i) for i in range(8)], fill)
    b = check(b, SA, nm + '1')
    b.waitfor(rng(Fa, 32))
    weave(b, [s_mf(Fa, s, SB, vr(NM, 16) if s == 0 else vr(SB, 16)) for s in range(8)], spread(softmax_ops(SA), 8))
    phase_pv0(b, Fa, Fb)
    return check(b, SB, nm + '2')
ao = P.block('L_att_ao', ['L_back_a0', 'L_back_ae2'])
ao2 = a_step(ao, F1, F0, 'ao')
ao2('s_waitcnt lgkmcnt(0)')
pwrite(ao2, [sPC]); pstamp(ao2, sPC)
ao2('s_sub_u32 s%d, s%d, 1' % (sCNT, sCNT))
ao2('s_cmp_eq_u32 s%d, 0' % sCNT)
ao2('s_barrier')
ao2('s_cbranch_scc1 L_att_drain')
ae = P.block('L_att_ae', ['L_back_ao2'])
ae2 = a_step(ae, F0, F1, 'ae')
endstep(ae2)
ae2('s_branch L_att_ao')

def lsum(b):
    b('v_add_f32 v%d, v%d, v%d' % (TM, LS, LS + 1))
    b('v_mov_b32 v%d, v%d' % (TM + 1, TM))
    b('v_permlane32_swap_b32 v%d, v%d' % (TM, TM + 1))
    b('v_add_f32 v%d, v%d, v%d' % (TM, TM, TM + 1))
    b('v_rcp_f32 v%d, v%d' % (TM, TM))
def onorm():
    o = []
    for t in range(4):
        pk = pack(OA + 16 * t, OA + 16 * t, 'v%d' % TM)
        o += pk[:12] + ['ds_write_b128 v%d, %s offset:%d' % (aOW, vr(OA + 16 * t, 4), (2 * t) * 3072)]
        o += pk[12:] + ['ds_write_b128 v%d, %s offset:%d' % (aOW, vr(OA + 16 * t + 4, 4), (2 * t + 1) * 3072)]
    return o
d = P.block('L_att_drain', ['L_back_ao2'])
pshift(d)
d('s_add_u32 s%d, s%d, 1' % (sU, sU))
d('s_cmp_eq_u32 s%d, 4' % sU)
d('s_cbranch_scc1 L_att_fin')
qb = P.block('L_att_qb', ['L_att_drain'])
for i in range(4): qb('v_subrev_u32 v%d, %d, v%d' % (aX + i, SLOT, aX + i))
r01 = q_reads(0) + q_reads(1)
sm = softmax_ops(SB)
for o in r01[:9]: qb(o)
for o in sm[:14]: qb(o)
fill = zipf(split(sm[14:], [3, 3, 3, 1, 0, 0, 0, 0]), split(r01[9:], [1, 1, 1, 2, 2, 2, 0, 0]), split(add_ops(SB), [0, 0, 0, 2, 3, 3, 4, 4]))
weave(qb, [pv_mf(F1, i) for i in range(8)], fill)
lsum(qb)
on = onorm()
r23 = q_reads(2) + q_reads(3)
qb.waitfor(q_regs(0))
NQB = 26
fill = zipf(split(r23, [4, 4, 4, 3, 3, 0, 0, 0]), split(on[:NQB], [0, 2, 2, 3, 3, 6, 4, 6]))
fill[3] = fill[3] + [W(q_regs(1))]
fill[5] = fill[5] + next_slot()
fill[6] = fill[6] + adv(aX, 4)
fill[7] = fill[7] + adv(aT, 4) + ['s_mov_b32 s%d, 0x%x' % (sTBL, TBL_REG), 's_mov_b32 s%d, 8' % sCNT]
weave(qb, [q_mf(0, t, True) for t in range(4)] + [q_mf(1, t) for t in range(4)], fill)
endstep(qb)
q1 = P.block('L_att_q1', ['L_att_qb'])
q_step(q1, extra=on[NQB:])
endstep(q1)
q1('s_branch L_att_q')

fi = P.block('L_att_fin', ['L_att_drain'])
sm = softmax_ops(SB)
for o in sm[:14]: fi(o)
fill = zipf(split(sm[14:], [3, 3, 3, 1, 0, 0, 0, 0]), split(add_ops(SB), [0, 0, 0, 2, 3, 3, 4, 4]))
weave(fi, [pv_mf(F1, i) for i in range(8)], fill)
lsum(fi)
for o in onorm(): fi(o)
fi('s_waitcnt lgkmcnt(0)')
pwrite(fi, [sPC]); pstamp(fi, sPC)
fi('s_barrier')
fi('s_branch L_pub')

AF, BF0, BF1, aW, aWl, aO, aOB, vK, vV, vWQ, vX, vWO = 192, 208, 220, 232, 236, 240, 241, 242, 246, 247, 248, 249
g = P.block('L_gemm', ['L_entry'])
if OPT['prio']: g('s_setprio %d' % OPT['prio'])
g('s_sub_u32 s%d, s%d, 3' % (sT3, sWAVE))
g('s_lshr_b32 s%d, s%d, 2' % (sLJ, sT3))
g('s_lshl_b32 s%d, s%d, 13' % (sJ8, sLJ))
g('s_lshl_b32 s%d, s%d, 11' % (sJ2, sLJ))
g('v_lshrrev_b32 v4, 4, v0')
g('v_and_b32 v5, 15, v0')
g('v_lshlrev_b32 v6, 2, v4')
g('v_xor_b32 v6, v6, v5')
g('v_lshlrev_b32 v6, 4, v6')
g('v_lshl_add_u32 v%d, v4, 13, v6' % vWQ)
g('v_lshl_add_u32 v%d, v4, 8, v6' % vV)
g('v_mul_u32_u24 v7, 1280, v4')
g('v_add_u32 v%d, v7, v6' % vWO)
g('v_and_b32 v6, 7, v0')
g('v_xor_b32 v6, v6, v4')
g('s_lshl_b32 s%d, s%d, 2' % (sT, sLJ))
g('v_xor_b32 v6, s%d, v6' % sT)
g('v_lshlrev_b32 v6, 4, v6')
g('v_lshrrev_b32 v7, 3, v0')
g('v_mul_u32_u24 v7, 1280, v7')
g('v_add_u32 v%d, v7, v6' % vX)
g('v_xor_b32 v6, v5, v4')
g('v_lshlrev_b32 v6, 4, v6')
g('v_lshl_add_u32 v6, v4, 8, v6')
for e_ in range(4):
    g('v_xor_b32 v%d, %d, v6' % (vK + e_, 64 * e_))
g('s_mul_i32 s%d, s%d, 122880' % (sXO, sB))
g('s_mul_i32 s%d, s%d, 10240' % (sT, sLJ))
g('s_add_u32 s%d, s%d, s%d' % (sXO, sXO, sT))
g('s_mov_b32 s%d, 0' % sMS)

def unit_bases(uplus):
    o = ['s_add_u32 s%d, s%d, s%d' % (sT, sH0, sU)]
    if uplus: o.append('s_add_u32 s%d, s%d, %d' % (sT, sT, uplus))
    o += ['s_lshl_b32 s%d, s%d, 8' % (sWQO, sT),
          's_lshl_b32 s%d, s%d, 18' % (sT, sLJ),
          's_add_u32 s%d, s%d, s%d' % (sWQO, sWQO, sT),
          's_mov_b32 s%d, s%d' % (sKC, sROT)]
    return o
def kv_base():
    return ['s_add_u32 s%d, s%d, s%d' % (sT, sH0, sU),
            's_lshl_b32 s%d, s%d, 5' % (sT2, sB),
            's_add_u32 s%d, s%d, s%d' % (sT, sT, sT2),
            's_lshl_b32 s%d, s%d, 17' % (sKVO, sT),
            's_add_u32 s%d, s%d, s%d' % (sKVO, sKVO, sJ8)]
def wo_base(uplus):
    o = ['s_add_u32 s%d, s%d, s%d' % (sT, sH0, sU)]
    if uplus: o.append('s_add_u32 s%d, s%d, %d' % (sT, sT, uplus))
    o += ['s_mul_i32 s%d, s%d, %d' % (sWOB, sT, 128 * 1280),
          's_mov_b32 s%d, s%d' % (sKSI, sROT8)]
    return o
def adv_ms():
    return ['s_add_u32 s%d, s%d, %d' % (sMS, sMS, SLOT),
            's_cmp_eq_u32 s%d, %d' % (sMS, 3 * SLOT),
            's_cselect_b32 s%d, 0, s%d' % (sMS, sMS)]
def issue_Q():
    o = ['s_add_u32 m0, s%d, s%d' % (sMS, sJ8),
         's_lshl_b32 s%d, s%d, 19' % (sT, sKC),
         's_add_u32 s%d, s%d, s%d' % (sT, sT, sWQO)]
    for m in range(8):
        if m == 4:
            o += ['s_add_u32 m0, m0, 4096', 's_add_u32 s%d, s%d, %d' % (sT, sT, 32768 + 3072)]
        elif m: o.append('s_add_u32 s%d, s%d, %d' % (sT, sT, 32768 - 1024))
        o.append('buffer_load_dwordx4 v%d, %s, s%d offen offset:%d lds' % (vWQ, srd(sWQ), sT, (m & 3) * 1024))
    o += ['s_lshr_b32 s%d, s%d, 1' % (sT2, sJ2),
          's_add_u32 s%d, s%d, 16384' % (sT2, sT2),
          's_add_u32 m0, s%d, s%d' % (sMS, sT2),
          's_lshl_b32 s%d, s%d, 7' % (sT, sKC),
          's_add_u32 s%d, s%d, s%d' % (sT, sT, sXO)]
    for m in range(6):
        if m & 1: o.append('s_add_u32 s%d, s%d, %d' % (sT, sT, 20480 - 2048))
        elif m: o += ['s_add_u32 m0, m0, 4096', 's_add_u32 s%d, s%d, %d' % (sT, sT, 20480 + 2048)]
        o.append('buffer_load_dwordx4 v%d, %s, s%d offen offset:%d lds' % (vX, srd(sX), sT, (m & 1) * 2048))
    o += ['s_add_u32 s%d, s%d, 1' % (sKC, sKC),
          's_cmp_eq_u32 s%d, 10' % sKC,
          's_cselect_b32 s%d, 0, s%d' % (sKC, sKC)] + adv_ms()
    return o
def issue_A(slot=None, thr=None):
    o = []
    for half in range(2):
        if thr: o.append(thr)
        for gq in range(2):
            off = 16384 * half + 4096 * gq
            if slot is None:
                if off: o.append('s_add_u32 s%d, s%d, %d' % (sT2, sJ8, off))
                o.append('s_add_u32 m0, s%d, s%d' % (sMS, sT2 if off else sJ8))
            else:
                o.append('s_add_u32 m0, s%d, %d' % (sJ8, slot * SLOT + off))
            if gq: o.append('s_add_u32 s%d, s%d, 4096' % (sT, sKVO))
            for e_ in range(4):
                o.append('buffer_load_dwordx4 v%d, %s, s%d offen offset:%d%s lds' % (vV if half else vK + e_, srd(sV if half else sK), sT if gq else sKVO, e_ * 1024, NT))
    o.append('s_add_u32 s%d, s%d, 16384' % (sKVO, sKVO))
    if slot is None: o += adv_ms()
    return o
def issue_W(base=None):
    o = ['s_mul_i32 s%d, s%d, %d' % (sT, sKSI, 16 * 1280),
         's_add_u32 s%d, s%d, s%d' % (sT, sT, sWOB),
         's_mul_i32 s%d, s%d, 5' % (sT2, sJ2),
         's_add_u32 s%d, s%d, s%d' % (sT, sT, sT2)]
    if base is None: o.append('s_add_u32 m0, s%d, s%d' % (sWSL, sJ2))
    else: o.append('s_add_u32 m0, s%d, %d' % (sJ2, base))
    for v in range(5):
        if v: o += ['s_add_u32 m0, m0, 4096', 's_sub_u32 s%d, s%d, %d' % (sT, sT, 4096 - 256)]
        o.append('buffer_load_dwordx4 v%d, %s, s%d offen lds' % (vWO, srd(sWO), sT))
        o.append('s_add_u32 s%d, s%d, 4096' % (sT, sT))
        o.append('buffer_load_dwordx4 v%d, %s, s%d offen offset:1024 lds' % (vWO, srd(sWO), sT))
    if base is None:
        o.append('s_sub_u32 s%d, %d, s%d' % (sWSL, 2 * WBASE + WSZ, sWSL))
    o += ['s_add_u32 s%d, s%d, 1' % (sKSI, sKSI), 's_and_b32 s%d, s%d, 7' % (sKSI, sKSI)]
    return o
def issue_Wp(base):
    o = ['s_mul_i32 s%d, s%d, %d' % (sT, sKSI, 16 * 1280),
         's_add_u32 s%d, s%d, s%d' % (sT, sT, sWOB),
         's_lshl_b32 s%d, s%d, 8' % (sT2, sT3),
         's_add_u32 s%d, s%d, s%d' % (sT, sT, sT2),
         's_lshl_b32 s%d, s%d, 12' % (sT2, sT3),
         's_add_u32 m0, s%d, %d' % (sT2, base)]
    for m in range(4):
        if m: o.append('s_add_u32 s%d, s%d, 4096' % (sT, sT))
        o.append('buffer_load_dwordx4 v%d, %s, s%d offen offset:%d lds' % (vWO, srd(sWO), sT, m * 1024))
    o += ['s_add_u32 s%d, s%d, 1' % (sKSI, sKSI), 's_and_b32 s%d, s%d, 7' % (sKSI, sKSI)]
    return o
def o_addr():
    return ['s_mul_i32 s%d, s%d, 3072' % (sT1, sKSC),
            'v_add_u32 v%d, s%d, v%d' % (aO, sT1, aOB),
            's_add_u32 s%d, s%d, 1' % (sKSC, sKSC),
            's_and_b32 s%d, s%d, 7' % (sKSC, sKSC)]
def o_reads(BF): return ['ds_read_b128 %s, v%d offset:%d' % (vr(BF + 4 * qt, 4), aO, qt * 1024) for qt in range(3)]
def w_read(t, base, off): return ['ds_read_b64_tr_b16 %s, v%d offset:%d' % (vr(AF + 4 * t + 2 * jj, 2), base + t, off + jj * 1024) for jj in range(2)]
def g_reads():
    o = o_addr() + o_reads(BF0)
    for t in range(4): o += w_read(t, aW, 0)
    o += ['v_add_u32 v%d, s%d, v%d' % (aW + t, sDW, aW + t) for t in range(4)]
    o.append('s_sub_u32 s%d, 0, s%d' % (sDW, sDW))
    return o
def g_mf(BF):
    o = []
    for t in range(4):
        for qt in range(3):
            acc = vr((qt * 4 + t) * 16, 16)
            o.append('%s %s, %s, %s, %s' % (MF, acc, vr(AF + 4 * t, 4), vr(BF + 4 * qt, 4), acc))
    return o
def emit(b, ops):
    for o in ops:
        if callable(o): o(b)
        else: b(o)
def dma_groups(ops, n, per):
    out = [[] for _ in range(n)]; k = 0; c = 0
    for o in ops:
        out[k].append(o)
        if (not callable(o)) and o.startswith('buffer_load'):
            c += 1
            if c == per and k < n - 1: k += 1; c = 0
    return out
def gend(b, vm=None, loop=None, lg=True, tail=None):
    if lg or OPT['prof']: b('s_waitcnt lgkmcnt(0)')
    pstamp(b, sPB)
    if vm is not None: b('s_waitcnt vmcnt(%d)' % vm)
    if OPT['prof']:
        b('s_waitcnt lgkmcnt(0)')
        pwrite(b, [sPC, sPA, sPB]); pstamp(b, sPC)
    if tail: emit(b, tail)
    if loop:
        b('s_sub_u32 s%d, s%d, 1' % (sCNT, sCNT))
        b('s_cmp_lg_u32 s%d, 0' % sCNT)
    b('s_barrier')
    if loop: b('s_cbranch_scc1 %s' % loop)

def gemm_regs(b):
    b('s_lshl_b32 s%d, s%d, 12' % (sT, sT3))
    for t in range(4):
        b('v_xor_b32 v5, %d, v3' % t)
        b('v_lshl_add_u32 v5, v5, 6, v2')
        b('v_add_u32 v%d, s%d, v5' % (aWl + t, sT))
        b('v_add_u32 v%d, %d, v%d' % (aW + t, WBASE, aWl + t))
    b('v_lshlrev_b32 v%d, 4, v0' % aOB)
    b('v_add_u32 v%d, %d, v%d' % (aOB, OBUF, aOB))
    b('s_mov_b32 s%d, %d' % (sDW, WSZ))
    b('s_mov_b32 s%d, %d' % (sWSL, WBASE))
    for i in range(192): b('v_mov_b32 v%d, 0' % i)

g('s_and_b32 s%d, s%d, 3' % (sT, sT3))
g('s_cmp_eq_u32 s%d, 0' % sT)
g('s_cbranch_scc1 L_ld')
pg = P.block('L_pg', ['L_gemm'])
gemm_regs(pg)
pstamp(pg, sPC)
pg('s_barrier')
pg('s_mov_b32 s%d, 18' % sCNT)
pw = P.block('L_pg_wait', ['L_pg', 'L_pg_wait', 'L_pg_17'])
pstamp(pw, sPA)
gend(pw, loop='L_pg_wait', lg=False)
pw('s_cmp_lg_u32 s%d, 0' % sU)
pw('s_cbranch_scc1 L_pg_9')
pu = P.block('L_pg_u0', ['L_pg_wait'])
pshift(pu)
pu('s_mov_b32 s%d, 1' % sU)
pu('s_mov_b32 s%d, 9' % sCNT)
pu('s_branch L_pg_wait')
p9 = P.block('L_pg_9', ['L_pg_wait'])
p9('s_mov_b32 s%d, s%d' % (sKSC, sROT8))
emit(p9, g_reads())
pstamp(p9, sPA)
gend(p9, tail=['s_mov_b32 s%d, 7' % sCNT])
pa = P.block('L_pg_a', ['L_pg_9', 'L_pg_a'])
emit(pa, g_mf(BF0))
pstamp(pa, sPA)
emit(pa, g_reads())
gend(pa, loop='L_pg_a')
p17 = P.block('L_pg_17', ['L_pg_a'])
emit(p17, g_mf(BF0))
pstamp(p17, sPA)
gend(p17, lg=False, tail=[pshift, 's_mov_b32 s%d, 9' % sCNT, 's_add_u32 s%d, s%d, 1' % (sU, sU), 's_cmp_lt_u32 s%d, 4' % sU])
p17('s_cbranch_scc1 L_pg_wait')
pe = P.block('L_pg_e', ['L_pg_17'])
emit(pe, wo_base(-1))
pe('s_add_u32 s%d, s%d, 6' % (sKSI, sKSI))
pe('s_and_b32 s%d, s%d, 7' % (sKSI, sKSI))
pe('s_branch L_g_ep')

ld = P.block('L_ld', ['L_gemm'])
emit(ld, unit_bases(0))
emit(ld, issue_Q()); emit(ld, issue_Q())
emit(ld, kv_base())
pfs = (OPT['pfA'], OPT['pfB'])
if pfs == (1, 1):
    emit(ld, issue_A(3)); emit(ld, issue_A(4))
    gemm_regs(ld)
    ld('s_waitcnt vmcnt(46)')
    cur = 'L_ld'; b = ld
elif pfs == (0, 0):
    gemm_regs(ld)
    ld('s_waitcnt vmcnt(14)')
    cur = 'L_ld'; b = ld
else:
    ld('s_cmp_eq_u32 s%d, %d' % (sCLS, 1 if pfs[0] else 0))
    ld('s_cbranch_scc1 L_ld_np')
    l1 = P.block('L_ld_pf', ['L_ld'])
    emit(l1, issue_A(3)); emit(l1, issue_A(4))
    l1('s_waitcnt vmcnt(46)')
    l1('s_branch L_ld_j')
    l2 = P.block('L_ld_np', ['L_ld'])
    l2('s_waitcnt vmcnt(14)')
    b = P.block('L_ld_j', ['L_ld_pf', 'L_ld_np']); cur = 'L_ld_j'
    gemm_regs(b)
pstamp(b, sPC)
b('s_barrier')
lu = P.block('L_ld_unit', [cur, 'L_ld_17n'])
lu('s_mov_b32 s%d, 8' % sCNT)
lq = P.block('L_ld_q', ['L_ld_unit', 'L_ld_q'])
emit(lq, issue_Q())
pstamp(lq, sPA)
gend(lq, vm=14, loop='L_ld_q', lg=False)
lq('s_cmp_lg_u32 s%d, 0' % sU)
lq('s_cbranch_scc1 L_ld_8')
def thr_wait(nm):
    cnt = [0]
    def f(b):
        cnt[0] += 1
        lab = 'L_thr_%s_%d' % (nm, cnt[0])
        b('s_cmp_eq_u32 s%d, 0' % sCLS)
        b('s_cbranch_scc1 %s' % lab)
        b('s_waitcnt vmcnt(0)')
        b.raw(lab + ':')
    return f
def unit0(name, preds, pf):
    b = P.block(name, preds)
    th = thr_wait(name) if OPT['thr'] else None
    if pf:
        plan = [(1, 16), (2, 32), (0, 48), (3, 48), (4, 48), (None, 32), (2, 32), (None, 16)]
    else:
        plan = [(s, 16) for s in (1, 2, 0, 1, 2, 0, 1, 2)]
    for (slot, vm) in plan:
        if slot is not None: emit(b, issue_A(slot, th))
        pstamp(b, sPA)
        gend(b, vm=vm, lg=False)
    b('s_mov_b32 s%d, 0' % sMS)
    b('s_branch L_ld_16n')
    return b
if pfs[0] == pfs[1]:
    unit0('L_ld_u0', ['L_ld_q'], pfs[0])
    u0names = ['L_ld_u0']
else:
    x = P.block('L_ld_u0s', ['L_ld_q'])
    x('s_cmp_eq_u32 s%d, 1' % sCLS)
    x('s_cbranch_scc1 L_ld_u0b')
    unit0('L_ld_u0a', ['L_ld_u0s'], pfs[0])
    unit0('L_ld_u0b', ['L_ld_u0s'], pfs[1])
    u0names = ['L_ld_u0a', 'L_ld_u0b']
l8 = P.block('L_ld_8', ['L_ld_q'])
emit(l8, wo_base(-1)); emit(l8, issue_W())
emit(l8, kv_base()); emit(l8, issue_A())
pstamp(l8, sPA)
gend(l8, vm=16, lg=False)
l8('s_mov_b32 s%d, s%d' % (sKSC, sROT8))
emit(l8, g_reads())
emit(l8, issue_W()); emit(l8, issue_A())
pstamp(l8, sPA)
gend(l8, vm=16, tail=['s_mov_b32 s%d, 6' % sCNT])
la = P.block('L_ld_a', ['L_ld_8', 'L_ld_a'])
gr = dma_groups(issue_W() + issue_A(), 13, 2)
weave(la, g_mf(BF0), gr[:12])
emit(la, g_reads())
emit(la, gr[12])
pstamp(la, sPA)
gend(la, vm=16, loop='L_ld_a')
l16 = P.block('L_ld_16', ['L_ld_a'])
emit(l16, g_mf(BF0))
emit(l16, g_reads())
l16('s_cmp_eq_u32 s%d, 3' % sU)
l16('s_cbranch_scc1 L_ld_16e')
l16n = P.block('L_ld_16n', ['L_ld_16'] + u0names, pend=l16.pend)
emit(l16n, unit_bases(1)); emit(l16n, issue_Q())
pstamp(l16n, sPA)
gend(l16n, vm=14)
l16n('s_cmp_eq_u32 s%d, 0' % sU)
l16n('s_cbranch_scc1 L_ld_17n')
l17 = P.block('L_ld_17', ['L_ld_16n'])
emit(l17, g_mf(BF0))
l17n = P.block('L_ld_17n', ['L_ld_17', 'L_ld_16n'])
emit(l17n, issue_Q())
pstamp(l17n, sPA)
gend(l17n, vm=14, lg=False, tail=[pshift, 's_add_u32 s%d, s%d, 1' % (sU, sU)])
l17n('s_branch L_ld_unit')
WP = [0, 20480, 40960, WBASE, WBASE + WSZ, 61440, 0, 20480]
le = P.block('L_ld_16e', ['L_ld_16'], pend=l16.pend)
emit(le, wo_base(0)); emit(le, issue_W(WP[0]))
pstamp(le, sPA)
gend(le, vm=10)
gr = dma_groups(issue_W(WP[1]) + issue_W(WP[2]) + issue_W(WP[3]) + issue_W(WP[4]), 13, 2)
weave(le, g_mf(BF0), gr[:12])
emit(le, gr[12])
pstamp(le, sPA)
gend(le, vm=40, lg=False, tail=[pshift])
emit(le, issue_W(WP[5]))
ep = P.block('L_g_ep', ['L_ld_16e', 'L_pg_e'])
for t in range(4): emit(ep, w_read(t, aWl, WP[0]))
ep('s_mov_b32 s%d, s%d' % (sKSC, sROT8))
emit(ep, o_addr())
ep('s_waitcnt vmcnt(0) lgkmcnt(0)')
if OPT['prof']:
    pwrite(ep, [sPC]); pstamp(ep, sPC)
ep('s_barrier')
emit(ep, o_reads(BF0))
emit(ep, issue_Wp(WP[6]))
BFs = [BF0, BF1]
for p in range(8):
    mf = g_mf(BFs[p & 1])
    fill = [[] for _ in range(12)]
    if p < 7:
        fill[0] = o_addr() + o_reads(BFs[(p + 1) & 1])
        base, off = (aW, WP[p + 1] - WBASE) if WP[p + 1] >= WBASE else (aWl, WP[p + 1])
        if p == 5: fill[1] = ['s_waitcnt vmcnt(4)']
        if p == 6: fill[1] = ['s_waitcnt vmcnt(0)']
        for t in range(4): fill[3 * t + 2] = w_read(t, base, off)
    if p == 1:
        fill[10] = fill[10] + [lambda b: None]
    ep.waitfor(rng(BFs[p & 1], 12) | rng(AF, 4))
    if p == 1:
        ep.waitfor(rng(AF, 16))
        wp = dma_groups(issue_Wp(WP[7]), 4, 1)
        for i in range(4): fill[3 * i + 1] = fill[3 * i + 1] + wp[i]
    weave(ep, mf, fill)
pstamp(ep, sPA)
ep('s_lshl_b32 s%d, s%d, 3' % (sT, sGRP))
ep('s_add_u32 s%d, s%d, s%d' % (sT, sT, sME))
ep('s_mul_i32 s%d, s%d, 122880' % (sT, sT))
ep('s_mul_i32 s%d, s%d, 24576' % (sT2, sT3))
ep('s_add_u32 s%d, s%d, s%d' % (sT, sT, sT2))
ep('v_subrev_u32 v%d, %d, v%d' % (aO, OBUF, aOB))
for t in range(4):
    for qt in range(3):
        tile = qt * 4 + t
        base = tile * 16
        for i in range(8):
            ep('v_cvt_pk_bf16_f32 v%d, v%d, v%d' % (base + i, base + 2 * i, base + 2 * i + 1))
        ep('s_add_u32 s%d, s%d, %d' % (sT2, sT, tile * 2048))
        for h in range(2):
            ep('buffer_store_dwordx4 %s, v%d, %s, s%d offen offset:%d sc1' % (vr(base + 4 * h, 4), aO, srd(sWS), sT2, h * 1024))
ep('s_waitcnt vmcnt(0)')

pb = P.block('L_pub', ['L_g_ep', 'L_att_fin'])
if OPT['prof']:
    pb('s_waitcnt lgkmcnt(0)')
    pwrite(pb, [sPC, sPA]); pstamp(pb, sPC)
pb('s_barrier')
pb('s_cmp_lg_u32 s%d, 0' % sWAVE)
pb('s_cbranch_scc1 L_red')
pl0 = P.block('L_poll0', ['L_pub'])
pl0('s_mov_b64 exec, 1')
pl0('s_lshl_b32 s%d, s%d, 3' % (sT, sGRP))
pl0('v_mov_b32 v200, s%d' % sT)
pl0('v_mov_b32 v201, 1')
pl0('global_atomic_add v200, v201, s[%d:%d] sc1' % (sDBG, sDBG + 1))
pl0('s_mov_b32 s%d, 0x100000' % sCNT)
pl = P.block('L_poll', ['L_poll0', 'L_poll'])
pl('global_load_dword v202, v200, s[%d:%d] sc1' % (sDBG, sDBG + 1))
pl('s_waitcnt vmcnt(0)')
pl('v_readfirstlane_b32 s%d, v202' % sT)
pl('s_sub_u32 s%d, s%d, 1' % (sCNT, sCNT))
pl('s_cmp_eq_u32 s%d, 0' % sCNT)
pl('s_cbranch_scc1 L_polld')
pl('s_cmp_lt_u32 s%d, 8' % sT)
pl('s_cbranch_scc1 L_poll')
pd = P.block('L_polld', ['L_poll'])
pd('s_mov_b64 exec, -1')
r = P.block('L_red', ['L_polld', 'L_pub'])
if OPT['prof']:
    r('s_waitcnt lgkmcnt(0)')
    pwrite(r, [sPC]); pstamp(r, sPC)
r('s_barrier')
r('v_mbcnt_lo_u32_b32 v200, -1, 0')
r('v_mbcnt_hi_u32_b32 v200, -1, v200')
r('v_lshlrev_b32 v201, 4, v200')
r('s_mul_i32 s%d, s%d, 15' % (sKC, sME))
r('s_lshl_b32 s%d, s%d, 1' % (sT, sWAVE))
r('s_add_u32 s%d, s%d, s%d' % (sKC, sKC, sT))
r('s_mul_i32 s%d, s%d, %d' % (sT, sGRP, 8 * 122880))
r('s_lshl_b32 s%d, s%d, 10' % (sT2, sKC))
r('s_add_u32 s%d, s%d, s%d' % (sT, sT, sT2))
for src in range(8):
    if src: r('s_add_u32 s%d, s%d, 122880' % (sT, sT))
    for p in range(2):
        r('buffer_load_dwordx4 %s, v201, %s, s%d offen offset:%d sc1' % (vr(64 * p + 4 * src, 4), srd(sWS), sT, p * 1024))
r('v_and_b32 v202, 31, v200')
r('v_mul_u32_u24 v202, 2560, v202')
r('v_lshrrev_b32 v203, 5, v200')
r('v_lshl_add_u32 v202, v203, 4, v202')
def out_off(b, dst, chunk):
    b('s_mul_i32 s%d, s%d, 43' % (sT, chunk))
    b('s_lshr_b32 s%d, s%d, 10' % (sT, sT))
    b('s_mul_i32 s%d, s%d, 24' % (sT2, sT))
    b('s_sub_u32 s%d, s%d, s%d' % (sT2, chunk, sT2))
    b('s_lshl_b32 s%d, s%d, 8' % (dst, sT))
    b('s_and_b32 s%d, s%d, 7' % (sT, sT2))
    b('s_lshl_b32 s%d, s%d, 5' % (sT, sT))
    b('s_add_u32 s%d, s%d, s%d' % (dst, dst, sT))
    b('s_lshr_b32 s%d, s%d, 3' % (sT2, sT2))
    b('s_mul_i32 s%d, s%d, %d' % (sT2, sT2, 32 * 2560))
    b('s_add_u32 s%d, s%d, s%d' % (dst, dst, sT2))
    b('s_mul_i32 s%d, s%d, %d' % (sT2, sB, 96 * 2560))
    b('s_add_u32 s%d, s%d, s%d' % (dst, dst, sT2))
    b('s_mul_i32 s%d, s%d, 1280' % (sT2, sBR))
    b('s_add_u32 s%d, s%d, s%d' % (dst, dst, sT2))
out_off(r, sKSI, sKC)
r('s_add_u32 s%d, s%d, 1' % (sKC, sKC))
out_off(r, sKSC, sKC)
r('s_mov_b32 s%d, 0xffff0000' % sT)
def reduce_chunk(b, p):
    acc = 140 + 8 * p
    for src in range(8):
        if p == 0: b('s_waitcnt vmcnt(%d)' % (15 - 2 * src))
        elif src == 0: b('s_waitcnt vmcnt(1)')
        for i in range(4):
            x = 64 * p + 4 * src + i
            if src == 0:
                b('v_lshlrev_b32 v%d, 16, v%d' % (acc + 2 * i, x))
                b('v_and_b32 v%d, s%d, v%d' % (acc + 2 * i + 1, sT, x))
            else:
                b('v_lshlrev_b32 v160, 16, v%d' % x)
                b('v_and_b32 v161, s%d, v%d' % (sT, x))
                b('v_add_f32 v%d, v%d, v160' % (acc + 2 * i, acc + 2 * i))
                b('v_add_f32 v%d, v%d, v161' % (acc + 2 * i + 1, acc + 2 * i + 1))
    for i in range(4):
        b('v_cvt_pk_bf16_f32 v%d, v%d, v%d' % (acc + i, acc + 2 * i, acc + 2 * i + 1))
    b('buffer_store_dwordx4 %s, v202, %s, s%d offen' % (vr(acc, 4), srd(sOUT), sKSI if p == 0 else sKSC))
reduce_chunk(r, 0)
r('s_cmp_eq_u32 s%d, 7' % sWAVE)
r('s_cbranch_scc1 L_fin')
r2 = P.block('L_red2', ['L_red'])
reduce_chunk(r2, 1)
f = P.block('L_fin', ['L_red2', 'L_red'])
if OPT['prof']:
    f('s_waitcnt vmcnt(0) lgkmcnt(0)')
    pwrite(f, [sPC]); pstamp(f, sPC)
    f('s_waitcnt lgkmcnt(0)')
    pwrite(f, [sPC])
    f('s_lshl_b32 s%d, s2, 3' % sT2)
    f('s_add_u32 s%d, s%d, s%d' % (sT2, sT2, sWAVE))
    f('s_mul_i32 s%d, s%d, 1280' % (sT2, sT2))
    f('s_add_u32 s%d, s%d, %d' % (sT2, sT2, 72 << 20))
    f('v_lshlrev_b32 v4, 2, v200')
    for i in range(5):
        f('buffer_store_dword v%d, v4, %s, s%d offen offset:%d' % (254 - i, srd(sWS), sT2, 256 * i))
if OPT['stamps']:
    f('s_waitcnt vmcnt(0)')
    f('s_cmp_lg_u32 s%d, 0' % sWAVE)
    f('s_cbranch_scc1 L_end')
    f('s_memrealtime s[%d:%d]' % (sT, sT + 1))
    f('s_waitcnt lgkmcnt(0)')
    f('v_mov_b32 v0, s%d' % sST0)
    f('v_mov_b32 v1, s%d' % (sST0 + 1))
    f('v_mov_b32 v2, s%d' % sT)
    f('v_mov_b32 v3, s%d' % (sT + 1))
    f('s_lshl_b32 s%d, s2, 4' % sT2)
    f('s_add_u32 s%d, s%d, %d' % (sT2, sT2, 64 << 20))
    f('v_mov_b32 v4, 0')
    f('s_mov_b64 exec, 1')
    f('buffer_store_dwordx4 v[0:3], v4, %s, s%d offen' % (srd(sWS), sT2))
en = P.block('L_end', ['L_fin'])
en('s_endpgm')

for (name, X, frm) in slow:
    s = P.block('L_slow_%s' % name, [frm])
    s('s_nop 15')
    s('v_mov_b32 v%d, v%d' % (TM + 1, TM))
    s('v_permlane32_swap_b32 v%d, v%d' % (TM, TM + 1))
    s('v_max3_f32 v%d, v%d, v%d, 0' % (TM, TM, TM + 1))
    s('v_exp_f32 v%d, -v%d' % (TM + 1, TM))
    for i in range(16):
        s('v_sub_f32 v%d, v%d, v%d' % (X + i, X + i, TM))
        s('v_sub_f32 v%d, v%d, v%d' % (NM + i, NM + i, TM))
    for i in range(64):
        s('v_mul_f32 v%d, v%d, v%d' % (OA + i, TM + 1, OA + i))
    s('v_mul_f32 v%d, v%d, v%d' % (LS, TM + 1, LS))
    s('v_mul_f32 v%d, v%d, v%d' % (LS + 1, TM + 1, LS + 1))
    s('s_nop 1')
    s('s_branch L_back_%s' % name)

body = P.finish()
hdr = open('concat_heads__gqa_block_cached__gqa_block_cached__near_ridge.s.ref').read().split('; Override launch')[0]
out = hdr + """; Override launch geometry by editing the next line (default: block=256,
; grid=ceil(out_elems/256), lds=0). Harness parses it; keep it on one line.
; @launch grid=(256,1,1) block=(512,1,1) lds=%d
.amdgcn_target "amdgcn-amd-amdhsa--gfx950"
.text
.globl %s
.p2align 8
.type %s,@function
%s:
%s
.section .rodata,"a"
.p2align 6
.amdhsa_kernel %s
  .amdhsa_next_free_vgpr 256
  .amdhsa_next_free_sgpr 102
  .amdhsa_accum_offset 256
  .amdhsa_group_segment_fixed_size 0
  .amdhsa_kernarg_size 104
  .amdhsa_user_sgpr_count 2
  .amdhsa_user_sgpr_kernarg_segment_ptr 1
  .amdhsa_system_sgpr_workgroup_id_x 1
.end_amdhsa_kernel
""" % (LDS_BYTES, KN, KN, KN, body, KN)
open(sys.argv[1], 'w').write(out)
```

```python
import sys
KN = "concat_heads__gqa_block_cached__gqa_block_cached__near_ridge_kernel"
HDR = open("concat_heads__gqa_block_cached__gqa_block_cached__near_ridge.s.ref").read().split("; @launch")[0]
def gen(local=True, st='', atom='', pre=256, half=False, nst=24, rd=' sc1', touch=0, sync=0, delay=0, preread=0, nrd=8, wstride=122880):
    L = []; A = L.append
    A(HDR + "; @launch grid=(256,1,1) block=(512,1,1) lds=163840")
    A('.amdgcn_target "amdgcn-amd-amdhsa--gfx950"\n.text\n.globl %s\n.p2align 8\n.type %s,@function\n%s:' % (KN, KN, KN))
    A("s_cmp_ge_u32 s2, 256\ns_cbranch_scc1 L_end")
    A("s_load_dwordx2 s[4:5], s[0:1], 8")
    A("s_load_dwordx4 s[8:11], s[0:1], 88")
    A("v_lshrrev_b32 v1, 6, v0\nv_and_b32 v2, 63, v0\ns_nop 0\nv_readfirstlane_b32 s16, v1")
    A("s_getreg_b32 s60, hwreg(HW_REG_XCC_ID)")
    A("s_waitcnt lgkmcnt(0)")
    A("s_mov_b32 s20, s4\ns_and_b32 s21, s5, 0xffff\ns_mov_b32 s22, 0x4000000\ns_mov_b32 s23, 0x20000")
    A("s_mov_b32 s24, s10\ns_and_b32 s25, s11, 0xffff\ns_mov_b32 s26, 293339136\ns_mov_b32 s27, 0x20000")
    A("v_lshlrev_b32 v3, 4, v2")
    A("s_and_b32 s30, s2, 7\ns_lshr_b32 s31, s2, 3")
    if local:
        A("s_lshr_b32 s32, s31, 3\ns_lshl_b32 s33, s30, 2\ns_add_u32 s32, s32, s33")
        A("s_and_b32 s33, s31, 7")
    else:
        A("s_lshr_b32 s32, s30, 2\ns_lshl_b32 s32, s32, 4\ns_lshr_b32 s33, s31, 1\ns_add_u32 s32, s32, s33")
        A("s_and_b32 s33, s30, 3\ns_lshl_b32 s33, s33, 1\ns_and_b32 s34, s31, 1\ns_add_u32 s33, s33, s34")
    if half:
        A("s_bitcmp1_b32 s32, 0\ns_cbranch_scc1 L_end")
    if touch:
        A("s_mul_i32 s35, s32, %d\ns_lshl_b32 s36, s16, 17\ns_add_u32 s35, s35, s36\nv_lshlrev_b32 v4, 11, v2" % (8 * 122880))
        A("buffer_load_dword v5, v4, s[24:27], s35 offen%s\ns_waitcnt vmcnt(0)" % (' sc1' if touch == 2 else ''))
    if preread:
        A("s_cmp_lt_u32 s16, 3\ns_cbranch_scc1 L_nopr")
        A("s_lshl_b32 s35, s32, 3\ns_add_u32 s35, s35, s33\ns_mul_i32 s35, s35, 122880\ns_sub_u32 s36, s16, 3\ns_mul_i32 s36, s36, 24576\ns_add_u32 s35, s35, s36")
        for i in range(nst):
            A("buffer_load_dwordx4 v[16:19], v3, s[24:27], s35 offen\ns_add_u32 s35, s35, 1024")
        A("s_waitcnt vmcnt(0)\nL_nopr:")
    if pre:
        A("s_lshl_b32 s35, s2, 18\ns_lshl_b32 s36, s16, 15\ns_add_u32 s35, s35, s36\ns_lshl_b32 s36, s16, 14")
        A("s_mov_b32 s37, %d" % (pre // 8))
        A("L_pre:\ns_mov_b32 m0, s36\ns_nop 0\nbuffer_load_dwordx4 v3, s[20:23], s35 offen nt lds")
        A("s_add_u32 s35, s35, 1024\ns_waitcnt vmcnt(4)\ns_sub_u32 s37, s37, 1\ns_cmp_lg_u32 s37, 0\ns_cbranch_scc1 L_pre")
        A("s_waitcnt vmcnt(0)")
    if sync:
        A("s_barrier\ns_cmp_lg_u32 s16, 0\ns_cbranch_scc1 L_s1\ns_mov_b64 exec, 1\nv_mov_b32 v10, 192\nv_mov_b32 v11, 1\nglobal_atomic_add v10, v11, s[8:9] sc1\ns_mov_b32 s36, 0x100000")
        A("L_sp:\nglobal_load_dword v12, v10, s[8:9] sc1\ns_waitcnt vmcnt(0)\nv_readfirstlane_b32 s35, v12\ns_sub_u32 s36, s36, 1\ns_cmp_eq_u32 s36, 0\ns_cbranch_scc1 L_sd\ns_sleep 4\ns_cmp_lt_u32 s35, %d\ns_cbranch_scc1 L_sp\nL_sd:\ns_mov_b64 exec, -1\nL_s1:" % (128 if half else 256))
    A("s_barrier")
    A("s_memtime s[40:41]")
    A("s_cmp_lt_u32 s16, 3\ns_cbranch_scc1 L_nost")
    A("s_lshl_b32 s35, s32, 3\ns_add_u32 s35, s35, s33\ns_mul_i32 s35, s35, 122880\ns_sub_u32 s36, s16, 3\ns_mul_i32 s36, s36, 24576\ns_add_u32 s35, s35, s36")
    for i in range(nst):
        A("buffer_store_dwordx4 v[0:3], v3, s[24:27], s35 offen%s\ns_add_u32 s35, s35, 1024" % st)
    A("s_waitcnt vmcnt(0)")
    A("L_nost:\ns_barrier")
    A("s_memtime s[42:43]")
    A("s_cmp_lg_u32 s16, 0\ns_cbranch_scc1 L_red")
    A("s_mov_b64 exec, 1\ns_lshl_b32 s35, s32, 2\nv_mov_b32 v10, s35\nv_mov_b32 v11, 1")
    A("global_atomic_add v10, v11, s[8:9]%s" % atom)
    A("s_mov_b32 s36, 0x100000")
    A("L_poll:\nglobal_load_dword v12, v10, s[8:9] sc1\ns_waitcnt vmcnt(0)\nv_readfirstlane_b32 s35, v12")
    A("s_sub_u32 s36, s36, 1\ns_cmp_eq_u32 s36, 0\ns_cbranch_scc1 L_pd\ns_cmp_lt_u32 s35, 8\ns_cbranch_scc1 L_poll")
    A("L_pd:\ns_mov_b64 exec, -1")
    A("L_red:\ns_barrier")
    if delay:
        A("s_mov_b32 s36, %d\nL_dl:\ns_sleep 64\ns_sub_u32 s36, s36, 1\ns_cmp_lg_u32 s36, 0\ns_cbranch_scc1 L_dl" % delay)
    A("s_memtime s[44:45]")
    A("s_mul_i32 s35, s33, 15\ns_lshl_b32 s36, s16, 1\ns_add_u32 s35, s35, s36\ns_lshl_b32 s35, s35, 10\ns_mul_i32 s36, s32, %d\ns_add_u32 s35, s35, s36" % (8 * 122880))
    for src in range(nrd):
        for p in range(2):
            A("buffer_load_dwordx4 v[%d:%d], v3, s[24:27], s35 offen offset:%d%s" % (16 + 8 * src + 4 * p, 19 + 8 * src + 4 * p, 1024 * p, rd))
        A("s_add_u32 s35, s35, 122880")
    A("s_waitcnt vmcnt(0)\ns_barrier")
    A("s_memtime s[46:47]\ns_waitcnt lgkmcnt(0)")
    A("s_cmp_lg_u32 s16, 0\ns_cbranch_scc1 L_end")
    A("s_sub_u32 s46, s46, s44\ns_sub_u32 s44, s44, s42\ns_sub_u32 s42, s42, s40")
    A("v_mov_b32 v8, s42\nv_mov_b32 v9, s44\nv_mov_b32 v10, s46\nv_mov_b32 v11, s60")
    A("s_lshl_b32 s52, s2, 4\ns_add_u32 s52, s52, %d\nv_mov_b32 v12, 0" % (72 << 20))
    A("s_mov_b64 exec, 1")
    A("buffer_store_dwordx4 v[8:11], v12, s[24:27], s52 offen")
    A("s_waitcnt vmcnt(0)")
    A("L_end:\ns_endpgm")
    A('.section .rodata,"a"\n.p2align 6\n.amdhsa_kernel %s\n  .amdhsa_next_free_vgpr 128\n  .amdhsa_next_free_sgpr 102\n  .amdhsa_accum_offset 128\n  .amdhsa_group_segment_fixed_size 0\n  .amdhsa_kernarg_size 104\n  .amdhsa_user_sgpr_count 2\n  .amdhsa_user_sgpr_kernarg_segment_ptr 1\n  .amdhsa_system_sgpr_workgroup_id_x 1\n.end_amdhsa_kernel' % KN)
    return "\n".join(L) + "\n"
cfgs = {
  "l_pl_d": dict(local=True, st='', atom='', sync=1, delay=6),
  "x_sc1_d": dict(local=False, st=' sc1', atom=' sc1', sync=1, delay=6),
  "l_pl_pr": dict(local=True, st='', atom='', sync=1, preread=1, pre=0),
  "l_pl_prh": dict(local=True, st='', atom='', sync=1, preread=1, pre=0, half=True),
  "l_pl_prs": dict(local=True, st='', atom='', sync=1, preread=1, pre=256),
  "x_sc1_12": dict(local=False, st=' sc1', atom=' sc1', sync=1, nst=12, nrd=4),
  "x_sc1_6": dict(local=False, st=' sc1', atom=' sc1', sync=1, nst=6, nrd=2),
  "x_sc1_0": dict(local=False, st=' sc1', atom=' sc1', sync=1, nst=0, nrd=8),
  "x_sc1_pr": dict(local=False, st=' sc1', atom=' sc1', sync=1, preread=1, pre=256),
}
for n, c in cfgs.items():
    open("me_%s.s" % n, "w").write(gen(**c))
print(" ".join("dev/me_%s.s" % n for n in cfgs))
```

```python
import sys, math, struct
sys.path.insert(0, 'gen')
from asmlib import *

KN = "concat_heads__gqa_block_cached__gqa_block_cached__near_ridge_kernel"
OPT = dict(stamps=0, nt=1, rot=1, prof=0, pfB=1, thr=8, prio=1, krot=1, wqlin=0, l2pf=1)
for a in sys.argv[2:]:
    k, v = a.split('='); OPT[k] = int(v)

S0, W0B, S1, S2, W1B = 0, 32768, 53248, 86016, 118784
QS0, QST = 53248, 28672
WSZ = 20480
OBUF = 139264
FLAGS = 40 << 20
LDS_BYTES = 163840
MF = 'v_mfma_f32_32x32x16_bf16'
NT = ' nt' if OPT['nt'] else ''

sWAVE = 3
sK, sV, sX, sWQ, sWO, sWS, sOUT = 4, 8, 12, 16, 20, 24, 28
sDBG = 32
sU, sCNT = 34, 35
sB, sBR, sH0, sME, sGRP = 62, 63, 64, 65, 66
sKVO, sWQO, sXO, sKC, sMS, sT, sT1, sWOB, sWSL = 67, 68, 69, 70, 71, 72, 73, 74, 75
sKSI, sKSC, sT2, sT3, sDELTA, sSLOT, sROT, sLJ, sDW, sAS = 76, 77, 78, 79, 80, 81, 82, 83, 84, 85
sTBL = 100
sSC, sCLS, sTHR = 86, 87, 88
sST0 = 90
sROT8 = 92
sKROT = 89
sPI = 93
sPA, sPB, sPC = 94, 96, 98
sJ8, sJ2 = 36, 37
def srd(n): return 's[%d:%d]' % (n, n + 3)
def vr(a, n): return 'v[%d:%d]' % (a, a + n - 1)

class Prog:
    def __init__(self):
        self.blocks = []; self.preds = {}
    def block(self, name, preds, pend=None, label=True):
        b = Block(name)
        if pend is not None: b.pend = list(pend)
        if label: b.raw(name + ':')
        self.blocks.append(b); self.preds[name] = preds
        return b
    def tails(self, name, need=20, depth=0):
        res = []
        for p in self.preds[name]:
            pb = [b for b in self.blocks if b.name == p]
            assert pb, (name, p)
            ins = pb[0].ins
            st = sum(i.states() for i in ins)
            if st >= need or depth > 3 or not self.preds[p]:
                res.append(list(ins[-40:]))
            else:
                for t in self.tails(p, need - st, depth + 1):
                    res.append(t + list(ins))
        return res
    def finish(self):
        for b in self.blocks:
            b.ins = fix_hazards(b.ins, self.tails(b.name))
        return '\n'.join(text_of(b.ins) for b in self.blocks)

P = Prog()
def pstamp(b, reg):
    if OPT['prof']: b('s_memtime s[%d:%d]' % (reg, reg + 1))
def pwrite(b, regs):
    if OPT['prof']:
        for r_ in regs:
            b('s_mov_b32 m0, s%d' % sPI)
            b('s_nop 0')
            b('v_writelane_b32 v250, s%d, m0' % (r_,))
            b('s_add_u32 s%d, s%d, 1' % (sPI, sPI))
def pshift(b):
    if OPT['prof']:
        for i in (254, 253, 252, 251): b('v_mov_b32 v%d, v%d' % (i, i - 1))
        b('s_mov_b32 s%d, 0' % sPI)
def weave(b, mf, fill):
    assert len(mf) == len(fill), (len(mf), len(fill))
    for m, f in zip(mf, fill):
        b(m)
        for o in f:
            if callable(o): o(b)
            else: b(o)
def split(ops, counts):
    out = []; k = 0
    for c in counts:
        out.append(list(ops[k:k + c])); k += c
    assert k >= len(ops), (k, len(ops))
    return out
def spread(ops, n):
    out = []; k = 0
    for i in range(n):
        m = (len(ops) * (i + 1)) // n
        out.append(list(ops[k:m])); k = m
    return out
def zipf(*lists):
    return [sum((l[i] for l in lists), []) for i in range(len(lists[0]))]

e = P.block('L_entry', [], label=False)
e('s_cmp_ge_u32 s2, 256')
e('s_cbranch_scc1 L_end')
if OPT['stamps']:
    e('s_memrealtime s[%d:%d]' % (sST0, sST0 + 1))
e('s_load_dwordx16 s[36:51], s[0:1], 0')
e('s_load_dwordx8 s[52:59], s[0:1], 64')
e('s_load_dwordx2 s[60:61], s[0:1], 96')
e('v_lshrrev_b32 v1, 6, v0')
e('v_and_b32 v0, 63, v0')
e('v_readfirstlane_b32 s%d, v1' % sWAVE)
e('s_and_b32 s%d, s2, 7' % sT)
e('s_lshr_b32 s%d, s2, 3' % sT2)
e('s_lshr_b32 s%d, s%d, 2' % (sBR, sT))
e('s_and_b32 s%d, s%d, 3' % (sT, sT))
e('s_lshr_b32 s%d, s%d, 1' % (sB, sT2))
e('s_and_b32 s%d, s%d, 1' % (sT2, sT2))
e('s_lshl_b32 s%d, s%d, 1' % (sME, sT))
e('s_add_u32 s%d, s%d, s%d' % (sME, sME, sT2))
e('s_lshl_b32 s%d, s%d, 2' % (sH0, sME))
if OPT['krot']:
    e('s_lshr_b32 s%d, s%d, 1' % (sKROT, sB))
    e('s_add_u32 s%d, s%d, s%d' % (sKROT, sKROT, sT))
    e('s_mul_i32 s%d, s%d, 5' % (sT, sT2))
    e('s_add_u32 s%d, s%d, s%d' % (sKROT, sKROT, sT))
    e('s_and_b32 s%d, s%d, 7' % (sKROT, sKROT))
    e('s_lshl_b32 s%d, s%d, 14' % (sKROT, sKROT))
e('s_lshl_b32 s%d, s%d, 4' % (sGRP, sBR))
e('s_add_u32 s%d, s%d, s%d' % (sGRP, sGRP, sB))
e('s_and_b32 s%d, s%d, 1' % (sCLS, sB))
if OPT['rot']:
    e('s_mul_i32 s%d, s%d, 5' % (sT2, sT2))
    e('s_add_u32 s%d, s%d, s%d' % (sROT, sB, sT2))
    e('s_cmp_ge_u32 s%d, 10' % sROT)
    e('s_cselect_b32 s%d, 10, 0' % sT2)
    e('s_sub_u32 s%d, s%d, s%d' % (sROT, sROT, sT2))
    e('s_cmp_ge_u32 s%d, 10' % sROT)
    e('s_cselect_b32 s%d, 10, 0' % sT2)
    e('s_sub_u32 s%d, s%d, s%d' % (sROT, sROT, sT2))
    e('s_and_b32 s%d, s%d, 7' % (sROT8, sB))
else:
    e('s_mov_b32 s%d, 0' % sROT)
    e('s_mov_b32 s%d, 0' % sROT8)
e('v_lshrrev_b32 v1, 5, v0')
e('v_bfe_u32 v3, v0, 2, 2')
e('v_lshl_add_u32 v2, v1, 3, v3')
e('v_lshlrev_b32 v2, 8, v2')
e('v_bfe_u32 v4, v0, 4, 1')
e('v_lshl_add_u32 v2, v4, 5, v2')
e('v_and_b32 v4, 1, v0')
e('v_lshl_add_u32 v2, v4, 4, v2')
e('v_bfe_u32 v4, v0, 1, 1')
e('v_lshl_add_u32 v2, v4, 3, v2')
e('s_mov_b32 s%d, 0' % sU)
if OPT['prof']: e('s_mov_b32 s%d, 0' % sPI)
e('s_waitcnt lgkmcnt(0)')
e('s_cmp_eq_u32 s%d, 0' % sBR)
for (dst, a, b_, size) in ((sX, 36, 46, 16*96*640*2), (sK, 38, 48, 16*32*512*128*2), (sV, 40, 50, 16*32*512*128*2),
                           (sWQ, 42, 52, 640*4096*2), (sWO, 44, 54, 640*4096*2)):
    e('s_cselect_b64 s[%d:%d], s[%d:%d], s[%d:%d]' % (dst, dst + 1, a, a + 1, b_, b_ + 1))
    e('s_mov_b32 s%d, %d' % (dst + 2, size))
    e('s_mov_b32 s%d, 0x20000' % (dst + 3))
for (dst, a, size) in ((sOUT, 56, 16*96*1280*2), (sWS, 60, 293339136)):
    e('s_mov_b64 s[%d:%d], s[%d:%d]' % (dst, dst + 1, a, a + 1))
    e('s_mov_b32 s%d, %d' % (dst + 2, size))
    e('s_mov_b32 s%d, 0x20000' % (dst + 3))
for d in (sX, sK, sV, sWQ, sWO, sOUT, sWS):
    e('s_and_b32 s%d, s%d, 0xffff' % (d + 1, d + 1))
e('s_mov_b64 s[%d:%d], s[58:59]' % (sDBG, sDBG + 1))
e('s_cmp_ge_u32 s%d, 3' % sWAVE)
e('s_cbranch_scc1 L_gemm')

OA, QF, SA, SB, F0, F1, NM, PP, aK, aT, aX, LS, TM, aOW = 0, 64, 96, 112, 128, 160, 192, 208, 216, 224, 228, 232, 234, 236
QA = [SB, NM, QF, QF + 16]
QP = [QF + 8, QF + 24, QF, QF + 16]
def qf(ks): return QP[ks >> 1] + 4 * (ks & 1)
def bytes8(v): return sum((x & 255) << (8 * i) for i, x in enumerate(v))
TBL_A = bytes8([21, -8, -13, 21, -8, -13, 21, -8])
a = P.block('L_att', ['L_entry'])
for t in range(4):
    a('v_xor_b32 v5, %d, v3' % t)
    a('v_lshl_add_u32 v%d, v5, 6, v2' % (aT + t))
    a('v_add_u32 v%d, %d, v%d' % (aT + t, QS0, aT + t))
a('v_and_b32 v5, 0x13, v0')
a('v_bfe_u32 v6, v0, 2, 1')
a('v_lshl_or_b32 v5, v6, 3, v5')
a('v_bfe_u32 v6, v0, 3, 1')
a('v_lshl_or_b32 v5, v6, 2, v5')
a('v_and_b32 v6, 15, v5')
a('v_xor_b32 v6, v6, v1')
a('v_lshlrev_b32 v6, 4, v6')
a('v_lshl_add_u32 v6, v5, 8, v6')
a('v_add_u32 v6, %d, v6' % QS0)
for s in range(8):
    a('v_xor_b32 v%d, %d, v6' % (aK + s, 32 * s))
a('v_and_b32 v5, 31, v0')
a('v_bfe_u32 v6, v0, 1, 3')
a('v_xor_b32 v6, v6, v1')
a('v_lshlrev_b32 v6, 4, v6')
a('v_lshl_add_u32 v6, v5, 7, v6')
a('s_lshl_b32 s%d, s%d, 12' % (sT, sWAVE))
a('s_add_u32 s%d, s%d, %d' % (sT, sT, QS0 + 16384))
a('v_add_u32 v6, s%d, v6' % sT)
for s in range(4):
    a('v_xor_b32 v%d, %d, v6' % (aX + s, 32 * s))
a('s_lshl_b32 s%d, s%d, 10' % (sT, sWAVE))
a('s_add_u32 s%d, s%d, %d' % (sT, sT, OBUF))
a('v_lshlrev_b32 v%d, 4, v0' % aOW)
a('v_add_u32 v%d, s%d, v%d' % (aOW, sT, aOW))
SCALE = (128 ** -0.5) * math.log2(math.e)
a('s_mov_b32 s%d, 0x%08x' % (sSC, struct.unpack('<I', struct.pack('<f', SCALE))[0]))
a('s_mov_b32 s%d, 0x42000000' % sTHR)
a('s_mov_b32 s%d, %d' % (sSLOT, QS0))
pstamp(a, sPC)
a('s_barrier')

FQ = [F0, F0 + 16, F1, F1 + 16]
def q_reads(ks):
    o = ['ds_read_b128 %s, v%d' % (vr(SA + 4 * ks, 4), aX + ks)]
    for t in range(4):
        for jj in range(2):
            o.append('ds_read_b64_tr_b16 %s, v%d offset:%d' % (vr(FQ[ks] + 4 * t + 2 * jj, 2), aT + t, ks * 4096 + jj * 1024))
    return o
def q_mf(ks, t, first=False):
    c = '0' if first else vr(QA[t], 16)
    return '%s %s, %s, %s, %s' % (MF, vr(QA[t], 16), vr(FQ[ks] + 4 * t, 4), vr(SA + 4 * ks, 4), c)
def q_regs(ks): return set(range(FQ[ks], FQ[ks] + 16)) | set(range(SA + 4 * ks, SA + 4 * ks + 4))
def next_slot():
    return ['s_add_u32 s%d, s%d, %d' % (sT, sSLOT, QST),
            's_cmp_eq_u32 s%d, %d' % (sT, QS0 + 3 * QST),
            's_cselect_b32 s%d, %d, s%d' % (sT, QS0, sT),
            's_sub_u32 s%d, s%d, s%d' % (sDELTA, sT, sSLOT),
            's_mov_b32 s%d, s%d' % (sSLOT, sT)]
def tbl_slot():
    return ['s_sext_i32_i8 s%d, s%d' % (sDELTA, sTBL),
            's_lshl_b32 s%d, s%d, 12' % (sDELTA, sDELTA),
            's_lshr_b64 s[%d:%d], s[%d:%d], 8' % (sTBL, sTBL + 1, sTBL, sTBL + 1)]
def adv(base, n, s=None):
    return ['v_add_u32 v%d, s%d, v%d' % (base + i, sDELTA if s is None else s, base + i) for i in range(n)]
def W(regs): return lambda b: b.waitfor(regs)
def endstep(b, loop=None):
    b('s_waitcnt lgkmcnt(0)')
    pwrite(b, [sPC]); pstamp(b, sPC)
    if loop:
        b('s_sub_u32 s%d, s%d, 1' % (sCNT, sCNT))
        b('s_cmp_lg_u32 s%d, 0' % sCNT)
    b('s_barrier')
    if loop: b('s_cbranch_scc1 %s' % loop)

def k_read(F, s, tile): return 'ds_read_b128 %s, v%d offset:%d' % (vr(F + 4 * s, 4), aK + s, tile * 8192)
def v_read(F, i, tile):
    sp, t = i >> 2, i & 3
    return ['ds_read_b64_tr_b16 %s, v%d offset:%d' % (vr(F + 4 * i + 2 * jj, 2), aT + t, 16384 + tile * 8192 + sp * 4096 + jj * 1024) for jj in range(2)]
def s_mf(F, s, X, c): return '%s %s, %s, %s, %s' % (MF, vr(X, 16), vr(F + 4 * s, 4), vr(qf(s), 4), c)
def pv_mf(F, i, first=False):
    sp, t = i >> 2, i & 3
    c = '0' if (first and sp == 0) else vr(OA + 16 * t, 16)
    return '%s %s, %s, %s, %s' % (MF, vr(OA + 16 * t, 16), vr(F + 4 * i, 4), vr(PP + 4 * sp, 4), c)
def softmax_ops(X, adds=False):
    ops = []
    for i in range(8):
        ops.append('v_exp_f32 v%d, v%d' % (X + 2 * i, X + 2 * i))
        ops.append('v_exp_f32 v%d, v%d' % (X + 2 * i + 1, X + 2 * i + 1))
        if i >= 1:
            ops.append('v_cvt_pk_bf16_f32 v%d, v%d, v%d' % (PP + i - 1, X + 2 * i - 2, X + 2 * i - 1))
            if adds: ops += add_ops(X)[2 * i - 2:2 * i]
    ops.append('v_cvt_pk_bf16_f32 v%d, v%d, v%d' % (PP + 7, X + 14, X + 15))
    if adds: ops += add_ops(X)[14:16]
    return ops
def add_ops(X):
    return ['v_add_f32 v%d, v%d, v%d' % (LS + (i & 1), LS + (i & 1), X + i) for i in range(16)]
def max_ops(X):
    ops = ['v_max3_f32 v%d, v%d, v%d, v%d' % (TM, X, X + 1, X + 2)]
    for i in range(6):
        ops.append('v_max3_f32 v%d, v%d, v%d, v%d' % (TM, TM, X + 3 + 2 * i, X + 4 + 2 * i))
    ops.append('v_max_f32 v%d, v%d, v%d' % (TM, TM, X + 15))
    return ops
CMP = 'v_cmp_lt_f32 vcc, s%d, v%d' % (sTHR, TM)
slow = []
def check(b, X, name):
    b('s_cbranch_vccnz L_slow_%s' % name)
    slow.append((name, X, b.name))
    return P.block('L_back_%s' % name, [b.name, 'L_slow_%s' % name], pend=b.pend)
def rng(a, n): return set(range(a, a + n))

def q_tail_fill():
    return None
def q_step(b, extra=None):
    mf = [q_mf(2, t) for t in range(4)] + [q_mf(3, t) for t in range(4)] + [q_mf(0, t) for t in range(4)] + [q_mf(1, t) for t in range(4)]
    r01 = q_reads(0) + q_reads(1); r23 = q_reads(2) + q_reads(3)
    fill = split(r01, [3] * 6) + split(r23, [3] * 6) + [next_slot(), adv(aX, 4), adv(aT, 4), []]
    fill[7] = fill[7] + [W(q_regs(0))]
    fill[11] = fill[11] + [W(q_regs(1))]
    if extra:
        ex = spread(extra, 16)
        fill = [f + x for f, x in zip(fill, ex)]
    weave(b, mf, fill)

q0 = P.block('L_att_q0', ['L_att'])
for o in q_reads(0) + q_reads(1): q0(o)
q0.waitfor(q_regs(0))
weave(q0, [q_mf(0, t, True) for t in range(4)] + [q_mf(1, t) for t in range(4)],
      split(q_reads(2) + q_reads(3), [6, 6, 6]) + [[W(q_regs(1))], next_slot(), adv(aX, 4), adv(aT, 4), ['s_mov_b32 s%d, 9' % sCNT]])
endstep(q0)
ql = P.block('L_att_q', ['L_att_q0', 'L_att_q', 'L_att_q1'])
q_step(ql)
endstep(ql, 'L_att_q')

a0 = P.block('L_att_a0', ['L_att_q'])
def pack(src, dst, mul):
    o = []
    for h in range(2):
        o += ['v_mul_f32 v%d, %s, v%d' % (src + 8 * h + i, mul, src + 8 * h + i) for i in range(8)]
        o += ['v_cvt_pk_bf16_f32 v%d, v%d, v%d' % (dst + 4 * h + i, src + 8 * h + 2 * i, src + 8 * h + 2 * i + 1) for i in range(4)]
    return o
sc = 's%d' % sSC
mf = []
for t in (2, 3, 0, 1): mf += [q_mf(2, t), q_mf(3, t)]
ts = ['s_mov_b32 s%d, 0x%x' % (sTBL, TBL_A & 0xffffffff), 's_mov_b32 s%d, 0x%x' % (sTBL + 1, TBL_A >> 32)]
kr = [k_read(F0, s, 0) for s in (4, 5, 6, 7, 0, 1, 2, 3)]
ak = ['v_subrev_u32 v%d, %d, v%d' % (aK + i, QS0, aK + i) for i in range(8)]; ak = ak[4:] + ak[:4]
ts += ak[:2]; ak = [None, None] + ak[2:]
pk2 = pack(QA[2], QP[2], sc)
fill = [ts, ak[2:4] + kr[:2], ak[4:] + kr[2:4], kr[4:] + ['v_mov_b32 v%d, 0' % LS, 'v_mov_b32 v%d, 0' % (LS + 1)]] + split(pk2, [6, 6, 6, 6])
fill[7] = fill[7] + ['v_subrev_u32 v%d, %d, v%d' % (aT + i, QS0 + QST, aT + i) for i in range(4)]
weave(a0, mf, fill)
order = (4, 5, 6, 7, 0, 1, 2, 3)
rest = pack(QA[3], QP[3], sc) + pack(QA[0], QP[0], sc) + pack(QA[1], QP[1], sc)
vr0 = sum((v_read(F1, i, 0) for i in range(8)), [])
mf = [s_mf(F0, s, SA, '0' if n == 0 else vr(SA, 16)) for n, s in enumerate(order)]
pieces = split(rest, [6, 6, 12, 12, 12, 12, 12, 0])
fill = [[k_read(F0, order[n], 1)] + vr0[2 * n:2 * n + 2] + pieces[n] for n in range(8)]
a0.waitfor(rng(F0, 32))
weave(a0, mf, fill)
for o in max_ops(SA): a0(o)
a0('v_mov_b32 v%d, v%d' % (TM + 1, TM))
a0('v_permlane32_swap_b32 v%d, v%d' % (TM, TM + 1))
a0('v_max_f32 v%d, v%d, v%d' % (TM, TM, TM + 1))
for i in range(16):
    a0('v_mul_f32 v%d, -1.0, v%d' % (NM + i, TM))
subs = ['v_sub_f32 v%d, v%d, v%d' % (SA + i, SA + i, TM) for i in range(16)]
for o in subs[:4]: a0(o)
sm = softmax_ops(SA)
fill = [subs[4 + 2 * n:6 + 2 * n] + sm[3 * n:3 * n + 3] for n in range(8)]
a0.waitfor(rng(F0, 32))
weave(a0, [s_mf(F0, s, SB, vr(NM, 16) if s == 0 else vr(SB, 16)) for s in range(8)], fill)
def phase_pv0(b, Fa, Fb, first=False, ak=False, cnt=None):
    b.waitfor(rng(Fb, 32))
    vr1 = sum((v_read(Fa, i, 1) for i in range(8)), [])
    ad = add_ops(SA); mx = max_ops(SB)
    fill = zipf(split(vr1, [4, 4, 4, 4, 0, 0, 0, 0]), split(ad, [2, 2, 1, 1, 2, 3, 1, 4]), split(mx, [0, 0, 1, 1, 3, 3, 0, 0]))
    fill[6] = [CMP] + fill[6]
    if ak:
        fill[4] = fill[4] + tbl_slot(); fill[5] = fill[5] + adv(aK, 8)
    fill[6] = fill[6] + adv(aT, 4)
    if cnt: fill[7] = fill[7] + [cnt]
    weave(b, [pv_mf(Fb, i, first) for i in range(8)], fill)
phase_pv0(a0, F0, F1, first=True, ak=True, cnt='s_mov_b32 s%d, 4' % sCNT)
a0b = check(a0, SB, 'a0')
endstep(a0b)

def a_step(b, Fa, Fb, nm):
    for s in range(8): b(k_read(Fa, s, 0))
    sm = softmax_ops(SB, adds=True)
    HEAD = 12
    for o in sm[:HEAD]: b(o)
    fill = spread(sm[HEAD:], 8)
    fill[3] = fill[3] + [W(rng(Fa + 16, 16))]
    b.waitfor(rng(Fa, 16))
    weave(b, [s_mf(Fa, s, SA, vr(NM, 16) if s == 0 else vr(SA, 16)) for s in range(8)], fill)
    kr = [k_read(Fa, s, 1) for s in range(8)]
    fill = zipf(split(kr, [2, 2, 2, 2, 0, 0, 0, 0]), [v_read(Fb, i, 0) for i in range(8)],
                split(max_ops(SA), [0, 2, 2, 2, 2, 0, 0, 0]))
    ts = tbl_slot(); ak = adv(aK, 8)
    fill[0] = fill[0] + ts[:2]; fill[4] = fill[4] + ts[2:]; fill[5] = fill[5] + [CMP] + ak[:2]
    fill[6] = fill[6] + ak[2:6]; fill[7] = fill[7] + ak[6:]
    weave(b, [pv_mf(Fb, i) for i in range(8)], fill)
    b = check(b, SA, nm + '1')
    b.waitfor(rng(Fa, 32))
    weave(b, [s_mf(Fa, s, SB, vr(NM, 16) if s == 0 else vr(SB, 16)) for s in range(8)], spread(softmax_ops(SA), 8))
    phase_pv0(b, Fa, Fb)
    return check(b, SB, nm + '2')
ao = P.block('L_att_ao', ['L_back_a0', 'L_back_ae2'])
ao2 = a_step(ao, F1, F0, 'ao')
ao2('s_waitcnt lgkmcnt(0)')
pwrite(ao2, [sPC]); pstamp(ao2, sPC)
ao2('s_sub_u32 s%d, s%d, 1' % (sCNT, sCNT))
ao2('s_cmp_eq_u32 s%d, 0' % sCNT)
ao2('s_barrier')
ao2('s_cbranch_scc1 L_att_drain')
ae = P.block('L_att_ae', ['L_back_ao2'])
ae2 = a_step(ae, F0, F1, 'ae')
endstep(ae2)
ae2('s_branch L_att_ao')

def lsum(b):
    b('v_add_f32 v%d, v%d, v%d' % (TM, LS, LS + 1))
    b('v_mov_b32 v%d, v%d' % (TM + 1, TM))
    b('v_permlane32_swap_b32 v%d, v%d' % (TM, TM + 1))
    b('v_add_f32 v%d, v%d, v%d' % (TM, TM, TM + 1))
    b('v_rcp_f32 v%d, v%d' % (TM, TM))
def onorm():
    o = []
    for t in range(4):
        pk = pack(OA + 16 * t, OA + 16 * t, 'v%d' % TM)
        o += pk[:12] + ['ds_write_b128 v%d, %s offset:%d' % (aOW, vr(OA + 16 * t, 4), (2 * t) * 3072)]
        o += pk[12:] + ['ds_write_b128 v%d, %s offset:%d' % (aOW, vr(OA + 16 * t + 4, 4), (2 * t + 1) * 3072)]
    return o
d = P.block('L_att_drain', ['L_back_ao2'])
pshift(d)
d('s_add_u32 s%d, s%d, 1' % (sU, sU))
d('s_cmp_eq_u32 s%d, 4' % sU)
d('s_cbranch_scc1 L_att_fin')
qb = P.block('L_att_qb', ['L_att_drain'])
for i in range(4): qb('v_subrev_u32 v%d, %d, v%d' % (aX + i, QST, aX + i))
qb('s_mov_b32 s%d, %d' % (sSLOT, QS0))
r01 = q_reads(0) + q_reads(1)
sm = softmax_ops(SB)
for o in r01[:9]: qb(o)
for o in sm[:14]: qb(o)
fill = zipf(split(sm[14:], [3, 3, 3, 1, 0, 0, 0, 0]), split(r01[9:], [1, 1, 1, 2, 2, 2, 0, 0]), split(add_ops(SB), [0, 0, 0, 2, 3, 3, 4, 4]))
weave(qb, [pv_mf(F1, i) for i in range(8)], fill)
lsum(qb)
on = onorm()
r23 = q_reads(2) + q_reads(3)
qb.waitfor(q_regs(0))
NQB = 26
fill = zipf(split(r23, [4, 4, 4, 3, 3, 0, 0, 0]), split(on[:NQB], [0, 2, 2, 3, 3, 6, 4, 6]))
fill[3] = fill[3] + [W(q_regs(1))]
fill[5] = fill[5] + next_slot()
fill[6] = fill[6] + adv(aX, 4)
fill[7] = fill[7] + adv(aT, 4) + ['s_mov_b32 s%d, 8' % sCNT]
weave(qb, [q_mf(0, t, True) for t in range(4)] + [q_mf(1, t) for t in range(4)], fill)
endstep(qb)
q1 = P.block('L_att_q1', ['L_att_qb'])
q_step(q1, extra=on[NQB:])
endstep(q1)
q1('s_branch L_att_q')

fi = P.block('L_att_fin', ['L_att_drain'])
sm = softmax_ops(SB)
for o in sm[:14]: fi(o)
fill = zipf(split(sm[14:], [3, 3, 3, 1, 0, 0, 0, 0]), split(add_ops(SB), [0, 0, 0, 2, 3, 3, 4, 4]))
weave(fi, [pv_mf(F1, i) for i in range(8)], fill)
lsum(fi)
for o in onorm(): fi(o)
fi('s_waitcnt lgkmcnt(0)')
pwrite(fi, [sPC]); pstamp(fi, sPC)
fi('s_barrier')
fi('s_branch L_red')

AF, BF0, BF1, aW, aWl, aO, aOB, vK, vV, vWQ, vX, vWO = 192, 208, 220, 232, 236, 240, 241, 242, 246, 247, 248, 249
g = P.block('L_gemm', ['L_entry'])
if OPT['prio']: g('s_setprio %d' % OPT['prio'])
g('s_sub_u32 s%d, s%d, 3' % (sT3, sWAVE))
g('s_lshr_b32 s%d, s%d, 2' % (sLJ, sT3))
g('s_lshl_b32 s%d, s%d, 13' % (sJ8, sLJ))
g('s_lshl_b32 s%d, s%d, 11' % (sJ2, sLJ))
g('v_lshrrev_b32 v4, 4, v0')
g('v_and_b32 v5, 15, v0')
g('v_lshlrev_b32 v6, 2, v4')
g('v_xor_b32 v6, v6, v5')
g('v_lshlrev_b32 v6, 4, v6')
g('v_lshl_add_u32 v%d, v4, %d, v6' % (vWQ, 8 if OPT['wqlin'] else 13))
g('v_lshl_add_u32 v%d, v4, 8, v6' % vV)
g('v_mul_u32_u24 v7, 1280, v4')
g('v_add_u32 v%d, v7, v6' % vWO)
g('v_and_b32 v6, 7, v0')
g('v_xor_b32 v6, v6, v4')
g('s_lshl_b32 s%d, s%d, 2' % (sT, sLJ))
g('v_xor_b32 v6, s%d, v6' % sT)
g('v_lshlrev_b32 v6, 4, v6')
g('v_lshrrev_b32 v7, 3, v0')
g('v_mul_u32_u24 v7, 1280, v7')
g('v_add_u32 v%d, v7, v6' % vX)
g('v_xor_b32 v6, v5, v4')
g('v_lshlrev_b32 v6, 4, v6')
g('v_lshl_add_u32 v6, v4, 8, v6')
for e_ in range(4):
    g('v_xor_b32 v%d, %d, v6' % (vK + e_, 64 * e_))
g('s_mul_i32 s%d, s%d, 122880' % (sXO, sB))
g('s_mul_i32 s%d, s%d, 10240' % (sT, sLJ))
g('s_add_u32 s%d, s%d, s%d' % (sXO, sXO, sT))

def unit_bases(uplus):
    o = ['s_add_u32 s%d, s%d, s%d' % (sT, sH0, sU)]
    if uplus: o.append('s_add_u32 s%d, s%d, %d' % (sT, sT, uplus))
    o += ['s_mul_i32 s%d, s%d, %d' % (sWQO, sT, 163840 if OPT['wqlin'] else 256),
          's_lshl_b32 s%d, s%d, %d' % (sT, sLJ, 13 if OPT['wqlin'] else 18),
          's_add_u32 s%d, s%d, s%d' % (sWQO, sWQO, sT),
          's_mov_b32 s%d, s%d' % (sKC, sROT),
          's_mov_b32 s%d, %d' % (sMS, QS0)]
    return o
def kv_base(uplus):
    o = ['s_add_u32 s%d, s%d, s%d' % (sT, sH0, sU)]
    if uplus: o.append('s_add_u32 s%d, s%d, %d' % (sT, sT, uplus))
    o += ['s_lshl_b32 s%d, s%d, 5' % (sT2, sB),
          's_add_u32 s%d, s%d, s%d' % (sT, sT, sT2),
          's_lshl_b32 s%d, s%d, 17' % (sKVO, sT),
          's_add_u32 s%d, s%d, s%d' % (sKVO, sKVO, sJ8)]
    if OPT['krot']: o.append('s_add_u32 s%d, s%d, s%d' % (sKVO, sKVO, sKROT))
    return o
def wo_base(uplus):
    o = ['s_add_u32 s%d, s%d, s%d' % (sT, sH0, sU)]
    if uplus: o.append('s_add_u32 s%d, s%d, %d' % (sT, sT, uplus))
    o += ['s_mul_i32 s%d, s%d, %d' % (sWOB, sT, 128 * 1280),
          's_mov_b32 s%d, s%d' % (sKSI, sROT8)]
    return o
def issue_Q():
    o = ['s_add_u32 m0, s%d, s%d' % (sMS, sJ8),
         's_lshl_b32 s%d, s%d, %d' % (sT, sKC, 14 if OPT['wqlin'] else 19),
         's_add_u32 s%d, s%d, s%d' % (sT, sT, sWQO)]
    RS = 1024 if OPT['wqlin'] else 32768
    for m in range(8):
        if m == 4:
            o += ['s_add_u32 m0, m0, 4096', 's_add_u32 s%d, s%d, %d' % (sT, sT, RS + 3072)]
        elif m: o.append('s_add_u32 s%d, s%d, %d' % (sT, sT, RS - 1024))
        o.append('buffer_load_dwordx4 v%d, %s, s%d offen offset:%d lds' % (vWQ, srd(sWQ), sT, (m & 3) * 1024))
    o += ['s_lshr_b32 s%d, s%d, 1' % (sT2, sJ2),
          's_add_u32 s%d, s%d, 16384' % (sT2, sT2),
          's_add_u32 m0, s%d, s%d' % (sMS, sT2),
          's_lshl_b32 s%d, s%d, 7' % (sT, sKC),
          's_add_u32 s%d, s%d, s%d' % (sT, sT, sXO)]
    for m in range(6):
        if m & 1: o.append('s_add_u32 s%d, s%d, %d' % (sT, sT, 20480 - 2048))
        elif m: o += ['s_add_u32 m0, m0, 4096', 's_add_u32 s%d, s%d, %d' % (sT, sT, 20480 + 2048)]
        o.append('buffer_load_dwordx4 v%d, %s, s%d offen offset:%d lds' % (vX, srd(sX), sT, (m & 1) * 2048))
    o += ['s_add_u32 s%d, s%d, 1' % (sKC, sKC),
          's_cmp_eq_u32 s%d, 10' % sKC,
          's_cselect_b32 s%d, 0, s%d' % (sKC, sKC),
          's_add_u32 s%d, s%d, %d' % (sMS, sMS, QST),
          's_cmp_eq_u32 s%d, %d' % (sMS, QS0 + 3 * QST),
          's_cselect_b32 s%d, %d, s%d' % (sMS, QS0, sMS)]
    return o
def issue_H(half, slot=None, thr=None):
    o = []
    if thr: o.append(thr)
    for gq in range(2):
        off = 16384 * half + 4096 * gq
        if slot is None:
            if off: o.append('s_add_u32 s%d, s%d, %d' % (sT2, sJ8, off))
            o.append('s_add_u32 m0, s%d, s%d' % (sAS, sT2 if off else sJ8))
        else:
            o.append('s_add_u32 m0, s%d, %d' % (sJ8, slot + off))
        if gq: o.append('s_add_u32 s%d, s%d, 4096' % (sT, sKVO))
        for e_ in range(4):
            o.append('buffer_load_dwordx4 v%d, %s, s%d offen offset:%d%s lds' % (vV if half else vK + e_, srd(sV if half else sK), sT if gq else sKVO, e_ * 1024, NT))
    if half:
        o.append('s_add_u32 s%d, s%d, 16384' % (sKVO, sKVO))
        if OPT['krot']:
            o += ['s_and_b32 s%d, s%d, 0x1c000' % (sT2, sKVO),
                  's_cselect_b32 s%d, 0, 0x20000' % sT2,
                  's_sub_u32 s%d, s%d, s%d' % (sKVO, sKVO, sT2)]
        if slot is None:
            o += ['s_cmp_eq_u32 s%d, %d' % (sAS, S2),
                  's_cselect_b32 s%d, %d, 0' % (sT2, S1),
                  's_cmp_eq_u32 s%d, 0' % sAS,
                  's_cselect_b32 s%d, %d, s%d' % (sAS, S2, sT2)]
    return o
def issue_A(slot=None, thr=None): return issue_H(0, slot, thr) + issue_H(1, slot, thr)
def issue_W(base=None):
    o = ['s_mul_i32 s%d, s%d, %d' % (sT, sKSI, 16 * 1280),
         's_add_u32 s%d, s%d, s%d' % (sT, sT, sWOB),
         's_mul_i32 s%d, s%d, 5' % (sT2, sJ2),
         's_add_u32 s%d, s%d, s%d' % (sT, sT, sT2)]
    if base is None: o.append('s_add_u32 m0, s%d, s%d' % (sWSL, sJ2))
    else: o.append('s_add_u32 m0, s%d, %d' % (sJ2, base))
    for v in range(5):
        if v: o += ['s_add_u32 m0, m0, 4096', 's_sub_u32 s%d, s%d, %d' % (sT, sT, 4096 - 256)]
        o.append('buffer_load_dwordx4 v%d, %s, s%d offen lds' % (vWO, srd(sWO), sT))
        o.append('s_add_u32 s%d, s%d, 4096' % (sT, sT))
        o.append('buffer_load_dwordx4 v%d, %s, s%d offen offset:1024 lds' % (vWO, srd(sWO), sT))
    if base is None:
        o.append('s_sub_u32 s%d, %d, s%d' % (sWSL, W0B + W1B, sWSL))
    o += ['s_add_u32 s%d, s%d, 1' % (sKSI, sKSI), 's_and_b32 s%d, s%d, 7' % (sKSI, sKSI)]
    return o
def issue_Wp(base):
    o = ['s_mul_i32 s%d, s%d, %d' % (sT, sKSI, 16 * 1280),
         's_add_u32 s%d, s%d, s%d' % (sT, sT, sWOB),
         's_lshl_b32 s%d, s%d, 8' % (sT2, sT3),
         's_add_u32 s%d, s%d, s%d' % (sT, sT, sT2),
         's_lshl_b32 s%d, s%d, 12' % (sT2, sT3),
         's_add_u32 m0, s%d, %d' % (sT2, base)]
    for m in range(4):
        if m: o.append('s_add_u32 s%d, s%d, 4096' % (sT, sT))
        o.append('buffer_load_dwordx4 v%d, %s, s%d offen offset:%d lds' % (vWO, srd(sWO), sT, m * 1024))
    o += ['s_add_u32 s%d, s%d, 1' % (sKSI, sKSI), 's_and_b32 s%d, s%d, 7' % (sKSI, sKSI)]
    return o
def o_addr():
    return ['s_mul_i32 s%d, s%d, 3072' % (sT1, sKSC),
            'v_add_u32 v%d, s%d, v%d' % (aO, sT1, aOB),
            's_add_u32 s%d, s%d, 1' % (sKSC, sKSC),
            's_and_b32 s%d, s%d, 7' % (sKSC, sKSC)]
def o_reads(BF): return ['ds_read_b128 %s, v%d offset:%d' % (vr(BF + 4 * qt, 4), aO, qt * 1024) for qt in range(3)]
def w_read(t, base, off, dst=None):
    dst = AF + 4 * t if dst is None else dst
    return ['ds_read_b64_tr_b16 %s, v%d offset:%d' % (vr(dst + 2 * jj, 2), base + t, off + jj * 1024) for jj in range(2)]
def g_reads():
    o = o_addr() + o_reads(BF0)
    for t in range(4): o += w_read(t, aW, 0)
    o += ['v_add_u32 v%d, s%d, v%d' % (aW + t, sDW, aW + t) for t in range(4)]
    o.append('s_sub_u32 s%d, 0, s%d' % (sDW, sDW))
    return o
def g_mf(BF, ts=(0, 1, 2, 3), af=None):
    o = []
    for n, t in enumerate(ts):
        for qt in range(3):
            acc = vr((qt * 4 + t) * 16, 16)
            o.append('%s %s, %s, %s, %s' % (MF, acc, vr(AF + 4 * t if af is None else af + 4 * n, 4), vr(BF + 4 * qt, 4), acc))
    return o
def emit(b, ops):
    for o in ops:
        if callable(o): o(b)
        else: b(o)
def dma_groups(ops, n, per):
    out = [[] for _ in range(n)]; k = 0; c = 0
    for o in ops:
        out[k].append(o)
        if (not callable(o)) and o.startswith('buffer_load'):
            c += 1
            if c == per and k < n - 1: k += 1; c = 0
    return out
sPF, sPFS, sPFH = 40, 44, 45
vPF, vPD = BF1, BF1 + 1
NPF = 3 if OPT['l2pf'] else 0
def pf_setup(b):
    if not NPF: return
    b('s_cmp_eq_u32 s%d, 0' % sLJ)
    b('s_cselect_b64 s[%d:%d], s[%d:%d], s[%d:%d]' % (sPF, sPF + 1, sWQ, sWQ + 1, sWO, sWO + 1))
    b('s_mov_b32 s%d, %d' % (sPF + 2, 640 * 4096 * 2))
    b('s_mov_b32 s%d, 0x20000' % (sPF + 3))
    b('s_cselect_b32 s%d, 13, 8' % sT)
    b('s_cselect_b32 s%d, 0x20000, s%d' % (sPFS, sJ2))
    b('s_lshl_b32 s%d, s%d, s%d' % (sPFS, sPFS, sLJ))
    b('s_mul_i32 s%d, s%d, %d' % (sPFH, sLJ, 163840 - 256))
    b('s_add_u32 s%d, s%d, 256' % (sPFH, sPFH))
    b('s_mul_i32 s%d, s%d, 40' % (sT2, sB))
    b('v_lshrrev_b32 v%d, 2, v0' % vPF)
    b('v_add_u32 v%d, s%d, v%d' % (vPF, sT2, vPF))
    b('v_lshlrev_b32 v%d, s%d, v%d' % (vPF, sT, vPF))
    b('v_and_b32 v%d, 3, v0' % vPD)
    b('v_lshl_add_u32 v%d, v%d, 6, v%d' % (vPF, vPD, vPF))
def issue_PF(uplus):
    if not NPF: return []
    o = ['s_sub_u32 s%d, s%d, s%d' % (sT, sU, sLJ),
         's_add_u32 s%d, s%d, %d' % (sT, sT, uplus + 1),
         's_min_u32 s%d, s%d, 3' % (sT, sT),
         's_add_u32 s%d, s%d, s%d' % (sT, sT, sH0),
         's_mul_i32 s%d, s%d, s%d' % (sT, sT, sPFH)]
    for n in range(3):
        if n: o.append('s_add_u32 s%d, s%d, s%d' % (sT, sT, sPFS))
        if n == 2: o.append('s_mov_b32 exec_hi, 0')
        o.append('buffer_load_dword v%d, v%d, %s, s%d offen' % (vPD, vPF, srd(sPF), sT))
    o.append('s_mov_b32 exec_hi, -1')
    return o
lab_n = [0]
def cwait(vmA, vmB):
    def f(b):
        if vmA == vmB:
            if vmA is not None: b('s_waitcnt vmcnt(%d)' % vmA)
            return
        lab_n[0] += 1
        lab = 'L_cw_%d' % lab_n[0]
        lo, hi, cls = (vmA, vmB, 0) if (vmB is None or (vmA is not None and vmA < vmB)) else (vmB, vmA, 1)
        if hi is not None: b('s_waitcnt vmcnt(%d)' % hi)
        b('s_cmp_lg_u32 s%d, %d' % (sCLS, cls))
        b('s_cbranch_scc1 %s' % lab)
        b('s_waitcnt vmcnt(%d)' % lo)
        b.raw(lab + ':')
    return f
def gend(b, vm=None, loop=None, lg=True, tail=None):
    if lg or OPT['prof']: b('s_waitcnt lgkmcnt(0)')
    pstamp(b, sPB)
    if callable(vm): vm(b)
    elif vm is not None: b('s_waitcnt vmcnt(%d)' % vm)
    if OPT['prof']:
        b('s_waitcnt lgkmcnt(0)')
        pwrite(b, [sPC, sPA, sPB]); pstamp(b, sPC)
    if tail: emit(b, tail)
    if loop:
        b('s_sub_u32 s%d, s%d, 1' % (sCNT, sCNT))
        b('s_cmp_lg_u32 s%d, 0' % sCNT)
    b('s_barrier')
    if loop: b('s_cbranch_scc1 %s' % loop)

def gemm_regs(b):
    b('s_lshl_b32 s%d, s%d, 12' % (sT, sT3))
    for t in range(4):
        b('v_xor_b32 v5, %d, v3' % t)
        b('v_lshl_add_u32 v5, v5, 6, v2')
        b('v_add_u32 v%d, s%d, v5' % (aWl + t, sT))
        b('v_add_u32 v%d, %d, v%d' % (aW + t, W0B, aWl + t))
    b('v_lshlrev_b32 v%d, 4, v0' % aOB)
    b('v_add_u32 v%d, %d, v%d' % (aOB, OBUF, aOB))
    b('s_mov_b32 s%d, %d' % (sDW, W1B - W0B))
    b('s_mov_b32 s%d, %d' % (sWSL, W0B))
    for i in range(192): b('v_mov_b32 v%d, 0' % i)

g('s_and_b32 s%d, s%d, 3' % (sT, sT3))
g('s_cmp_eq_u32 s%d, 0' % sT)
g('s_cbranch_scc1 L_ld')
pg = P.block('L_pg', ['L_gemm'])
pg('s_cmp_lg_u32 s%d, 4' % sWAVE)
pg('s_cbranch_scc1 L_pg1')
pz = P.block('L_pgz', ['L_pg'])
pz('s_lshl_b32 s%d, s%d, 3' % (sT, sGRP))
pz('s_add_u32 s%d, s%d, s%d' % (sT2, sT, sME))
pz('s_lshl_b32 s%d, s%d, 5' % (sT2, sT2))
pz('s_add_u32 s%d, s%d, %d' % (sT2, sT2, FLAGS))
pz('v_lshlrev_b32 v4, 2, v0')
pz('v_mov_b32 v5, 0')
pz('v_mov_b32 v6, s%d' % sT)
pz('v_mov_b32 v7, 1')
pz('s_mov_b64 exec, 0xff')
pz('buffer_store_dword v5, v4, %s, s%d offen sc1' % (srd(sWS), sT2))
pz('s_mov_b64 exec, 1')
pz('s_waitcnt vmcnt(0)')
pz('global_atomic_add v6, v7, s[%d:%d] sc1' % (sDBG, sDBG + 1))
pz('s_mov_b64 exec, -1')
pg = P.block('L_pg1', ['L_pg', 'L_pgz'])
gemm_regs(pg)
pstamp(pg, sPC)
pg('s_barrier')
pg('s_mov_b32 s%d, 18' % sCNT)
pw = P.block('L_pg_wait', ['L_pg1', 'L_pg_wait', 'L_pg_0', 'L_pg_u0'])
pstamp(pw, sPA)
gend(pw, loop='L_pg_wait', lg=False)
pw('s_cmp_lg_u32 s%d, 0' % sU)
pw('s_cbranch_scc1 L_pg_10')
pu = P.block('L_pg_u0', ['L_pg_wait'])
pshift(pu)
pu('s_mov_b32 s%d, 1' % sU)
pu('s_mov_b32 s%d, 10' % sCNT)
pu('s_branch L_pg_wait')
p9 = P.block('L_pg_10', ['L_pg_wait'])
p9('s_mov_b32 s%d, s%d' % (sKSC, sROT8))
emit(p9, g_reads())
pstamp(p9, sPA)
gend(p9, tail=['s_mov_b32 s%d, 7' % sCNT])
pa = P.block('L_pg_a', ['L_pg_10', 'L_pg_a'])
emit(pa, g_mf(BF0))
pstamp(pa, sPA)
emit(pa, g_reads())
gend(pa, loop='L_pg_a')
pshift(pa)
pa('s_add_u32 s%d, s%d, 1' % (sU, sU))
pa('s_cmp_eq_u32 s%d, 4' % sU)
pa('s_cbranch_scc1 L_pg_e')
p0 = P.block('L_pg_0', ['L_pg_a'])
emit(p0, g_mf(BF0))
pstamp(p0, sPA)
gend(p0, lg=False, tail=['s_mov_b32 s%d, 9' % sCNT])
p0('s_branch L_pg_wait')
pe = P.block('L_pg_e', ['L_pg_a'])
emit(pe, wo_base(-1))
pe('s_add_u32 s%d, s%d, 6' % (sKSI, sKSI))
pe('s_and_b32 s%d, s%d, 7' % (sKSI, sKSI))
pe('s_branch L_g_ep')

PFB = OPT['pfB']
def clsB_skip(b, lab):
    b('s_cmp_lg_u32 s%d, 0' % sCLS)
    b('s_cbranch_scc1 %s' % lab)
ld = P.block('L_ld', ['L_gemm'])
emit(ld, unit_bases(0))
emit(ld, issue_Q()); emit(ld, issue_Q()); emit(ld, issue_Q())
emit(ld, kv_base(0))
if not PFB: clsB_skip(ld, 'L_ld_np')
emit(ld, issue_A(S0))
if not PFB: ld.raw('L_ld_np:')
pf_setup(ld)
emit(ld, issue_PF(0))
gemm_regs(ld)
cwait(44 + NPF, (44 if PFB else 28) + NPF)(ld)
pstamp(ld, sPC)
ld('s_barrier')
pstamp(ld, sPA)
gend(ld, vm=cwait(30 + NPF, (30 if PFB else 14) + NPF), lg=False, tail=['s_mov_b32 s%d, 7' % sCNT])
ld('s_branch L_ld_q')
l0 = P.block('L_ld_0', ['L_ld_17'])
gr = dma_groups(issue_Q() + issue_Q(), 13, 2)
weave(l0, g_mf(BF0), gr[:12])
emit(l0, gr[12])
l0('s_branch L_ld_0j')
l0n = P.block('L_ld_0n', ['L_ld_u0'])
emit(l0n, issue_Q() + issue_Q())
l0j = P.block('L_ld_0j', ['L_ld_0', 'L_ld_0n'])
pstamp(l0j, sPA)
gend(l0j, vm=14, lg=False, tail=['s_mov_b32 s%d, 7' % sCNT])
lq = P.block('L_ld_q', ['L_ld', 'L_ld_0j', 'L_ld_q'])
emit(lq, issue_Q())
pstamp(lq, sPA)
gend(lq, vm=14, loop='L_ld_q', lg=False)
lq('s_cmp_lg_u32 s%d, 0' % sU)
lq('s_cbranch_scc1 L_ld_8')
def thr_wait(b):
    lab_n[0] += 1
    lab = 'L_thr_%d' % lab_n[0]
    b('s_cmp_eq_u32 s%d, 0' % sCLS)
    b('s_cbranch_scc1 %s' % lab)
    b('s_waitcnt vmcnt(0)')
    b.raw(lab + ':')
th = thr_wait if OPT['thr'] else None
u0 = P.block('L_ld_u0', ['L_ld_q'])
if not PFB:
    u0('s_cmp_eq_u32 s%d, 0' % sCLS)
    u0('s_cbranch_scc1 L_ld_u0k')
    emit(u0, issue_A(S0, th))
    u0.raw('L_ld_u0k:')
emit(u0, issue_H(0, S2, th))
pstamp(u0, sPA)
gend(u0, vm=cwait(8, 8 if PFB else 24), lg=False)
emit(u0, issue_H(1, S2, th))
pstamp(u0, sPA)
gend(u0, vm=cwait(None, None if PFB else 16), lg=False)
for slot in (S1, S0, S2, S1, S0, S2):
    emit(u0, issue_A(slot, th))
    pstamp(u0, sPA)
    gend(u0, vm=16, lg=False)
emit(u0, unit_bases(1)); emit(u0, issue_Q())
pstamp(u0, sPA)
gend(u0, vm=14, lg=False)
emit(u0, kv_base(1)); emit(u0, issue_A(S0)); emit(u0, issue_PF(1))
emit(u0, wo_base(0)); emit(u0, issue_W())
pstamp(u0, sPA)
gend(u0, vm=26 + NPF, lg=False, tail=[pshift, 's_mov_b32 s%d, 1' % sU])
u0('s_branch L_ld_0n')
l8 = P.block('L_ld_8', ['L_ld_q'])
emit(l8, issue_H(0, S2))
pstamp(l8, sPA)
gend(l8, vm=8, lg=False)
emit(l8, issue_W()); emit(l8, issue_H(1, S2))
pstamp(l8, sPA)
gend(l8, lg=False)
l8('s_mov_b32 s%d, s%d' % (sKSC, sROT8))
emit(l8, g_reads())
emit(l8, issue_A(S1))
pstamp(l8, sPA)
gend(l8, vm=16, tail=['s_mov_b32 s%d, 5' % sCNT, 's_mov_b32 s%d, %d' % (sAS, S0)])
def mstep(b, ops, per=2):
    gr = dma_groups(ops, 13, per)
    weave(b, g_mf(BF0), gr[:12])
    emit(b, g_reads())
    emit(b, gr[12])
    pstamp(b, sPA)
la = P.block('L_ld_a', ['L_ld_8', 'L_ld_a'])
mstep(la, issue_W() + issue_A())
gend(la, vm=16, loop='L_ld_a')
la('s_cmp_eq_u32 s%d, 3' % sU)
la('s_cbranch_scc1 L_ld_16e')
l16 = P.block('L_ld_17', ['L_ld_a'])
mstep(l16, issue_W() + unit_bases(1) + issue_Q())
gend(l16, vm=14)
mstep(l16, kv_base(1) + issue_A(S0) + issue_PF(1) + wo_base(0) + issue_W())
gend(l16, vm=26 + NPF, tail=[pshift, 's_add_u32 s%d, s%d, 1' % (sU, sU)])
l16('s_branch L_ld_0')
WP = [61440, 0, 20480, 40960, 81920, 102400, 61440, 0]
le = P.block('L_ld_16e', ['L_ld_a'])
mstep(le, issue_W() + wo_base(0) + issue_W(WP[0]))
gend(le, vm=10)
mstep(le, issue_W(WP[1]) + issue_W(WP[2]) + issue_W(WP[3]))
gend(le, vm=30, tail=[pshift])
emit(le, issue_W(WP[4]) + issue_W(WP[5]))
ep = P.block('L_g_ep', ['L_ld_16e', 'L_pg_e'])
WHI = 81920
fill = [[] for _ in range(12)]
fill[0] = ['v_add_u32 v%d, %d, v%d' % (aW + t, WHI, aWl + t) for t in range(4)]
fill[1] = ['s_mov_b32 s%d, s%d' % (sKSC, sROT8)] + o_addr()
for t in range(4): fill[3 * t + 2] = w_read(t, aWl, WP[0])
weave(ep, g_mf(BF0), fill)
ep('s_waitcnt vmcnt(0) lgkmcnt(0)')
if OPT['prof']:
    pwrite(ep, [sPC]); pstamp(ep, sPC)
ep('s_barrier')
emit(ep, o_reads(BF0))
emit(ep, issue_Wp(WP[6]))
BFs = [BF0, BF1]
def wsrc(p): return (aW, WP[p] - WHI) if WP[p] >= WHI else (aWl, WP[p])
jobs = [(0, (0, 1, 2, 3), AF), (1, (0, 1, 2, 3), AF)]
for n, p in enumerate(range(2, 8)): jobs.append((p, (0, 1), AF + 8 * (n & 1)))
for n, p in enumerate(range(2, 8)): jobs.append((p, (2, 3), AF + 8 * (n & 1)))
def pub_ops(ts):
    o = []
    for t in ts:
        for qt in range(3):
            tile = qt * 4 + t
            base = tile * 16
            for i in range(8):
                o.append('v_cvt_pk_bf16_f32 v%d, v%d, v%d' % (base + i, base + 2 * i, base + 2 * i + 1))
            o.append('s_add_u32 s%d, s%d, %d' % (sT2, sXO, tile * 2048))
            for h in range(2):
                o.append('buffer_store_dwordx4 %s, v%d, %s, s%d offen offset:%d sc1' % (vr(base + 4 * h, 4), vX, srd(sWS), sT2, h * 1024))
    return o
pre = ['s_lshl_b32 s%d, s%d, 3' % (sKC, sGRP),
       's_add_u32 s%d, s%d, s%d' % (sKC, sKC, sME),
       's_mul_i32 s%d, s%d, 122880' % (sXO, sKC),
       's_mul_i32 s%d, s%d, 24576' % (sT2, sT3),
       's_add_u32 s%d, s%d, s%d' % (sXO, sXO, sT2),
       's_lshl_b32 s%d, s%d, 3' % (sKC, sKC),
       's_add_u32 s%d, s%d, s%d' % (sKC, sKC, sT3),
       's_lshl_b32 s%d, s%d, 2' % (sKC, sKC),
       's_add_u32 s%d, s%d, %d' % (sKC, sKC, FLAGS),
       'v_subrev_u32 v%d, %d, v%d' % (vX, OBUF, aOB),
       'v_mov_b32 v%d, 1' % vWQ,
       'v_mov_b32 v%d, 0' % vV]
pub1 = spread(pub_ops((0, 1)), 36)
for n, (p, ts, af) in enumerate(jobs):
    mf = g_mf(BFs[n & 1], ts, af)
    fill = [[] for _ in mf]
    if n + 1 < len(jobs):
        p1, ts1, af1 = jobs[n + 1]
        if n == 7: fill[0] += ['s_add_u32 s%d, s%d, 2' % (sKSC, sKSC), 's_and_b32 s%d, s%d, 7' % (sKSC, sKSC)]
        fill[0] += o_addr() + o_reads(BFs[(n + 1) & 1])
        base, off = wsrc(p1)
        if n == 5: fill[0] += ['s_waitcnt vmcnt(4)']
        if n == 6: fill[0] += ['s_waitcnt vmcnt(0)']
        if n == 0:
            for t in range(4): fill[3 * t + 2] += w_read(t, base, off)
        elif n == 1:
            for i, t in enumerate(ts1): fill[3 * i + 2] += w_read(t, base, off, af1 + 4 * i)
        else:
            for i, t in enumerate(ts1): fill[1 + i] += w_read(t, base, off, af1 + 4 * i)
    ep.waitfor(rng(BFs[n & 1], 12) | rng(af, 4))
    if n == 1:
        ep.waitfor(rng(AF, 16))
        wp = dma_groups(issue_Wp(WP[7]), 4, 1)
        for i in range(4): fill[3 * i + 1] += wp[i]
    if n == 2: fill[4] += pre
    if n >= 8:
        for i in range(6): fill[i] += pub1[6 * (n - 8) + i]
    weave(ep, mf, fill)
pstamp(ep, sPA)
emit(ep, pub_ops((2, 3)))
pstamp(ep, sPB)
ep('s_waitcnt vmcnt(0)')
ep('s_mov_b64 exec, 1')
ep('buffer_store_dword v%d, v%d, %s, s%d offen sc1' % (vWQ, vV, srd(sWS), sKC))
ep('s_mov_b64 exec, -1')
if OPT['prof']:
    ep('s_waitcnt lgkmcnt(0)')
    pwrite(ep, [sPC, sPA, sPB]); pstamp(ep, sPC)
    ep('s_branch L_fin')
else:
    ep('s_endpgm')

RAW, RACC, RA, rO, rO2, rOUT, rF, rFO = 0, 160, 240, 244, 245, 246, 247, 248
sISS, sLAND, sNEW, sTM, sMSK, sOO, sVL, sVH, sNX, sSB, sFB = 36, 38, 40, 42, 44, 46, 52, 53, 54, 55, 56
r = P.block('L_red', ['L_att_fin'])
r('v_mbcnt_lo_u32_b32 v0, -1, 0')
r('v_mbcnt_hi_u32_b32 v0, -1, v0')
r('s_lshl_b32 s%d, s%d, 3' % (sT, sGRP))
r('v_mov_b32 v%d, s%d' % (rO, sT))
r('global_load_dword v%d, v%d, s[%d:%d] sc1' % (rF, rO, sDBG, sDBG + 1))
r('v_lshlrev_b32 v%d, 2, v0' % rFO)
r('v_and_b32 v1, 31, v0')
r('v_lshrrev_b32 v2, 5, v0')
r('v_mul_u32_u24 v%d, 2560, v1' % rOUT)
r('v_lshl_add_u32 v%d, v2, 4, v%d' % (rOUT, rOUT))
r('v_bfe_u32 v3, v1, 2, 1')
r('v_xor_b32 v3, v3, v2')
r('v_lshrrev_b32 v4, 4, v1')
r('v_or_b32 v3, v3, v4')
r('v_lshlrev_b32 v3, 3, v3')
r('v_bfe_u32 v4, v1, 3, 1')
r('v_bfe_u32 v5, v1, 1, 1')
r('v_lshl_or_b32 v4, v4, 1, v5')
r('v_or_b32 v3, v3, v4')
r('v_and_b32 v4, 1, v1')
r('v_lshlrev_b32 v4, 4, v4')
r('v_mov_b32 v5, 0x3f80')
r('v_lshlrev_b32 v4, v4, v5')
for i in range(4):
    r('v_cmp_eq_u32 vcc, %d, v3' % i)
    r('v_cndmask_b32 v%d, 0, v4, vcc' % (RA + i))
r('s_mul_i32 s%d, s%d, 15' % (sKC, sME))
r('s_mul_i32 s%d, s%d, 5' % (sT, sWAVE))
r('s_add_u32 s%d, s%d, s%d' % (sKC, sKC, sT))
r('s_mul_i32 s%d, s%d, %d' % (sSB, sGRP, 8 * 122880))
r('s_lshl_b32 s%d, s%d, 10' % (sT2, sKC))
r('s_add_u32 s%d, s%d, s%d' % (sSB, sSB, sT2))
r('s_mul_i32 s%d, s%d, 43' % (sVL, sKC))
r('s_lshr_b32 s%d, s%d, 10' % (sVL, sVL))
r('s_add_u32 s%d, s%d, 4' % (sVH, sKC))
r('s_mul_i32 s%d, s%d, 43' % (sVH, sVH))
r('s_lshr_b32 s%d, s%d, 10' % (sVH, sVH))
r('s_lshl_b32 s%d, s%d, 8' % (sFB, sGRP))
r('s_add_u32 s%d, s%d, %d' % (sFB, sFB, FLAGS))
r('s_mul_i32 s%d, s%d, %d' % (sT1, sB, 96 * 2560))
r('s_mul_i32 s%d, s%d, 1280' % (sT2, sBR))
r('s_add_u32 s%d, s%d, s%d' % (sT1, sT1, sT2))
def out_off(b, dst, chunk):
    b('s_mul_i32 s%d, s%d, 43' % (sT, chunk))
    b('s_lshr_b32 s%d, s%d, 10' % (sT, sT))
    b('s_mul_i32 s%d, s%d, 24' % (sT2, sT))
    b('s_sub_u32 s%d, s%d, s%d' % (sT2, chunk, sT2))
    b('s_lshl_b32 s%d, s%d, 8' % (dst, sT))
    b('s_and_b32 s%d, s%d, 7' % (sT, sT2))
    b('s_lshl_b32 s%d, s%d, 5' % (sT, sT))
    b('s_add_u32 s%d, s%d, s%d' % (dst, dst, sT))
    b('s_lshr_b32 s%d, s%d, 3' % (sT2, sT2))
    b('s_mul_i32 s%d, s%d, %d' % (sT2, sT2, 32 * 2560))
    b('s_add_u32 s%d, s%d, s%d' % (dst, dst, sT2))
    b('s_add_u32 s%d, s%d, s%d' % (dst, dst, sT1))
for c in range(5):
    out_off(r, sOO + c, sKC)
    if c < 4: r('s_add_u32 s%d, s%d, 1' % (sKC, sKC))
r('s_mov_b32 s%d, 0x01010101' % sMSK)
r('s_mov_b32 s%d, 0x01010101' % (sMSK + 1))
r('s_mov_b64 s[%d:%d], 0' % (sISS, sISS + 1))
r('s_mov_b32 s%d, 0' % sNX)
r('s_mov_b32 s%d, 0x40000' % sCNT)
rc = P.block('L_red_c', ['L_red', 'L_red_c2'])
rc('s_waitcnt vmcnt(0)')
rc('v_readfirstlane_b32 s%d, v%d' % (sT, rF))
rc('s_sub_u32 s%d, s%d, 1' % (sCNT, sCNT))
rc('s_cmp_ge_u32 s%d, 8' % sT)
rc('s_cbranch_scc1 L_red_s')
rc2 = P.block('L_red_c2', ['L_red_c'])
rc2('global_load_dword v%d, v%d, s[%d:%d] sc1' % (rF, rO, sDBG, sDBG + 1))
rc2('s_cmp_lg_u32 s%d, 0' % sCNT)
rc2('s_cbranch_scc1 L_red_c')
rs = P.block('L_red_s', ['L_red_c', 'L_red_c2'])
rs('v_lshlrev_b32 v%d, 4, v0' % rO)
rs('v_add_u32 v%d, 4096, v%d' % (rO2, rO))
if OPT['prof']:
    rs('s_waitcnt lgkmcnt(0)')
    pwrite(rs, [sPC]); pstamp(rs, sPC)
rl = P.block('L_red_l', ['L_red_s', 'L_red_n'])
rl('s_cmp_eq_u64 s[%d:%d], s[%d:%d]' % (sISS, sISS + 1, sMSK, sMSK + 1))
rl('s_cbranch_scc1 L_red_w')
rl('buffer_load_dword v%d, v%d, %s, s%d offen sc1' % (rF, rFO, srd(sWS), sFB))
rl('s_waitcnt vmcnt(0)')
rl('v_cmp_eq_u32 vcc, 1, v%d' % rF)
rl('s_mov_b64 s[%d:%d], s[%d:%d]' % (sLAND, sLAND + 1, sISS, sISS + 1))
rl('s_lshr_b64 s[%d:%d], vcc, s%d' % (sNEW, sNEW + 1, sVL))
rl('s_lshr_b64 s[%d:%d], vcc, s%d' % (sTM, sTM + 1, sVH))
rl('s_and_b64 s[%d:%d], s[%d:%d], s[%d:%d]' % (sNEW, sNEW + 1, sNEW, sNEW + 1, sTM, sTM + 1))
rl('s_and_b64 s[%d:%d], s[%d:%d], s[%d:%d]' % (sNEW, sNEW + 1, sNEW, sNEW + 1, sMSK, sMSK + 1))
rl('s_andn2_b64 s[%d:%d], s[%d:%d], s[%d:%d]' % (sNEW, sNEW + 1, sNEW, sNEW + 1, sISS, sISS + 1))
rl('s_cbranch_scc0 L_red_m')
rl('s_or_b64 s[%d:%d], s[%d:%d], s[%d:%d]' % (sISS, sISS + 1, sISS, sISS + 1, sNEW, sNEW + 1))
for src in range(8):
    rl('s_bitcmp1_b64 s[%d:%d], %d' % (sNEW, sNEW + 1, 8 * src))
    rl('s_cbranch_scc0 L_red_i%d' % src)
    rl('s_add_u32 s%d, s%d, %d' % (sT, sSB, src * 122880))
    for c in range(5):
        rl('buffer_load_dwordx4 %s, v%d, %s, s%d offen offset:%d sc1' % (vr(RAW + 20 * src + 4 * c, 4), rO2 if c == 4 else rO, srd(sWS), sT, (c & 3) * 1024))
    rl.raw('L_red_i%d:' % src)
rl('s_branch L_red_m')
rw = P.block('L_red_w', ['L_red_l'])
rw('s_waitcnt vmcnt(0)')
rw('s_mov_b64 s[%d:%d], s[%d:%d]' % (sLAND, sLAND + 1, sISS, sISS + 1))
rm = P.block('L_red_m', ['L_red_l', 'L_red_w'])
for src in range(8):
    rm('s_cmp_lg_u32 s%d, %d' % (sNX, src))
    rm('s_cbranch_scc1 L_red_a%d' % src)
    rm('s_bitcmp1_b64 s[%d:%d], %d' % (sLAND, sLAND + 1, 8 * src))
    rm('s_cbranch_scc0 L_red_n')
    for c in range(5):
        acc = vr(RACC + 16 * c, 16)
        rm('%s %s, %s, %s, %s' % (MF, acc, vr(RA, 4), vr(RAW + 20 * src + 4 * c, 4), acc if src else '0'))
    rm('s_add_u32 s%d, s%d, 1' % (sNX, sNX))
    rm.raw('L_red_a%d:' % src)
rm('s_branch L_red_e')
rn = P.block('L_red_n', ['L_red_m'])
rn('s_sub_u32 s%d, s%d, 1' % (sCNT, sCNT))
rn('s_cmp_gt_i32 s%d, 0' % sCNT)
rn('s_cbranch_scc1 L_red_l')
re_ = P.block('L_red_e', ['L_red_m', 'L_red_n'])
pstamp(re_, sPA)
for c in range(5):
    acc = RACC + 16 * c
    for i in range(4):
        re_('v_cvt_pk_bf16_f32 v%d, v%d, v%d' % (acc + i, acc + 2 * i, acc + 2 * i + 1))
    re_('buffer_store_dwordx4 %s, v%d, %s, s%d offen' % (vr(acc, 4), rOUT, srd(sOUT), sOO + c))
f = P.block('L_fin', ['L_red_e', 'L_g_ep'])
if OPT['prof']:
    f('s_waitcnt vmcnt(0) lgkmcnt(0)')
    pwrite(f, [sPC, sPA]); pstamp(f, sPC)
    f('s_waitcnt lgkmcnt(0)')
    pwrite(f, [sPC])
    f('s_lshl_b32 s%d, s2, 3' % sT2)
    f('s_add_u32 s%d, s%d, s%d' % (sT2, sT2, sWAVE))
    f('s_mul_i32 s%d, s%d, 1280' % (sT2, sT2))
    f('s_add_u32 s%d, s%d, %d' % (sT2, sT2, 72 << 20))
    f('v_mbcnt_lo_u32_b32 v4, -1, 0')
    f('v_mbcnt_hi_u32_b32 v4, -1, v4')
    f('v_lshlrev_b32 v4, 2, v4')
    for i in range(5):
        f('buffer_store_dword v%d, v4, %s, s%d offen offset:%d' % (254 - i, srd(sWS), sT2, 256 * i))
if OPT['stamps']:
    f('s_waitcnt vmcnt(0)')
    f('s_cmp_lg_u32 s%d, 0' % sWAVE)
    f('s_cbranch_scc1 L_end')
    f('s_memrealtime s[%d:%d]' % (sT, sT + 1))
    f('s_waitcnt lgkmcnt(0)')
    f('v_mov_b32 v0, s%d' % sST0)
    f('v_mov_b32 v1, s%d' % (sST0 + 1))
    f('v_mov_b32 v2, s%d' % sT)
    f('v_mov_b32 v3, s%d' % (sT + 1))
    f('s_lshl_b32 s%d, s2, 4' % sT2)
    f('s_add_u32 s%d, s%d, %d' % (sT2, sT2, 64 << 20))
    f('v_mov_b32 v4, 0')
    f('s_mov_b64 exec, 1')
    f('buffer_store_dwordx4 v[0:3], v4, %s, s%d offen' % (srd(sWS), sT2))
en = P.block('L_end', ['L_fin'])
en('s_endpgm')

for (name, X, frm) in slow:
    s = P.block('L_slow_%s' % name, [frm])
    s('s_nop 15')
    s('v_mov_b32 v%d, v%d' % (TM + 1, TM))
    s('v_permlane32_swap_b32 v%d, v%d' % (TM, TM + 1))
    s('v_max3_f32 v%d, v%d, v%d, 0' % (TM, TM, TM + 1))
    s('v_exp_f32 v%d, -v%d' % (TM + 1, TM))
    for i in range(16):
        s('v_sub_f32 v%d, v%d, v%d' % (X + i, X + i, TM))
        s('v_sub_f32 v%d, v%d, v%d' % (NM + i, NM + i, TM))
    for i in range(64):
        s('v_mul_f32 v%d, v%d, v%d' % (OA + i, TM + 1, OA + i))
    s('v_mul_f32 v%d, v%d, v%d' % (LS, TM + 1, LS))
    s('v_mul_f32 v%d, v%d, v%d' % (LS + 1, TM + 1, LS + 1))
    s('s_nop 1')
    s('s_branch L_back_%s' % name)

body = P.finish()
hdr = open('concat_heads__gqa_block_cached__gqa_block_cached__near_ridge.s.ref').read().split('; Override launch')[0]
out = hdr + """; Override launch geometry by editing the next line (default: block=256,
; grid=ceil(out_elems/256), lds=0). Harness parses it; keep it on one line.
; @launch grid=(256,1,1) block=(512,1,1) lds=%d
.amdgcn_target "amdgcn-amd-amdhsa--gfx950"
.text
.globl %s
.p2align 8
.type %s,@function
%s:
%s
.section .rodata,"a"
.p2align 6
.amdhsa_kernel %s
  .amdhsa_next_free_vgpr 256
  .amdhsa_next_free_sgpr 102
  .amdhsa_accum_offset 256
  .amdhsa_group_segment_fixed_size 0
  .amdhsa_kernarg_size 104
  .amdhsa_user_sgpr_count 2
  .amdhsa_user_sgpr_kernarg_segment_ptr 1
  .amdhsa_system_sgpr_workgroup_id_x 1
.end_amdhsa_kernel
""" % (LDS_BYTES, KN, KN, KN, body, KN)
open(sys.argv[1], 'w').write(out)
```

```python
import sys, math, struct
sys.path.insert(0, 'gen')
from asmlib import *

KN = "concat_heads__gqa_block_cached__gqa_block_cached__near_ridge_kernel"
OPT = dict(stamps=0, nt=1, rot=1, prof=0, krot=1, pkq=0, pko=0, patt=1, pq=2, pf=3, pa=2, pb=1, pc=0, n31=3, m3=11, bld=-1, qpf=2, wpf=5, thr=0, fine=0)
for a in sys.argv[2:]:
    k, v = a.split('='); assert k in OPT, k; OPT[k] = int(v)

SLOT = 32768
S0, S1, S2, W0, W1, BUF = 0, 32768, 65536, 98304, 118784, 139264
QS0, QST = 65536, 28672
FLAGS = 40 << 20
LDS_BYTES = 163840
MF = 'v_mfma_f32_32x32x16_bf16'
NT = ' nt' if OPT['nt'] else ''
OB = [S2, W0, BUF, S1]
ASL, BSL = W0 + 24576, (S2 + 24576, S2 + 28672, S1 + 24576, S1 + 28672)

sWAVE = 3
sK, sV, sX, sWQ, sWO, sWS, sOUT = 4, 8, 12, 16, 20, 24, 28
sDBG = 32
sU, sCNT = 34, 35
sB, sBR, sH0, sME, sGRP = 62, 63, 64, 65, 66
sKVO, sWQO, sXO, sKC, sMS, sT, sT1, sWOB, sWSL = 67, 68, 69, 70, 71, 72, 73, 74, 75
sKS, sN, sT2, sT3, sDELTA, sSLOT, sROT, sLJ, sPK, sAS = 76, 77, 78, 79, 80, 81, 82, 83, 84, 85
sSC, sTHR = 86, 88
sKROT = 89
sST0 = 90
sRB = 92
sPI = 93
sPA, sPB, sPC = 94, 96, 98
sJ8, sJ2 = 100, 101
def srd(n): return 's[%d:%d]' % (n, n + 3)
def vr(a, n): return 'v[%d:%d]' % (a, a + n - 1)

class Prog:
    def __init__(self):
        self.blocks = []; self.preds = {}
    def block(self, name, preds, pend=None, label=True):
        b = Block(name)
        if pend is not None: b.pend = list(pend)
        if label: b.raw(name + ':')
        self.blocks.append(b); self.preds[name] = preds
        return b
    def tails(self, name, need=20, depth=0):
        res = []
        for p in self.preds[name]:
            pb = [b for b in self.blocks if b.name == p]
            assert pb, (name, p)
            ins = pb[0].ins
            st = sum(i.states() for i in ins)
            if st >= need or depth > 3 or not self.preds[p]:
                res.append(list(ins[-40:]))
            else:
                for t in self.tails(p, need - st, depth + 1):
                    res.append(t + list(ins))
        return res
    def finish(self):
        for b in self.blocks:
            b.ins = fix_hazards(b.ins, self.tails(b.name))
        return '\n'.join(text_of(b.ins) for b in self.blocks)

P = Prog()
def pstamp(b, reg):
    if OPT['prof']: b('s_memtime s[%d:%d]' % (reg, reg + 1))
def pwrite(b, regs):
    if OPT['prof']:
        for r_ in regs:
            b('s_mov_b32 m0, s%d' % sPI)
            b('s_nop 0')
            b('v_writelane_b32 v250, s%d, m0' % (r_,))
            b('s_add_u32 s%d, s%d, 1' % (sPI, sPI))
def pshift(b):
    if OPT['prof']:
        for i in (254, 253, 252, 251): b('v_mov_b32 v%d, v%d' % (i, i - 1))
        b('s_mov_b32 s%d, 0' % sPI)
def pmark(b, first=False):
    if OPT['prof']:
        b('s_memtime s[%d:%d]' % (sPA, sPA + 1))
        b('s_waitcnt lgkmcnt(0)')
        pwrite(b, [sPC, sPA] if first else [sPA])
def emit(b, ops):
    for o in ops:
        if callable(o): o(b)
        else: b(o)
def weave(b, mf, fill):
    assert len(mf) == len(fill), (len(mf), len(fill))
    for m, f in zip(mf, fill):
        b(m)
        emit(b, f)
def split(ops, counts):
    out = []; k = 0
    for c in counts:
        out.append(list(ops[k:k + c])); k += c
    assert k >= len(ops), (k, len(ops))
    return out
def spread(ops, n):
    out = []; k = 0
    for i in range(n):
        m = (len(ops) * (i + 1)) // n
        out.append(list(ops[k:m])); k = m
    return out
def zipf(*lists):
    return [sum((l[i] for l in lists), []) for i in range(len(lists[0]))]
def rng(a, n): return set(range(a, a + n))
def W(regs): return lambda b: b.waitfor(regs)

vK, vV, vWQ, vX = 242, 246, 247, 248
e = P.block('L_entry', [], label=False)
e('s_cmp_ge_u32 s2, 256')
e('s_cbranch_scc1 L_end')
if OPT['stamps']:
    e('s_memrealtime s[%d:%d]' % (sST0, sST0 + 1))
if OPT['prof']: e('s_memtime s[%d:%d]' % (sPA, sPA + 1))
e('s_load_dwordx16 s[36:51], s[0:1], 0')
e('s_load_dwordx8 s[52:59], s[0:1], 64')
e('s_load_dwordx2 s[60:61], s[0:1], 96')
e('v_lshrrev_b32 v1, 6, v0')
e('v_and_b32 v0, 63, v0')
e('v_readfirstlane_b32 s%d, v1' % sWAVE)
e('s_and_b32 s%d, s2, 7' % sT)
e('s_lshr_b32 s%d, s2, 3' % sT2)
e('s_lshr_b32 s%d, s%d, 2' % (sBR, sT))
e('s_and_b32 s%d, s%d, 3' % (sT, sT))
e('s_lshr_b32 s%d, s%d, 1' % (sB, sT2))
e('s_and_b32 s%d, s%d, 1' % (sT2, sT2))
e('s_lshl_b32 s%d, s%d, 1' % (sME, sT))
e('s_add_u32 s%d, s%d, s%d' % (sME, sME, sT2))
e('s_lshl_b32 s%d, s%d, 2' % (sH0, sME))
e('s_mul_i32 s%d, s%d, 5' % (sT2, sT2))
if OPT['krot']:
    e('s_lshr_b32 s%d, s%d, 1' % (sKROT, sB))
    e('s_add_u32 s%d, s%d, s%d' % (sKROT, sKROT, sT))
    e('s_add_u32 s%d, s%d, s%d' % (sKROT, sKROT, sT2))
    e('s_and_b32 s%d, s%d, 7' % (sKROT, sKROT))
    e('s_lshl_b32 s%d, s%d, 14' % (sKROT, sKROT))
else: e('s_mov_b32 s%d, 0' % sKROT)
e('s_lshl_b32 s%d, s%d, 4' % (sGRP, sBR))
e('s_add_u32 s%d, s%d, s%d' % (sGRP, sGRP, sB))
if OPT['rot']:
    e('s_add_u32 s%d, s%d, s%d' % (sROT, sB, sT2))
    e('s_cmp_ge_u32 s%d, 10' % sROT)
    e('s_cselect_b32 s%d, 10, 0' % sT2)
    e('s_sub_u32 s%d, s%d, s%d' % (sROT, sROT, sT2))
    e('s_cmp_ge_u32 s%d, 10' % sROT)
    e('s_cselect_b32 s%d, 10, 0' % sT2)
    e('s_sub_u32 s%d, s%d, s%d' % (sROT, sROT, sT2))
else:
    e('s_mov_b32 s%d, 0' % sROT)
e('s_lshr_b32 s%d, s%d, 2' % (sLJ, sWAVE))
e('s_lshl_b32 s%d, s%d, 13' % (sJ8, sLJ))
e('s_lshl_b32 s%d, s%d, 11' % (sJ2, sLJ))
e('v_lshrrev_b32 v4, 4, v0')
e('v_and_b32 v5, 15, v0')
e('v_lshlrev_b32 v6, 2, v4')
e('v_xor_b32 v6, v6, v5')
e('v_lshlrev_b32 v6, 4, v6')
e('v_lshl_add_u32 v%d, v4, 13, v6' % vWQ)
e('v_lshl_add_u32 v%d, v4, 8, v6' % vV)
e('v_and_b32 v6, 7, v0')
e('v_xor_b32 v6, v6, v4')
e('s_lshl_b32 s%d, s%d, 2' % (sT, sLJ))
e('v_xor_b32 v6, s%d, v6' % sT)
e('v_lshlrev_b32 v6, 4, v6')
e('v_lshrrev_b32 v7, 3, v0')
e('v_mul_u32_u24 v7, 1280, v7')
e('v_add_u32 v%d, v7, v6' % vX)
e('s_mul_i32 s%d, s%d, 122880' % (sXO, sB))
e('s_mul_i32 s%d, s%d, 10240' % (sT, sLJ))
e('s_add_u32 s%d, s%d, s%d' % (sXO, sXO, sT))
e('s_lshl_b32 s%d, s%d, 8' % (sWQO, sH0))
e('s_lshl_b32 s%d, s%d, 18' % (sT, sLJ))
e('s_add_u32 s%d, s%d, s%d' % (sWQO, sWQO, sT))
e('s_mov_b32 s%d, s%d' % (sKC, sROT))
e('s_mov_b32 s%d, %d' % (sMS, QS0))
e('s_mov_b32 s%d, 0' % sU)
if OPT['prof']: e('s_mov_b32 s%d, 0' % sPI)
for d, size in ((sX, 16*96*640*2), (sWQ, 640*4096*2)):
    e('s_mov_b32 s%d, %d' % (d + 2, size))
    e('s_mov_b32 s%d, 0x20000' % (d + 3))
e('s_and_b32 s%d, s%d, 3' % (sT3, sWAVE))
e('s_waitcnt lgkmcnt(0)')
if OPT['prof']: e('s_memtime s[%d:%d]' % (sPB, sPB + 1))
e('s_cmp_eq_u32 s%d, 0' % sBR)
for (dst, a, b_) in ((sX, 36, 46), (sWQ, 42, 52), (sK, 38, 48), (sV, 40, 50), (sWO, 44, 54)):
    e('s_cselect_b64 s[%d:%d], s[%d:%d], s[%d:%d]' % (dst, dst + 1, a, a + 1, b_, b_ + 1))
for d in (sX, sWQ):
    e('s_and_b32 s%d, s%d, 0xffff' % (d + 1, d + 1))
e('s_cmp_lg_u32 s%d, 3' % sT3)
e('s_cbranch_scc1 L_rest')
def rest_srd(b):
    for (dst, size) in ((sK, 16*32*512*128*2), (sV, 16*32*512*128*2), (sWO, 640*4096*2)):
        b('s_mov_b32 s%d, %d' % (dst + 2, size))
        b('s_mov_b32 s%d, 0x20000' % (dst + 3))
    for (dst, a, size) in ((sOUT, 56, 16*96*1280*2), (sWS, 60, 293339136)):
        b('s_mov_b64 s[%d:%d], s[%d:%d]' % (dst, dst + 1, a, a + 1))
        b('s_mov_b32 s%d, %d' % (dst + 2, size))
        b('s_mov_b32 s%d, 0x20000' % (dst + 3))
    for d in (sK, sV, sWO, sOUT, sWS):
        b('s_and_b32 s%d, s%d, 0xffff' % (d + 1, d + 1))
    b('s_mov_b64 s[%d:%d], s[58:59]' % (sDBG, sDBG + 1))

def issue_Q():
    o = ['s_add_u32 m0, s%d, s%d' % (sMS, sJ8),
         's_lshl_b32 s%d, s%d, 19' % (sT, sKC),
         's_add_u32 s%d, s%d, s%d' % (sT, sT, sWQO)]
    RS = 32768
    for m in range(8):
        if m == 4:
            o += ['s_add_u32 m0, m0, 4096', 's_add_u32 s%d, s%d, %d' % (sT, sT, RS + 3072)]
        elif m: o.append('s_add_u32 s%d, s%d, %d' % (sT, sT, RS - 1024))
        o.append('buffer_load_dwordx4 v%d, %s, s%d offen offset:%d lds' % (vWQ, srd(sWQ), sT, (m & 3) * 1024))
    o += ['s_lshr_b32 s%d, s%d, 1' % (sT2, sJ2),
          's_add_u32 s%d, s%d, 16384' % (sT2, sT2),
          's_add_u32 m0, s%d, s%d' % (sMS, sT2),
          's_lshl_b32 s%d, s%d, 7' % (sT, sKC),
          's_add_u32 s%d, s%d, s%d' % (sT, sT, sXO)]
    for m in range(6):
        if m & 1: o.append('s_add_u32 s%d, s%d, %d' % (sT, sT, 20480 - 2048))
        elif m: o += ['s_add_u32 m0, m0, 4096', 's_add_u32 s%d, s%d, %d' % (sT, sT, 20480 + 2048)]
        o.append('buffer_load_dwordx4 v%d, %s, s%d offen offset:%d lds' % (vX, srd(sX), sT, (m & 1) * 2048))
    o += ['s_add_u32 s%d, s%d, 1' % (sKC, sKC),
          's_cmp_eq_u32 s%d, 10' % sKC,
          's_cselect_b32 s%d, 0, s%d' % (sKC, sKC),
          's_add_u32 s%d, s%d, %d' % (sMS, sMS, QST),
          's_cmp_eq_u32 s%d, %d' % (sMS, QS0 + 3 * QST),
          's_cselect_b32 s%d, %d, s%d' % (sMS, QS0, sMS)]
    return o
def issue_H(half, ng=2):
    o = []
    for gq in range(ng):
        off = 16384 * half + 4096 * gq
        if off: o.append('s_add_u32 m0, s%d, %d' % (sAS, off))
        else: o.append('s_mov_b32 m0, s%d' % sAS)
        if gq: o.append('s_add_u32 s%d, s%d, %d' % (sT, sKVO, 4096 * gq))
        for e_ in range(4):
            o.append('buffer_load_dwordx4 v%d, %s, s%d offen offset:%d%s lds' % (vV if half else vK + e_, srd(sV if half else sK), sT if gq else sKVO, e_ * 1024, NT))
    if half:
        o += ['s_add_u32 s%d, s%d, 16384' % (sKVO, sKVO),
              's_and_b32 s%d, s%d, 0x1c000' % (sT2, sKVO),
              's_cselect_b32 s%d, 0, 0x20000' % sT2,
              's_sub_u32 s%d, s%d, s%d' % (sKVO, sKVO, sT2),
              's_add_u32 s%d, s%d, %d' % (sAS, sAS, SLOT),
              's_cmp_ge_u32 s%d, %d' % (sAS, 3 * SLOT),
              's_cselect_b32 s%d, s%d, s%d' % (sAS, sJ8, sAS)]
    return o
def issue_A(ng=2): return issue_H(0, ng) + issue_H(1, ng)
def issue_WQ():
    o = []
    for i in range(5):
        o += ['s_lshl_b32 s%d, s%d, 17' % (sT, sKS),
              's_add_u32 s%d, s%d, s%d' % (sT, sT, sWQO)]
        if i: o.append('s_add_u32 m0, m0, 4096')
        else: o.append('s_mov_b32 m0, s%d' % sWSL)
        o += ['s_add_u32 s%d, s%d, 1' % (sKS, sKS),
              'buffer_load_dwordx4 v%d, %s, s%d offen lds' % (vWQ, srd(sWQ), sT),
              's_add_u32 s%d, s%d, %d' % (sT, sT, 32768 - 1024),
              's_cmp_eq_u32 s%d, 40' % sKS,
              'buffer_load_dwordx4 v%d, %s, s%d offen offset:1024 lds' % (vWQ, srd(sWQ), sT),
              's_cselect_b32 s%d, 0, s%d' % (sKS, sKS)]
    o += ['s_xor_b32 s%d, s%d, %d' % (sWSL, sWSL, W0 ^ W1)]
    return o
assert (W0 ^ W1) & 2048 == 0 and W0 & 2048 == 0
def gend(b, vm=None, loop=None, lg=False, tail=None, cmp=None):
    if lg or OPT['prof']: b('s_waitcnt lgkmcnt(0)')
    pstamp(b, sPB)
    if vm is not None: b('s_waitcnt vmcnt(%d)' % vm)
    if OPT['prof']:
        b('s_waitcnt lgkmcnt(0)')
        pwrite(b, [sPC, sPA, sPB]); pstamp(b, sPC)
    if tail: emit(b, tail)
    if loop and not cmp:
        b('s_sub_u32 s%d, s%d, 1' % (sCNT, sCNT))
        b('s_cmp_lg_u32 s%d, 0' % sCNT)
    if cmp: b(cmp)
    b('s_barrier')
    if loop: b('s_cbranch_scc1 %s' % loop)
def pshift_unit(b, lab):
    if OPT['prof']:
        b('s_and_b32 s%d, s%d, 7' % (sT, sN))
        b('s_cmp_lg_u32 s%d, 7' % sT)
        b('s_cbranch_scc1 %s' % lab)
        pshift(b)
        b.raw(lab + ':')

aPK = 240
ld = P.block('L_ld', ['L_entry'])
pstamp(ld, 50)
emit(ld, issue_Q()); pstamp(ld, 52); emit(ld, issue_Q())
pstamp(ld, 54)
rest_srd(ld)
ld('v_xor_b32 v6, v5, v4')
ld('v_lshlrev_b32 v6, 4, v6')
ld('v_lshl_add_u32 v6, v4, 8, v6')
for e_ in range(4):
    ld('v_xor_b32 v%d, %d, v6' % (vK + e_, 64 * e_))
ld('v_lshlrev_b32 v%d, 4, v0' % aPK)
ld('v_add_u32 v%d, %d, v%d' % (aPK + 1, BUF, aPK))
ld('s_lshl_b32 s%d, s%d, 5' % (sT2, sB))
ld('s_add_u32 s%d, s%d, s%d' % (sT, sH0, sT2))
ld('s_lshl_b32 s%d, s%d, 17' % (sKVO, sT))
ld('s_add_u32 s%d, s%d, s%d' % (sKVO, sKVO, sJ8))
ld('s_add_u32 s%d, s%d, s%d' % (sKVO, sKVO, sKROT))
ld('s_mov_b32 s%d, s%d' % (sAS, sJ8))
ld('s_add_u32 s%d, s%d, %d' % (sWSL, sJ2, W0))
ld('s_lshl_b32 s%d, s%d, 2' % (sKS, sROT))
ld('s_mul_i32 s%d, s%d, 100' % (sPK, sLJ))
ld('s_add_u32 s%d, s%d, 9' % (sPK, sPK))
if OPT['prof']:
    pstamp(ld, 56)
    ld('s_waitcnt lgkmcnt(0)')
    for i, r_ in enumerate((sPA, sPB, 50, 52, 54, 56)): ld('v_writelane_b32 v250, s%d, %d' % (r_, 56 + i))
ld('s_waitcnt vmcnt(14)')
pstamp(ld, sPC)
ld('s_barrier')
emit(ld, issue_Q() + issue_A())
pstamp(ld, sPA)
gend(ld, vm=30)
emit(ld, issue_Q())
pstamp(ld, sPA)
gend(ld, vm=30, tail=['s_mov_b32 s%d, 5' % sCNT])
lq = P.block('L_ld_q', ['L_ld', 'L_ld_q'])
emit(lq, issue_Q())
pstamp(lq, sPA)
gend(lq, vm=14, loop='L_ld_q')
l7 = P.block('L_ld_7', ['L_ld_q'])
emit(l7, issue_Q() + issue_H(0))
pstamp(l7, sPA)
gend(l7, vm=22)
l7('s_mul_i32 s%d, s%d, %d' % (sT, sLJ, (1 << 18) - (1 << 16)))
l7('s_sub_u32 s%d, s%d, s%d' % (sWQO, sWQO, sT))
l7('s_add_u32 s%d, s%d, 256' % (sWQO, sWQO))
emit(l7, issue_WQ() + issue_H(1))
pstamp(l7, sPA)
gend(l7, vm=26)
pstamp(l7, sPA)
gend(l7, vm=8, tail=['s_mov_b32 s%d, 0' % sN])
def bump(reg, at, by):
    return ['s_and_b32 s%d, s%d, 7' % (sT, sN),
            's_cmp_eq_u32 s%d, %d' % (sT, at),
            's_cselect_b32 s%d, %d, 0' % (sT, by),
            's_add_u32 s%d, s%d, s%d' % (reg, reg, sT)]
lm = P.block('L_ld_m', ['L_ld_7', 'L_ld_mb'])
emit(lm, bump(sWQO, 7, 256) + issue_WQ() + bump(sKVO, 6, 0x20000) + issue_A())
pstamp(lm, sPA)
lm('s_cmp_eq_u32 s%d, s%d' % (sN, sPK))
lm('s_cbranch_scc1 L_park')
lb = P.block('L_ld_mb', ['L_ld_m', 'L_park0', 'L_park1'])
gend(lb, vm=16, loop='L_ld_m', tail=[lambda b: pshift_unit(b, 'L_ps1'), 's_add_u32 s%d, s%d, 1' % (sN, sN)], cmp='s_cmp_lg_u32 s%d, 23' % sN)
lt = P.block('L_ld_t', ['L_ld_mb'])
emit(lt, issue_A())
pstamp(lt, sPA)
gend(lt, vm=16, tail=[pshift], cmp='s_cmp_lg_u32 s%d, 0' % sLJ, loop='L_a24')
lw = P.block('L_ld_w', ['L_ld_t'])
def unpark(b, u, dst):
    b('v_add_u32 v%d, %d, v%d' % (aPK + 1, dst, aPK))
    for i in range(24): b('ds_write_b128 v%d, %s offset:%d' % (aPK + 1, vr(96 * u + 4 * i, 4), 1024 * i))
for n in range(24, 32):
    if n < 30: emit(lw, issue_A(4))
    if n == 30:
        lw('v_lshrrev_b32 v%d, 5, v%d' % (vK, aPK))
        lw('v_mul_u32_u24 v%d, 1280, v%d' % (vK, vK))
        lw('v_and_b32 v%d, 16, v%d' % (vK + 1, aPK))
        lw('v_lshl_add_u32 v%d, v%d, 3, v%d' % (vK, vK + 1, vK))
        lw('s_mul_i32 s%d, s%d, %d' % (sT, sH0, 128 * 1280))
        lw('s_mul_i32 s%d, s%d, 40960' % (sT2, sB))
        lw('s_add_u32 s%d, s%d, s%d' % (sT, sT, sT2))
        for i in range(3): lw('buffer_load_dword v%d, v%d, %s, s%d offen offset:%d' % (255, vK, srd(sWO), sT, 512 + 256 * i))
    if n == 24: unpark(lw, 0, W0)
    if n == 27: unpark(lw, 1, W0)
    if n == 30: unpark(lw, 0, OB[0])
    pstamp(lw, sPA)
    gend(lw, vm=32 if n < 30 else (3 if n == 30 else None), lg=True, tail=[pshift] if n == 31 else None)
if OPT['prof']:
    lw('s_waitcnt lgkmcnt(0)')
    pwrite(lw, [sPC]); pstamp(lw, sPC)
lw('s_barrier')
lw('s_branch L_tb')
pk = P.block('L_park', ['L_ld_m'])
pk('s_cmp_eq_u32 s%d, 17' % sN)
pk('s_cbranch_scc1 L_park1')
for n_, nm in enumerate(('L_park0', 'L_park1')):
    p_ = P.block(nm, ['L_park'])
    for i in range(24): p_('ds_read_b128 %s, v%d offset:%d' % (vr(96 * n_ + 4 * i, 4), aPK + 1, 1024 * i))
    p_('s_add_u32 s%d, s%d, 8' % (sPK, sPK))
    p_('s_waitcnt lgkmcnt(0)')
    p_('s_branch L_ld_mb')

rs_ = P.block('L_rest', ['L_entry'])
rest_srd(rs_)
rs_('v_lshrrev_b32 v1, 5, v0')
rs_('v_bfe_u32 v3, v0, 2, 2')
rs_('v_lshl_add_u32 v2, v1, 3, v3')
rs_('v_lshlrev_b32 v2, 8, v2')
rs_('v_bfe_u32 v4, v0, 4, 1')
rs_('v_lshl_add_u32 v2, v4, 5, v2')
rs_('v_and_b32 v4, 1, v0')
rs_('v_lshl_add_u32 v2, v4, 4, v2')
rs_('v_bfe_u32 v4, v0, 1, 1')
rs_('v_lshl_add_u32 v2, v4, 3, v2')
rs_('v_and_b32 v5, 31, v0')
rs_('v_bfe_u32 v6, v0, 1, 3')
rs_('v_xor_b32 v6, v6, v1')
rs_('v_lshlrev_b32 v6, 4, v6')
rs_('v_lshl_add_u32 v6, v5, 7, v6')
rs_('s_lshl_b32 s%d, s%d, 12' % (sT, sT3))
rs_('s_add_u32 s%d, s%d, %d' % (sT, sT, QS0 + 16384))
rs_('v_add_u32 v6, s%d, v6' % sT)
rs_('s_lshl_b32 s%d, s%d, 10' % (sT, sT3))
rs_('s_add_u32 s%d, s%d, %d' % (sT, sT, BUF))
rs_('v_lshlrev_b32 v7, 4, v0')
rs_('v_add_u32 v7, s%d, v7' % sT)
SCALE = (128 ** -0.5) * math.log2(math.e)
SCB = struct.unpack('<I', struct.pack('<f', SCALE))[0]
rs_('s_mov_b32 s%d, 0x%08x' % (sSC, SCB))
rs_('s_mov_b32 s%d, 0x%08x' % (sSC + 1, SCB))
rs_('s_cmp_ge_u32 s%d, 4' % sWAVE)
rs_('s_cbranch_scc1 L_qp')

OA, QF, SA, SB, F0, F1, NM, PP, aK, aT, aX, LS, TM, aOW, RL = 0, 64, 96, 112, 128, 160, 192, 208, 216, 224, 228, 232, 234, 236, 238
QA = [SB, NM, QF, QF + 16]
QP = [QF + 8, QF + 24, QF, QF + 16]
def qf(ks): return QP[ks >> 1] + 4 * (ks & 1)
a = P.block('L_att', ['L_rest'])
if OPT['patt']: a('s_setprio %d' % OPT['patt'])
for t in range(4):
    a('v_xor_b32 v5, %d, v3' % t)
    a('v_lshl_add_u32 v%d, v5, 6, v2' % (aT + t))
    a('v_add_u32 v%d, %d, v%d' % (aT + t, QS0, aT + t))
for s in range(4):
    a('v_xor_b32 v%d, %d, v6' % (aX + s, 32 * s))
a('v_mov_b32 v%d, v7' % aOW)
a('v_and_b32 v5, 0x13, v0')
a('v_bfe_u32 v6, v0, 2, 1')
a('v_lshl_or_b32 v5, v6, 3, v5')
a('v_bfe_u32 v6, v0, 3, 1')
a('v_lshl_or_b32 v5, v6, 2, v5')
a('v_and_b32 v6, 15, v5')
a('v_xor_b32 v6, v6, v1')
a('v_lshlrev_b32 v6, 4, v6')
a('v_lshl_add_u32 v6, v5, 8, v6')
for s in range(8):
    a('v_xor_b32 v%d, %d, v6' % (aK + s, 32 * s))
a('s_mov_b32 s%d, 0x42000000' % sTHR)
a('s_mov_b32 s%d, %d' % (sSLOT, QS0))
pstamp(a, sPC)
a('s_barrier')

FQ = [F0, F0 + 16, F1, F1 + 16]
def q_reads(ks):
    o = ['ds_read_b128 %s, v%d' % (vr(SA + 4 * ks, 4), aX + ks)]
    for t in range(4):
        for jj in range(2):
            o.append('ds_read_b64_tr_b16 %s, v%d offset:%d' % (vr(FQ[ks] + 4 * t + 2 * jj, 2), aT + t, ks * 4096 + jj * 1024))
    return o
def q_mf(ks, t, first=False):
    c = '0' if first else vr(QA[t], 16)
    return '%s %s, %s, %s, %s' % (MF, vr(QA[t], 16), vr(FQ[ks] + 4 * t, 4), vr(SA + 4 * ks, 4), c)
def q_regs(ks): return set(range(FQ[ks], FQ[ks] + 16)) | set(range(SA + 4 * ks, SA + 4 * ks + 4))
def ring_slot(step, lo, hi):
    return ['s_add_u32 s%d, s%d, %d' % (sT, sSLOT, step),
            's_cmp_eq_u32 s%d, %d' % (sT, hi),
            's_cselect_b32 s%d, %d, s%d' % (sT, lo, sT),
            's_sub_u32 s%d, s%d, s%d' % (sDELTA, sT, sSLOT),
            's_mov_b32 s%d, s%d' % (sSLOT, sT)]
def next_slot(): return ring_slot(QST, QS0, QS0 + 3 * QST)
def kv_slot(): return ring_slot(SLOT, 0, 3 * SLOT)
def adv(base, n, s=None):
    return ['v_add_u32 v%d, s%d, v%d' % (base + i, sDELTA if s is None else s, base + i) for i in range(n)]
def endstep(b, loop=None):
    b('s_waitcnt lgkmcnt(0)')
    pwrite(b, [sPC]); pstamp(b, sPC)
    if loop:
        b('s_sub_u32 s%d, s%d, 1' % (sCNT, sCNT))
        b('s_cmp_lg_u32 s%d, 0' % sCNT)
    b('s_barrier')
    if loop: b('s_cbranch_scc1 %s' % loop)

def k_read(F, s, tile): return 'ds_read_b128 %s, v%d offset:%d' % (vr(F + 4 * s, 4), aK + s, tile * 8192)
def v_read(F, i, tile):
    sp, t = i >> 2, i & 3
    return ['ds_read_b64_tr_b16 %s, v%d offset:%d' % (vr(F + 4 * i + 2 * jj, 2), aT + t, 16384 + tile * 8192 + sp * 4096 + jj * 1024) for jj in range(2)]
def s_mf(F, s, X, c): return '%s %s, %s, %s, %s' % (MF, vr(X, 16), vr(F + 4 * s, 4), vr(qf(s), 4), c)
def pv_mf(F, i, first=False):
    sp, t = i >> 2, i & 3
    c = '0' if (first and sp == 0) else vr(OA + 16 * t, 16)
    return '%s %s, %s, %s, %s' % (MF, vr(OA + 16 * t, 16), vr(F + 4 * i, 4), vr(PP + 4 * sp, 4), c)
def softmax_ops(X, adds=False):
    ops = []
    for i in range(8):
        ops.append('v_exp_f32 v%d, v%d' % (X + 2 * i, X + 2 * i))
        ops.append('v_exp_f32 v%d, v%d' % (X + 2 * i + 1, X + 2 * i + 1))
        if i >= 1:
            ops.append('v_cvt_pk_bf16_f32 v%d, v%d, v%d' % (PP + i - 1, X + 2 * i - 2, X + 2 * i - 1))
            if adds: ops += add_ops(X)[2 * i - 2:2 * i]
    ops.append('v_cvt_pk_bf16_f32 v%d, v%d, v%d' % (PP + 7, X + 14, X + 15))
    if adds: ops += add_ops(X)[14:16]
    return ops
def add_ops(X):
    return ['v_add_f32 v%d, v%d, v%d' % (LS + (i & 1), LS + (i & 1), X + i) for i in range(16)]
def max_ops(X):
    ops = ['v_max3_f32 v%d, v%d, v%d, v%d' % (TM, X, X + 1, X + 2)]
    for i in range(6):
        ops.append('v_max3_f32 v%d, v%d, v%d, v%d' % (TM, TM, X + 3 + 2 * i, X + 4 + 2 * i))
    ops.append('v_max_f32 v%d, v%d, v%d' % (TM, TM, X + 15))
    return ops
CMP = 'v_cmp_lt_f32 vcc, s%d, v%d' % (sTHR, TM)
slow = []
def check(b, X, name):
    b('s_cbranch_vccnz L_slow_%s' % name)
    slow.append((name, X, b.name))
    return P.block('L_back_%s' % name, [b.name, 'L_slow_%s' % name], pend=b.pend)

def q_step(b):
    mf = [q_mf(2, t) for t in range(4)] + [q_mf(3, t) for t in range(4)] + [q_mf(0, t) for t in range(4)] + [q_mf(1, t) for t in range(4)]
    r01 = q_reads(0) + q_reads(1); r23 = q_reads(2) + q_reads(3)
    fill = split(r01, [3] * 6) + split(r23, [3] * 6) + [next_slot(), adv(aX, 4), adv(aT, 4), []]
    fill[7] = fill[7] + [W(q_regs(0))]
    fill[11] = fill[11] + [W(q_regs(1))]
    weave(b, mf, fill)

q0 = P.block('L_att_q0', ['L_att'])
for o in q_reads(0) + q_reads(1): q0(o)
q0.waitfor(q_regs(0))
weave(q0, [q_mf(0, t, True) for t in range(4)] + [q_mf(1, t) for t in range(4)],
      split(q_reads(2) + q_reads(3), [6, 6, 6]) + [[W(q_regs(1))], next_slot(), adv(aX, 4), adv(aT, 4), ['s_mov_b32 s%d, 9' % sCNT]])
endstep(q0)
ql = P.block('L_att_q', ['L_att_q0', 'L_att_q'])
q_step(ql)
endstep(ql, 'L_att_q')

def pack(src, dst, mul, pk=False):
    o = []
    for h in range(2):
        if pk: o += ['v_pk_mul_f32 %s, %s, %s' % (vr(src + 8 * h + 2 * i, 2), vr(src + 8 * h + 2 * i, 2), pk) for i in range(4)]
        else: o += ['v_mul_f32 v%d, %s, v%d' % (src + 8 * h + i, mul, src + 8 * h + i) for i in range(8)]
        o += ['v_cvt_pk_bf16_f32 v%d, v%d, v%d' % (dst + 4 * h + i, src + 8 * h + 2 * i, src + 8 * h + 2 * i + 1) for i in range(4)]
    return o
def phase_pv0(b, Fa, Fb, first=False, ak=False, cnt=None):
    b.waitfor(rng(Fb, 32))
    vr1 = sum((v_read(Fa, i, 1) for i in range(8)), [])
    ad = add_ops(SA); mx = max_ops(SB)
    fill = zipf(split(vr1, [4, 4, 4, 4, 0, 0, 0, 0]), split(ad, [2, 2, 1, 1, 2, 3, 1, 4]), split(mx, [0, 0, 1, 1, 3, 3, 0, 0]))
    fill[6] = [CMP] + fill[6]
    if ak:
        fill[4] = fill[4] + kv_slot(); fill[5] = fill[5] + adv(aK, 8)
    fill[6] = fill[6] + adv(aT, 4)
    if cnt: fill[7] = fill[7] + [cnt]
    weave(b, [pv_mf(Fb, i, first) for i in range(8)], fill)
def first_max(b, extra=()):
    ex = list(extra)
    mx = max_ops(SA) + ['v_mov_b32 v%d, v%d' % (TM + 1, TM), 'v_permlane32_swap_b32 v%d, v%d' % (TM, TM + 1),
                        'v_max_f32 v%d, v%d, v%d' % (TM, TM, TM + 1)]
    n = min(len(ex), len(mx))
    for i, o in enumerate(mx):
        b(o)
        if i < n: b(ex[i])
    ex = ex[n:]
    for i in range(16):
        b('v_mul_f32 v%d, -1.0, v%d' % (NM + i, TM))
    subs = ['v_sub_f32 v%d, v%d, v%d' % (SA + i, SA + i, TM) for i in range(16)]
    for o in subs[:4]: b(o)
    sm = softmax_ops(SA)
    fill = zipf([subs[4 + 2 * n:6 + 2 * n] + sm[3 * n:3 * n + 3] for n in range(8)], spread(ex, 7) + [[]])
    b.waitfor(rng(F0, 32))
    weave(b, [s_mf(F0, s, SB, vr(NM, 16) if s == 0 else vr(SB, 16)) for s in range(8)], fill)

a0 = P.block('L_att_a0', ['L_att_q'])
sc = 's%d' % sSC
mf = []
for t in (2, 3, 0, 1): mf += [q_mf(2, t), q_mf(3, t)]
kr = [k_read(F0, s, 0) for s in (4, 5, 6, 7, 0, 1, 2, 3)]
pk2 = pack(QA[2], QP[2], sc)
fill = [['s_mov_b32 s%d, 0' % sSLOT], kr[:2], kr[2:4], kr[4:] + ['v_mov_b32 v%d, 0' % LS, 'v_mov_b32 v%d, 0' % (LS + 1)]] + split(pk2, [6, 6, 6, 6])
fill[7] = fill[7] + ['v_subrev_u32 v%d, %d, v%d' % (aT + i, QS0 + QST, aT + i) for i in range(4)]
weave(a0, mf, fill)
order = (4, 5, 6, 7, 0, 1, 2, 3)
rest = pack(QA[3], QP[3], sc) + pack(QA[0], QP[0], sc) + pack(QA[1], QP[1], sc)
vr0 = sum((v_read(F1, i, 0) for i in range(8)), [])
mf = [s_mf(F0, s, SA, '0' if n == 0 else vr(SA, 16)) for n, s in enumerate(order)]
pieces = split(rest, [6, 6, 12, 12, 12, 12, 12, 0])
fill = [[k_read(F0, order[n], 1)] + vr0[2 * n:2 * n + 2] + pieces[n] for n in range(8)]
a0.waitfor(rng(F0, 32))
weave(a0, mf, fill)
first_max(a0)
phase_pv0(a0, F0, F1, first=True, ak=True, cnt='s_mov_b32 s%d, 4' % sCNT)
a0b = check(a0, SB, 'a0')
endstep(a0b)

def a_step(b, Fa, Fb, nm):
    for s in range(8): b(k_read(Fa, s, 0))
    sm = softmax_ops(SB, adds=True)
    HEAD = 12
    for o in sm[:HEAD]: b(o)
    fill = spread(sm[HEAD:], 8)
    fill[3] = fill[3] + [W(rng(Fa + 16, 16))]
    b.waitfor(rng(Fa, 16))
    weave(b, [s_mf(Fa, s, SA, vr(NM, 16) if s == 0 else vr(SA, 16)) for s in range(8)], fill)
    kr = [k_read(Fa, s, 1) for s in range(8)]
    fill = zipf(split(kr, [2, 2, 2, 2, 0, 0, 0, 0]), [v_read(Fb, i, 0) for i in range(8)],
                split(max_ops(SA), [0, 2, 2, 2, 2, 0, 0, 0]))
    ts = kv_slot(); ak = adv(aK, 8)
    fill[0] = fill[0] + ts[:3]; fill[4] = fill[4] + ts[3:]; fill[5] = fill[5] + [CMP] + ak[:2]
    fill[6] = fill[6] + ak[2:6]; fill[7] = fill[7] + ak[6:]
    weave(b, [pv_mf(Fb, i) for i in range(8)], fill)
    b = check(b, SA, nm + '1')
    b.waitfor(rng(Fa, 32))
    weave(b, [s_mf(Fa, s, SB, vr(NM, 16) if s == 0 else vr(SB, 16)) for s in range(8)], spread(softmax_ops(SA), 8))
    phase_pv0(b, Fa, Fb)
    return check(b, SB, nm + '2')
ao = P.block('L_att_ao', ['L_back_a0', 'L_back_ae2', 'L_back_ab'])
ao2 = a_step(ao, F1, F0, 'ao')
ao2('s_waitcnt lgkmcnt(0)')
pwrite(ao2, [sPC]); pstamp(ao2, sPC)
ao2('s_sub_u32 s%d, s%d, 1' % (sCNT, sCNT))
ao2('s_cmp_eq_u32 s%d, 0' % sCNT)
ao2('s_barrier')
ao2('s_cbranch_scc1 L_att_drain')
ae = P.block('L_att_ae', ['L_back_ao2'])
ae2 = a_step(ae, F0, F1, 'ae')
endstep(ae2)
ae2('s_branch L_att_ao')

def lsum(b):
    b('v_add_f32 v%d, v%d, v%d' % (RL, LS, LS + 1))
    b('v_mov_b32 v%d, v%d' % (RL + 1, RL))
    b('v_permlane32_swap_b32 v%d, v%d' % (RL, RL + 1))
    b('v_add_f32 v%d, v%d, v%d' % (RL, RL, RL + 1))
    b('v_rcp_f32 v%d, v%d' % (RL, RL))
    b('v_mov_b32 v%d, v%d' % (RL + 1, RL))
def onorm():
    o = []
    for t in range(4):
        pk = pack(OA + 16 * t, OA + 16 * t, 'v%d' % RL, vr(RL, 2) if OPT['pko'] else False)
        n = len(pk) // 2
        o += pk[:n] + ['ds_write_b128 v%d, %s offset:%d' % (aOW, vr(OA + 16 * t, 4), (2 * t) * 3072)]
        o += pk[n:] + ['ds_write_b128 v%d, %s offset:%d' % (aOW, vr(OA + 16 * t + 4, 4), (2 * t + 1) * 3072)]
    return o
def last_pv(b):
    sm = softmax_ops(SB)
    for o in sm[:14]: b(o)
    fill = zipf(split(sm[14:], [3, 3, 3, 1, 0, 0, 0, 0]), split(add_ops(SB), [0, 0, 0, 2, 3, 3, 4, 4]))
    weave(b, [pv_mf(F1, i) for i in range(8)], fill)
    lsum(b)
d = P.block('L_att_drain', ['L_back_ao2'])
pshift(d)
d('s_add_u32 s%d, s%d, 1' % (sU, sU))
d('s_cmp_eq_u32 s%d, 4' % sU)
d('s_cbranch_scc1 L_att_fin')
ab = P.block('L_att_ab', ['L_att_drain'])
for s in range(8):
    ab('ds_read_b128 %s, v%d offset:%d' % (vr(qf(s), 4), aOW, s * 3072))
for s in range(7): ab(k_read(F0, s, 0))
sm = softmax_ops(SB)
for o in sm[:14]: ab(o)
fill = zipf(split(sm[14:], [3, 3, 3, 1, 0, 0, 0, 0]), split(add_ops(SB), [0, 0, 0, 2, 3, 3, 4, 4]))
fill[0] = [k_read(F0, 7, 0)] + fill[0]
weave(ab, [pv_mf(F1, i) for i in range(8)], fill)
lsum(ab)
ab('v_mov_b32 v%d, 0' % LS)
ab('v_mov_b32 v%d, 0' % (LS + 1))
on = onorm()
NS0 = len(on) // 2
pieces = [[]] + spread(on[:NS0], 7) if not OPT['pko'] else split(on[:NS0], [2, 4, 5, 5, 5, 5, 5, 5])
fill = [[k_read(F0, n, 1)] + vr0[2 * n:2 * n + 2] + pieces[n] for n in range(8)]
weave(ab, [s_mf(F0, s, SA, '0' if s == 0 else vr(SA, 16)) for s in range(8)], fill)
first_max(ab, on[NS0:])
phase_pv0(ab, F0, F1, first=True, ak=True, cnt='s_mov_b32 s%d, 4' % sCNT)
abb = check(ab, SB, 'ab')
endstep(abb)
abb('s_branch L_att_ao')

fi = P.block('L_att_fin', ['L_att_drain'])
if OPT['pf']: fi('s_setprio %d' % OPT['pf'])
fi('v_subrev_u32 v%d, %d, v%d' % (aOW, BUF - OB[3], aOW))
last_pv(fi)
for o in onorm(): fi(o)
fi('s_waitcnt lgkmcnt(0)')
pwrite(fi, [sPC]); pstamp(fi, sPC)
fi('s_barrier')
fi('s_branch L_tb')

XR, QQ, FR, qT, qW, qX, qPF = 0, 160, 224, 240, 244, 224, 245
q = P.block('L_qp', ['L_rest'])
if OPT['pq']: q('s_setprio %d' % OPT['pq'])
for t in range(4):
    q('v_xor_b32 v5, %d, v3' % t)
    q('v_lshl_add_u32 v%d, v5, 6, v2' % (qT + t))
    q('v_add_u32 v%d, %d, v%d' % (qT + t, W0, qT + t))
for s in range(4):
    q('v_xor_b32 v%d, %d, v6' % (qX + s, 32 * s))
q('v_mov_b32 v%d, v7' % qW)
q('v_lshrrev_b32 v%d, 1, v0' % qPF)
q('v_mul_u32_u24 v%d, 1280, v%d' % (qPF, qPF))
q('v_and_b32 v5, 1, v0')
q('v_lshl_add_u32 v%d, v5, 7, v%d' % (qPF, qPF))
q('s_cmp_lg_u32 s%d, 4' % sWAVE)
q('s_cbranch_scc1 L_qp1')
qz = P.block('L_qpz', ['L_qp'])
qz('s_lshl_b32 s%d, s%d, 9' % (sT, sGRP))
qz('s_lshl_b32 s%d, s%d, 2' % (sT2, sME))
qz('s_add_u32 s%d, s%d, s%d' % (sT2, sT2, sT))
qz('s_add_u32 s%d, s%d, %d' % (sT2, sT2, FLAGS))
qz('v_lshlrev_b32 v%d, 5, v0' % (QQ + 0))
qz('v_mov_b32 v%d, 0' % (QQ + 1))
qz('s_mov_b64 exec, 0xffff')
qz('buffer_store_dword v%d, v%d, %s, s%d offen sc1' % (QQ + 1, QQ, srd(sWS), sT2))
qz('s_mov_b64 exec, -1')
qz('v_lshlrev_b32 v%d, 13, v0' % qPF)
def wq_pf(b, ahead):
    b('s_add_u32 s%d, s%d, s%d' % (sT, sH0, sU))
    b('s_lshl_b32 s%d, s%d, 8' % (sT, sT))
    b('s_mul_i32 s%d, s%d, %d' % (sT2, sB, 40 * 8192))
    b('s_add_u32 s%d, s%d, s%d' % (sT, sT, sT2))
    b('s_mov_b32 exec_hi, 0xff')
    for i in range(2): b('buffer_load_dword v%d, v%d, %s, s%d offen offset:%d' % (255, qPF, srd(sWQ), sT, 256 * ahead + 128 * i))
    b('s_mov_b64 exec, -1')
q = P.block('L_qp1', ['L_qp', 'L_qpz'])
pstamp(q, sPC)
q('s_barrier')
for c in range(10):
    for s in range(4): q('ds_read_b128 %s, v%d' % (vr(XR + 16 * c + 4 * s, 4), qX + s))
    if c < 9:
        for s in range(4):
            if c % 3 == 2: q('v_subrev_u32 v%d, %d, v%d' % (qX + s, 2 * QST, qX + s))
            else: q('v_add_u32 v%d, %d, v%d' % (qX + s, QST, qX + s))
    if c == 4 and OPT['qpf'] >= 0:
        q('s_cmp_lg_u32 s%d, 4' % sWAVE)
        q('s_cbranch_scc1 L_qp3')
        wq_pf(q, 1)
        q.raw('L_qp3:')
    if c == 6:
        q('s_cmp_lg_u32 s%d, 4' % sWAVE)
        q('s_cbranch_scc1 L_qp2')
        q('s_lshl_b32 s%d, s%d, 3' % (sT, sGRP))
        q('v_mov_b32 v%d, s%d' % (QQ + 2, sT))
        q('v_mov_b32 v%d, 1' % (QQ + 3))
        q('s_mov_b64 exec, 1')
        q('s_waitcnt vmcnt(0)')
        q('global_atomic_add v%d, v%d, s[%d:%d] sc1' % (QQ + 2, QQ + 3, sDBG, sDBG + 1))
        q('s_mov_b64 exec, -1')
        q.raw('L_qp2:')
    pstamp(q, sPA)
    gend(q, lg=True)
qm = P.block('L_qp_m', ['L_qp1', 'L_qp_m'])
def wq_read(j, i, t):
    return ['ds_read_b64_tr_b16 %s, v%d offset:%d' % (vr(FR + 4 * t + 2 * jj, 2), qT + t, (j & 1) * (W1 - W0) + i * 4096 + jj * 1024) for jj in range(2)]
for j in range(8):
    for t in range(4): emit(qm, wq_read(j, 0, t))
    for i in range(5):
        for t in range(4):
            c = '0' if (j == 0 and i == 0) else vr(QQ + 16 * t, 16)
            qm('%s %s, %s, %s, %s' % (MF, vr(QQ + 16 * t, 16), vr(FR + 4 * t, 4), vr(XR + 4 * (5 * j + i), 4), c))
            if i < 4: emit(qm, wq_read(j, i + 1, t))
    if j == OPT['qpf']:
        qm('s_lshl_b32 s%d, s%d, 2' % (sT, sWAVE))
        qm('s_add_u32 s%d, s%d, s%d' % (sT, sT, sU))
        qm('s_cmp_ge_u32 s%d, 18' % sT)
        qm('s_cbranch_scc1 L_qp4')
        wq_pf(qm, 2)
        qm.raw('L_qp4:')
    if j == OPT['wpf']:
        qm('s_lshl_b32 s%d, s%d, 2' % (sT, sWAVE))
        qm('s_add_u32 s%d, s%d, s%d' % (sT, sT, sU))
        qm('s_cmp_lg_u32 s%d, 22' % sT)
        qm('s_cbranch_scc1 L_qp5')
        qm('s_mul_i32 s%d, s%d, %d' % (sT, sH0, 128 * 1280))
        qm('s_mul_i32 s%d, s%d, 40960' % (sT2, sB))
        qm('s_add_u32 s%d, s%d, s%d' % (sT, sT, sT2))
        for i in range(2): qm('buffer_load_dword v%d, v%d, %s, s%d offen offset:%d' % (255, qPF, srd(sWO), sT, 256 * i))
        qm.raw('L_qp5:')
    if j == 7:
        for t in range(4):
            pk = pack(QQ + 16 * t, QQ + 16 * t, 's%d' % sSC, 's[%d:%d]' % (sSC, sSC + 1) if OPT['pkq'] else False)
            n_ = len(pk) // 2
            emit(qm, pk[:n_] + ['ds_write_b128 v%d, %s offset:%d' % (qW, vr(QQ + 16 * t, 4), (2 * t) * 3072)])
            emit(qm, pk[n_:] + ['ds_write_b128 v%d, %s offset:%d' % (qW, vr(QQ + 16 * t + 4, 4), (2 * t + 1) * 3072)])
    pstamp(qm, sPA)
    if j < 7: gend(qm, lg=True)
    else: gend(qm, lg=True, loop='L_qp_m', tail=[pshift, 's_add_u32 s%d, s%d, 1' % (sU, sU)], cmp='s_cmp_lg_u32 s%d, 3' % sU)
ACC, AC3, BFR, AFR = 0, 96, [144, 156], [168, 176]
tA, tA1, tO, tOB, tW2, tW1, tONE, tZERO, tSL = 184, 186, 187, 188, 189, 190, 191, 192, 193
FIFO_A = [194 + 4 * i for i in range(14)]
FIFO_B = [96 + 4 * i for i in range(12)] + FIFO_A
sPUB, sFLG, sW3 = sXO, sKC, sKS
UO = {1: [0, 2, 1, 3], 2: [2, 1, 0, 3], 3: [2, 1, 0, 3]}
def obase(p, u): return W0 if (p == 1 and u == 0) else OB[u]
class VM:
    def __init__(self): self.q = []
    def add(self, tag): self.q.append(tag)
    def wait(self, tags):
        last = max([i for i, t in enumerate(self.q) if t in tags], default=-1)
        if last < 0: return []
        n = len(self.q) - 1 - last
        self.q = self.q[last + 1:]
        return ['s_waitcnt vmcnt(%d)' % n]
def tail_setup(b, isA):
    b('v_mbcnt_lo_u32_b32 v%d, -1, 0' % tOB)
    b('v_mbcnt_hi_u32_b32 v%d, -1, v%d' % (tOB, tOB))
    L = tOB; x, y = tONE, tZERO
    b('v_lshrrev_b32 v%d, 3, v%d' % (x, L))
    b('v_mul_u32_u24 v%d, 1280, v%d' % (tW2, x))
    b('v_bfe_u32 v%d, v%d, 4, 1' % (x, L))
    b('v_lshlrev_b32 v%d, 2, v%d' % (x, x))
    b('v_and_b32 v%d, 7, v%d' % (y, L))
    b('v_xor_b32 v%d, v%d, v%d' % (x, x, y))
    b('v_lshl_add_u32 v%d, v%d, 4, v%d' % (tW2, x, tW2))
    b('s_lshl_b32 s%d, s%d, 7' % (sT2, sT3))
    if not isA: b('s_add_u32 s%d, s%d, 512' % (sT2, sT2))
    b('s_mul_i32 s%d, s%d, %d' % (sW3, sH0, 128 * 1280))
    b('s_add_u32 s%d, s%d, s%d' % (sWOB, sW3, sT2))
def tail_setup2(b, isA):
    L = tOB; x, y = tONE, tZERO
    if isA:
        b('s_lshl_b32 s%d, s%d, 12' % (sRB, sT3))
        b('s_add_u32 s%d, s%d, %d' % (sRB, sRB, ASL))
        b('s_lshl_b32 s%d, s%d, 6' % (sT2, sT3))
        b('s_add_u32 s%d, s%d, s%d' % (sW3, sW3, sT2))
        b('s_add_u32 s%d, s%d, 1024' % (sW3, sW3))
    else:
        b('s_lshl_b32 s%d, s%d, 3' % (sT, sT3))
        b('s_lshr_b32 s%d, 0x%08x, s%d' % (sRB, sum((BSL[i] >> 12) << (8 * i) for i in range(4)), sT))
        b('s_and_b32 s%d, s%d, 0xff' % (sRB, sRB))
        b('s_lshl_b32 s%d, s%d, 12' % (sRB, sRB))
    b('v_bfe_u32 v%d, v%d, 4, 1' % (x, L))
    b('v_lshlrev_b32 v%d, 5, v%d' % (tA1, x))
    b('v_and_b32 v%d, 1, v%d' % (x, L))
    b('v_lshl_add_u32 v%d, v%d, 4, v%d' % (tA1, x, tA1))
    b('v_bfe_u32 v%d, v%d, 1, 1' % (x, L))
    b('v_lshl_add_u32 v%d, v%d, 3, v%d' % (tA1, x, tA1))
    b('v_add_u32 v%d, s%d, v%d' % (tA1, sRB, tA1))
    b('v_lshrrev_b32 v%d, 5, v%d' % (x, L))
    b('v_bfe_u32 v%d, v%d, 2, 2' % (y, L))
    b('v_lshl_add_u32 v%d, v%d, 3, v%d' % (x, x, y))
    b('v_lshl_add_u32 v%d, v%d, 7, v%d' % (tA, x, tA1))
    b('v_lshl_add_u32 v%d, v%d, 6, v%d' % (tA1, x, tA1))
    b('v_bfe_u32 v%d, v%d, 3, 1' % (y, L))
    b('v_lshl_add_u32 v%d, v%d, 6, v%d' % (tA, y, tA))
    b('v_xor_b32 v%d, 64, v%d' % (tA + 1, tA))
    if isA:
        b('v_lshrrev_b32 v%d, 2, v%d' % (x, L))
        b('v_mul_u32_u24 v%d, 1280, v%d' % (tW1, x))
        b('v_and_b32 v%d, 3, v%d' % (x, L))
        b('v_lshl_add_u32 v%d, v%d, 4, v%d' % (tW1, x, tW1))
    b('v_lshlrev_b32 v%d, 4, v%d' % (tOB, L))
    b('v_add_u32 v%d, s%d, v%d' % (tSL, sRB, tOB))
    b('v_mov_b32 v%d, 1' % tONE)
    b('v_mov_b32 v%d, 0' % tZERO)
    b('s_lshl_b32 s%d, s%d, 3' % (sT, sGRP))
    b('s_add_u32 s%d, s%d, s%d' % (sT, sT, sME))
    b('s_mul_i32 s%d, s%d, 122880' % (sPUB, sT))
    b('s_mul_i32 s%d, s%d, 12288' % (sT, sT3))
    b('s_add_u32 s%d, s%d, s%d' % (sPUB, sPUB, sT))
    if not isA: b('s_add_u32 s%d, s%d, %d' % (sPUB, sPUB, 8 * 6144))
    b('s_lshl_b32 s%d, s%d, 9' % (sFLG, sGRP))
    b('s_lshl_b32 s%d, s%d, 7' % (sT, sT3))
    b('s_add_u32 s%d, s%d, s%d' % (sFLG, sFLG, sT))
    b('s_lshl_b32 s%d, s%d, 2' % (sT, sME))
    b('s_add_u32 s%d, s%d, s%d' % (sFLG, sFLG, sT))
    b('s_add_u32 s%d, s%d, %d' % (sFLG, sFLG, FLAGS + (0 if isA else 32)))
def wrow(p, k): return (UO[p][k >> 3] * 128 + (k & 7) * 16) * 1280
def ncol(p): return 1 if p == 3 else 2
class Stream:
    def __init__(self, seq, fifo):
        self.seq = seq; self.fifo = fifo; self.vm = VM(); self.nl = 0; self.ob = None
        self.items = []; self.first = []
        for (p, k) in seq:
            self.first.append(len(self.items))
            if not self.direct(p, k): self.items += [(p, k, h) for h in range(ncol(p))]
        self.first.append(len(self.items))
    def direct(self, p, k): return p == 3 and k >= 24
    def load(self):
        if self.nl >= len(self.items): return []
        p, k, h = self.items[self.nl]; r_ = self.fifo[self.nl % len(self.fifo)]
        def ld(b, j=self.nl): self.vm.add(j)
        self.nl += 1
        return ['s_add_u32 s%d, s%d, %d' % (sT, sW3 if p == 3 else sWOB, wrow(p, k) + 10240 * h),
                'buffer_load_dwordx4 %s, v%d, %s, s%d offen' % (vr(r_, 4), tW1 if p == 3 else tW2, srd(sWO), sT), ld]
    def writes(self, i):
        if i >= len(self.seq): return [], []
        js = list(range(self.first[i], self.first[i + 1]))
        if not js: return [], []
        w = [lambda b: emit(b, self.vm.wait(set(js)))]
        w += ['ds_write_b128 v%d, %s offset:%d' % (tSL, vr(self.fifo[j % len(self.fifo)], 4), (i & 1) * 2048 + (j - js[0]) * 1024) for j in js]
        return w, js
    def reads(self, i):
        if i >= len(self.seq): return []
        p, k = self.seq[i]; n = ncol(p); o = []
        ob = obase(p, UO[p][k >> 3])
        if ob != self.ob: o.append('v_add_u32 v%d, %d, v%d' % (tO, ob, tOB)); self.ob = ob
        off = (i & 1) * 2048
        if self.direct(p, k):
            if k == 24:
                o += ['s_lshl_b32 s%d, s%d, 13' % (sT2, sT3), 's_sub_u32 s%d, s%d, s%d' % (sT2, sT2, sRB),
                      'v_add_u32 v%d, s%d, v%d' % (tA1, sT2, tA1), lambda b: emit(b, self.vm.wait({'d'}))]
            off = (k - 24) * 1024
        a_ = []
        for t in range(n):
            for jj in range(2):
                a_.append('ds_read_b64_tr_b16 %s, v%d offset:%d' % (vr(AFR[i & 1] + 4 * t + 2 * jj, 2), tA + t if n == 2 else tA1, off + jj * 256 * n))
        b_ = ['ds_read_b128 %s, v%d offset:%d' % (vr(BFR[i & 1] + 4 * qt, 4), tO, (k & 7) * 3072 + qt * 1024) for qt in range(3)]
        return o + a_[:2] + b_ + a_[2:]
    def kstep(self, b, i, top=None, extra=()):
        p, k = self.seq[i]; n = ncol(p); mf = []
        for t in range(n):
            for qt in range(3):
                acc = vr((AC3 if p == 3 else ACC) + 16 * (qt * n + t), 16)
                mf.append('%s %s, %s, %s, %s' % (MF, acc, vr(AFR[i & 1] + 4 * t, 4), vr(BFR[i & 1] + 4 * qt, 4), acc if k else '0'))
        b.waitfor(rng(AFR[i & 1], 4 * n) | rng(BFR[i & 1], 12))
        if top: top(b)
        rd = self.reads(i + 1)
        wr, js = self.writes(i + 2)
        ld = sum((self.load() for _ in js), [])
        if OPT['fine'] and p == 2 and k >= 1:
            if k & 1:
                b('s_memtime s[46:47]')
                wr = ['s_memtime s[48:49]'] + wr[:1] + ['s_memtime s[50:51]'] + wr[1:]
            else:
                b('s_waitcnt lgkmcnt(0)')
                for n_, r_ in enumerate((46, 48, 50)): b('v_writelane_b32 v250, s%d, %d' % (r_, 16 + 3 * (k // 2 - 1) + n_))
        fill = [[] for _ in mf]
        if n == 2:
            fill[0] += rd[:3]; fill[1] += rd[3:6]; fill[2] += rd[6:]
            fill[3] += wr; fill[4] += ld + list(extra)
        else:
            fill[0] += rd[:5]; fill[1] += rd[5:] + wr; fill[2] += ld + list(extra)
        weave(b, mf, fill)
    def prime(self, b):
        for i in range(2):
            wr, js = self.writes(i)
            emit(b, wr + sum((self.load() for _ in js), []))
def publish(b, n, acc0):
    c = 0
    for t in range(n):
        for qt in range(3):
            base = acc0 + 16 * (qt * n + t)
            for i in range(8):
                b('v_cvt_pk_bf16_f32 v%d, v%d, v%d' % (base + i, base + 2 * i, base + 2 * i + 1))
            b('s_add_u32 s%d, s%d, %d' % (sT2, sPUB, (t * 6 + qt * 2) * 1024))
            for h in range(2):
                if OPT['thr'] and n == 2 and acc0 == ACC and b.name.startswith('L_a') and c >= OPT['thr']: b('s_waitcnt vmcnt(%d)' % (OPT['thr'] - 1))
                b('buffer_store_dwordx4 %s, v%d, %s, s%d offen offset:%d sc1' % (vr(base + 4 * h, 4), tOB, srd(sWS), sT2, h * 1024))
                c += 1
def flag(b):
    b('s_waitcnt vmcnt(0)')
    b('s_mov_b64 exec, 1')
    b('buffer_store_dword v%d, v%d, %s, s%d offen sc1' % (tONE, tZERO, srd(sWS), sFLG))
    b('s_mov_b64 exec, -1')

sOO, sSB, sFB = 36, 42, 45
NP = [2, 2, 1]
def red_addr(b, ps, rFO):
    b('v_lshrrev_b32 v%d, 2, v%d' % (rFO, tOB))
    b('v_and_b32 v%d, 0x7f, v%d' % (rFO, rFO))
    b('s_mul_i32 s%d, s%d, %d' % (sT1, sGRP, 8 * 122880))
    b('s_lshl_b32 s%d, s%d, 11' % (sT, sT3))
    b('s_add_u32 s%d, s%d, s%d' % (sT1, sT1, sT))
    b('s_mul_i32 s%d, s%d, 6144' % (sT, sME))
    b('s_add_u32 s%d, s%d, s%d' % (sSB, sT1, sT))
    b('s_lshr_b32 s%d, s%d, 1' % (sT2, sME))
    if 1 in ps:
        b('s_add_u32 s%d, s%d, %d' % (sSB + 1, sSB, 8 * 6144))
        b('s_mul_i32 s%d, s%d, 6144' % (sT, sT2))
        b('s_add_u32 s%d, s%d, s%d' % (sSB + 2, sT1, sT))
        b('s_and_b32 s%d, s%d, 1' % (sN, sME))
        b('s_lshl_b32 s%d, s%d, 10' % (sT, sN))
        b('s_add_u32 s%d, s%d, s%d' % (sSB + 2, sSB + 2, sT))
        b('s_add_u32 s%d, s%d, %d' % (sSB + 2, sSB + 2, 16 * 6144))
    b('s_lshl_b32 s%d, s%d, 9' % (sFB, sGRP))
    b('s_lshl_b32 s%d, s%d, 7' % (sT, sT2))
    b('s_add_u32 s%d, s%d, s%d' % (sFB, sFB, sT))
    b('s_add_u32 s%d, s%d, %d' % (sFB, sFB, FLAGS))
    b('s_mul_i32 s%d, s%d, %d' % (sT1, sB, 96 * 2560))
    b('s_mul_i32 s%d, s%d, 1280' % (sT, sBR))
    b('s_add_u32 s%d, s%d, s%d' % (sT1, sT1, sT))
    b('s_mul_i32 s%d, s%d, %d' % (sT, sT3, 32 * 2560))
    b('s_add_u32 s%d, s%d, s%d' % (sT1, sT1, sT))
    b('s_lshl_b32 s%d, s%d, 6' % (sT, sME))
    b('s_add_u32 s%d, s%d, s%d' % (sOO, sT1, sT))
    if 1 in ps:
        b('s_add_u32 s%d, s%d, 512' % (sOO + 1, sOO))
        b('s_lshl_b32 s%d, s%d, 6' % (sT, sT2))
        b('s_add_u32 s%d, s%d, s%d' % (sOO + 2, sT1, sT))
        b('s_lshl_b32 s%d, s%d, 5' % (sT, sN))
        b('s_add_u32 s%d, s%d, s%d' % (sOO + 2, sOO + 2, sT))
        b('s_add_u32 s%d, s%d, 1024' % (sOO + 2, sOO + 2))
    b('s_mov_b32 s%d, 0x40000' % sCNT)
def red_sel(b, RA, rOUT, t):
    b('v_lshrrev_b32 v%d, 4, v%d' % (t, tOB))
    b('v_and_b32 v%d, 31, v%d' % (t + 1, t))
    b('v_lshrrev_b32 v%d, 5, v%d' % (t + 2, t))
    b('v_mul_u32_u24 v%d, 2560, v%d' % (rOUT, t + 1))
    b('v_lshl_add_u32 v%d, v%d, 4, v%d' % (rOUT, t + 2, rOUT))
    b('v_bfe_u32 v%d, v%d, 2, 1' % (t + 3, t + 1))
    b('v_xor_b32 v%d, v%d, v%d' % (t + 3, t + 3, t + 2))
    b('v_lshrrev_b32 v%d, 4, v%d' % (t + 4, t + 1))
    b('v_or_b32 v%d, v%d, v%d' % (t + 3, t + 3, t + 4))
    b('v_lshlrev_b32 v%d, 3, v%d' % (t + 3, t + 3))
    b('v_bfe_u32 v%d, v%d, 3, 1' % (t + 4, t + 1))
    b('v_bfe_u32 v%d, v%d, 1, 1' % (t, t + 1))
    b('v_lshl_or_b32 v%d, v%d, 1, v%d' % (t + 4, t + 4, t))
    b('v_or_b32 v%d, v%d, v%d' % (t + 3, t + 3, t + 4))
    b('v_and_b32 v%d, 1, v%d' % (t + 4, t + 1))
    b('v_lshlrev_b32 v%d, 4, v%d' % (t + 4, t + 4))
    b('v_mov_b32 v%d, 0x3f80' % t)
    b('v_lshlrev_b32 v%d, v%d, v%d' % (t + 4, t + 4, t))
    for i in range(4):
        b('v_cmp_eq_u32 vcc, %d, v%d' % (i, t + 3))
        b('v_cndmask_b32 v%d, 0, v%d, vcc' % (RA + i, t + 4))
def poll(p, prev, rF, rFO, raw):
    rp = P.block('L_red_p%d' % p, prev + ['L_red_p%d' % p])
    rp('buffer_load_dword v%d, v%d, %s, s%d offen sc1' % (rF, rFO, srd(sWS), sFB))
    rp('s_sub_u32 s%d, s%d, 1' % (sCNT, sCNT))
    rp('s_waitcnt vmcnt(0)')
    rp('v_cmp_eq_u32 vcc, 1, v%d' % rF)
    rp('s_cmp_gt_i32 s%d, 0' % sCNT)
    rp('s_cselect_b32 s%d, 0, -1' % sT2)
    rp('s_or_b32 s%d, vcc_lo, s%d' % (sT, sT2))
    rp('s_bfe_u32 s%d, s%d, 0x%x' % (sT, sT, (8 << 16) | (8 * p)))
    rp('s_cmp_lg_u32 s%d, 0xff' % sT)
    rp('s_cbranch_scc1 L_red_p%d' % p)
    ri = P.block('L_red_i%d' % p, ['L_red_p%d' % p])
    pmark(ri)
    for src in range(8):
        ri('s_add_u32 s%d, s%d, %d' % (sT, sSB + p, src * 122880))
        for h in range(NP[p]):
            ri('buffer_load_dwordx4 %s, v%d, %s, s%d offen offset:%d sc1' % (vr(raw + 4 * (NP[p] * src + h), 4), tOB, srd(sWS), sT, h * 1024))
    return ri
def finish_stage(b, p, raw, racc, RA, rOUT):
    for src in range(8):
        for h in range(NP[p]):
            acc = vr(racc + 16 * h, 16)
            b('%s %s, %s, %s, %s' % (MF, acc, vr(RA, 4), vr(raw + 4 * (NP[p] * src + h), 4), acc if src else '0'))
    for h in range(NP[p]):
        acc = racc + 16 * h
        for i in range(4):
            b('v_cvt_pk_bf16_f32 v%d, v%d, v%d' % (acc + i, acc + 2 * i, acc + 2 * i + 1))
        b('buffer_store_dwordx4 %s, v%d, %s, s%d offen offset:%d' % (vr(acc, 4), rOUT, srd(sOUT), sOO + p, 32 * h))

M3, N31 = OPT['m3'], OPT['n31']
seqA = [(1, k) for k in range(24)] + [(3, k) for k in range(M3)] + [(1, k) for k in range(24, 32)] + [(3, k) for k in range(M3, 32)]
SA_ = Stream(seqA, FIFO_A)
ta = P.block('L_a24', ['L_qp_m', 'L_ld_t'])
ta('s_setprio %d' % OPT['pq'])
ta('s_lshl_b32 s%d, s%d, 3' % (sT, sGRP))
ta('v_mov_b32 v0, s%d' % sT)
ta('global_load_dword v1, v0, s[%d:%d] sc1' % (sDBG, sDBG + 1))
tail_setup(ta, True)
NI = 8
for _ in range(NI): emit(ta, SA_.load())
tail_setup2(ta, True)
red_addr(ta, [0], 2)
ta('s_waitcnt vmcnt(%d)' % NI)
tc = P.block('L_a_c', ['L_a24', 'L_a_c2'])
tc('v_readfirstlane_b32 s%d, v1' % sT)
tc('s_sub_u32 s%d, s%d, 1' % (sCNT, sCNT))
tc('s_cmp_ge_u32 s%d, 8' % sT)
tc('s_cbranch_scc1 L_a_m')
tc2 = P.block('L_a_c2', ['L_a_c'])
tc2('global_load_dword v1, v0, s[%d:%d] sc1' % (sDBG, sDBG + 1))
tc2('s_cmp_gt_i32 s%d, 0' % sCNT)
tc2('s_waitcnt vmcnt(0)')
tc2('s_cbranch_scc1 L_a_c')
ta = P.block('L_a_m', ['L_a_c', 'L_a_c2'])
SA_.prime(ta)
pstamp(ta, sPA)
gend(ta)
emit(ta, SA_.reads(0))
while SA_.nl < len(FIFO_A) + SA_.first[2]: emit(ta, SA_.load())
def abar(tail=None):
    def f(b):
        pstamp(b, sPA)
        gend(b, tail=tail)
    return f
def b30(b):
    abar()(b)
    b('s_setprio %d' % OPT['pc'])
def bend(b):
    if OPT['prof']:
        b('s_waitcnt lgkmcnt(0)')
        pwrite(b, [sPC]); pstamp(b, sPC)
    b('s_barrier')
tops = {4: abar(), 8: abar(), 12: abar(), 16: abar(), 20: abar(), 24: b30, 24 + N31: abar([pshift]), 24 + M3 - 1: bend,
        24 + M3: lambda b: b('s_setprio %d' % OPT['pa'])}
assert 0 < N31 < M3 - 1
def direct_dma(k):
    def f(b):
        b('s_lshl_b32 s%d, s%d, 13' % (sT2, sT3))
        b('s_add_u32 m0, s%d, %d' % (sT2, (k - 24) * 1024))
        b('s_add_u32 s%d, s%d, %d' % (sT, sW3, wrow(3, k)))
        b('buffer_load_dwordx4 v%d, %s, s%d offen lds' % (tW1, srd(sWO), sT))
        SA_.vm.add('d')
    return f
for i in range(32 + M3):
    SA_.kstep(ta, i, tops.get(i), [direct_dma(i)] if 24 <= i < 32 else ())
assert SA_.nl == len(SA_.items)
pmark(ta, True)
ta('s_setprio %d' % OPT['pc'])
publish(ta, 2, ACC)
pmark(ta)
flag(ta)
SA_.vm.q = []
pmark(ta)
ta('s_mul_i32 s%d, s%d, 6144' % (sT, sT3))
ta('s_sub_u32 s%d, s%d, s%d' % (sPUB, sPUB, sT))
ta('s_add_u32 s%d, s%d, %d' % (sPUB, sPUB, 16 * 6144))
ta('s_add_u32 s%d, s%d, 64' % (sFLG, sFLG))
ta('v_lshrrev_b32 v65, 2, v%d' % tOB)
ta('v_and_b32 v65, 0x7f, v65')
ta('s_waitcnt lgkmcnt(0)')
if OPT['bld'] >= 0: ta('s_barrier')
ta('s_cmp_eq_u32 s%d, 3' % sT3)
ta('s_cbranch_scc1 L_a_x')
ri = poll(0, ['L_a_m'], 64, 65, 0)
tx = P.block('L_a_x', ['L_a_m', 'L_red_i0'])
for i in range(32 + M3, len(seqA)): SA_.kstep(tx, i)
pmark(tx)
publish(tx, 1, AC3)
pmark(tx)
flag(tx)
pmark(tx)
tx('s_cmp_eq_u32 s%d, 3' % sT3)
tx('s_cbranch_scc1 %s' % ('L_a_y' if OPT['prof'] else 'L_end'))
tz = P.block('L_a_z', ['L_a_x'])
red_sel(tz, 196, 200, 202)
finish_stage(tz, 0, 0, 64, 196, 200)
ty = P.block('L_a_y', ['L_a_x', 'L_a_z'])
if OPT['prof']: ty('s_branch L_fin')
else: ty('s_endpgm')

SB_ = Stream([(2, k) for k in range(32)], FIFO_B)
tb = P.block('L_tb', ['L_att_fin', 'L_ld_w'])
tb('s_setprio %d' % OPT['pb'])
tail_setup(tb, False)
for _ in range(len(FIFO_B)): emit(tb, SB_.load())
tail_setup2(tb, False)
SB_.prime(tb)
emit(tb, SB_.reads(0))
for i in range(32): SB_.kstep(tb, i, (lambda b: b('s_barrier')) if i == OPT['bld'] else None)
pmark(tb, True)
publish(tb, 2, ACC)
pmark(tb)
RA, rOUT, rF, rFO = 240, 244, 246, 247
red_addr(tb, [1, 2], rFO)
red_sel(tb, RA, rOUT, 230)
flag(tb)
pmark(tb)
tb('s_cmp_eq_u32 s%d, 3' % sWAVE)
tb('s_cbranch_scc1 %s' % ('L_fin' if OPT['prof'] else 'L_end'))
ri = poll(1, ['L_tb'], rF, rFO, 0)
ri = poll(2, ['L_red_i1'], rF, rFO, 64)
finish_stage(ri, 1, 0, 96, RA, rOUT)
ri('s_waitcnt vmcnt(2)')
pmark(ri)
finish_stage(ri, 2, 64, 128, RA, rOUT)
f = P.block('L_fin', ['L_red_i2', 'L_a_z', 'L_a_y', 'L_tb'])
if OPT['prof']:
    f('s_waitcnt vmcnt(0)')
    pmark(f)
    f('s_lshl_b32 s%d, s2, 3' % sT2)
    f('s_add_u32 s%d, s%d, s%d' % (sT2, sT2, sWAVE))
    f('s_mul_i32 s%d, s%d, 1280' % (sT2, sT2))
    f('s_add_u32 s%d, s%d, %d' % (sT2, sT2, 72 << 20))
    f('v_mbcnt_lo_u32_b32 v4, -1, 0')
    f('v_mbcnt_hi_u32_b32 v4, -1, v4')
    f('v_lshlrev_b32 v4, 2, v4')
    for i in range(5):
        f('buffer_store_dword v%d, v4, %s, s%d offen offset:%d' % (254 - i, srd(sWS), sT2, 256 * i))
if OPT['stamps']:
    f('s_waitcnt vmcnt(0)')
    f('s_cmp_lg_u32 s%d, 0' % sWAVE)
    f('s_cbranch_scc1 L_end')
    f('s_memrealtime s[%d:%d]' % (sT, sT + 1))
    f('s_waitcnt lgkmcnt(0)')
    f('v_mov_b32 v0, s%d' % sST0)
    f('v_mov_b32 v1, s%d' % (sST0 + 1))
    f('v_mov_b32 v2, s%d' % sT)
    f('v_mov_b32 v3, s%d' % (sT + 1))
    f('s_lshl_b32 s%d, s2, 4' % sT2)
    f('s_add_u32 s%d, s%d, %d' % (sT2, sT2, 64 << 20))
    f('v_mov_b32 v4, 0')
    f('s_mov_b64 exec, 1')
    f('buffer_store_dwordx4 v[0:3], v4, %s, s%d offen' % (srd(sWS), sT2))
en = P.block('L_end', ['L_fin'])
en('s_endpgm')

for (name, X, frm) in slow:
    s = P.block('L_slow_%s' % name, [frm])
    s('s_nop 15')
    s('v_mov_b32 v%d, v%d' % (TM + 1, TM))
    s('v_permlane32_swap_b32 v%d, v%d' % (TM, TM + 1))
    s('v_max3_f32 v%d, v%d, v%d, 0' % (TM, TM, TM + 1))
    s('v_exp_f32 v%d, -v%d' % (TM + 1, TM))
    for i in range(16):
        s('v_sub_f32 v%d, v%d, v%d' % (X + i, X + i, TM))
        s('v_sub_f32 v%d, v%d, v%d' % (NM + i, NM + i, TM))
    for i in range(64):
        s('v_mul_f32 v%d, v%d, v%d' % (OA + i, TM + 1, OA + i))
    s('v_mul_f32 v%d, v%d, v%d' % (LS, TM + 1, LS))
    s('v_mul_f32 v%d, v%d, v%d' % (LS + 1, TM + 1, LS + 1))
    s('s_nop 1')
    s('s_branch L_back_%s' % name)

body = P.finish()
hdr = open('concat_heads__gqa_block_cached__gqa_block_cached__near_ridge.s.ref').read().split('; Override launch')[0]
out = hdr + """; Override launch geometry by editing the next line (default: block=256,
; grid=ceil(out_elems/256), lds=0). Harness parses it; keep it on one line.
; @launch grid=(256,1,1) block=(512,1,1) lds=%d
.amdgcn_target "amdgcn-amd-amdhsa--gfx950"
.text
.globl %s
.p2align 8
.type %s,@function
%s:
%s
.section .rodata,"a"
.p2align 6
.amdhsa_kernel %s
  .amdhsa_next_free_vgpr 256
  .amdhsa_next_free_sgpr 102
  .amdhsa_accum_offset 256
  .amdhsa_group_segment_fixed_size 0
  .amdhsa_kernarg_size 104
  .amdhsa_user_sgpr_count 2
  .amdhsa_user_sgpr_kernarg_segment_ptr 1
  .amdhsa_system_sgpr_workgroup_id_x 1
.end_amdhsa_kernel
""" % (LDS_BYTES, KN, KN, KN, body, KN)
open(sys.argv[1], 'w').write(out)
```

```python
import sys, math, struct
sys.path.insert(0, 'gen')
from asmlib import *

KN = "concat_heads__gqa_block_cached__gqa_block_cached__near_ridge_kernel"
OPT = dict(stamps=0, nt=1, rot=1, prof=0, krot=1, pkq=0, pko=0, patt=1, pq=2, pf=3, pa=2, pb=1, pc=0, n31=3, m3=11, bld=-1, qpf=2, wpf=5, thr=0, fine=0, pre=6, wpf0=2, last=20, pld=0, nks=1)
for a in sys.argv[2:]:
    k, v = a.split('='); assert k in OPT, k; OPT[k] = int(v)

SLOT = 32768
S0, S1, S2, W0, W1, BUF = 0, 32768, 65536, 98304, 118784, 139264
XS0, XST = 131072, 6144
FLAGS = 40 << 20
LDS_BYTES = 163840
MF = 'v_mfma_f32_32x32x16_bf16'
NT = ' nt' if OPT['nt'] else ''
OB = [S2, W0, BUF, S1]
ASL, BSL = W0 + 24576, (S2 + 24576, S2 + 28672, S1 + 24576, S1 + 28672)

sWAVE = 3
sK, sV, sX, sWQ, sWO, sWS, sOUT = 4, 8, 12, 16, 20, 24, 28
sDBG = 32
sU, sCNT = 34, 35
sB, sBR, sH0, sME, sGRP = 62, 63, 64, 65, 66
sKVO, sWQO, sXO, sKC, sMS, sT, sT1, sWOB, sWSL = 67, 68, 69, 70, 71, 72, 73, 74, 75
sKS, sN, sT2, sT3, sDELTA, sSLOT, sROT, sLJ, sPK, sAS = 76, 77, 78, 79, 80, 81, 82, 83, 84, 85
sSC, sTHR = 86, 88
sKROT = 89
sST0 = 90
sRB = 92
sPI = 93
sPA, sPB, sPC = 94, 96, 98
sJ8, sJ2 = 100, 101
def srd(n): return 's[%d:%d]' % (n, n + 3)
def vr(a, n): return 'v[%d:%d]' % (a, a + n - 1)

class Prog:
    def __init__(self):
        self.blocks = []; self.preds = {}
    def block(self, name, preds, pend=None, label=True):
        b = Block(name)
        if pend is not None: b.pend = list(pend)
        if label: b.raw(name + ':')
        self.blocks.append(b); self.preds[name] = preds
        return b
    def tails(self, name, need=20, depth=0):
        res = []
        for p in self.preds[name]:
            pb = [b for b in self.blocks if b.name == p]
            assert pb, (name, p)
            ins = pb[0].ins
            st = sum(i.states() for i in ins)
            if st >= need or depth > 3 or not self.preds[p]:
                res.append(list(ins[-40:]))
            else:
                for t in self.tails(p, need - st, depth + 1):
                    res.append(t + list(ins))
        return res
    def finish(self):
        for b in self.blocks:
            b.ins = fix_hazards(b.ins, self.tails(b.name))
        return '\n'.join(text_of(b.ins) for b in self.blocks)

P = Prog()
def pstamp(b, reg):
    if OPT['prof']: b('s_memtime s[%d:%d]' % (reg, reg + 1))
def pwrite(b, regs):
    if OPT['prof']:
        for r_ in regs:
            b('s_mov_b32 m0, s%d' % sPI)
            b('s_nop 0')
            b('v_writelane_b32 v250, s%d, m0' % (r_,))
            b('s_add_u32 s%d, s%d, 1' % (sPI, sPI))
def pshift(b):
    if OPT['prof']:
        for i in (254, 253, 252, 251): b('v_mov_b32 v%d, v%d' % (i, i - 1))
        b('s_mov_b32 s%d, 0' % sPI)
def pmark(b, first=False):
    if OPT['prof']:
        b('s_memtime s[%d:%d]' % (sPA, sPA + 1))
        b('s_waitcnt lgkmcnt(0)')
        pwrite(b, [sPC, sPA] if first else [sPA])
def emit(b, ops):
    for o in ops:
        if callable(o): o(b)
        else: b(o)
def weave(b, mf, fill):
    assert len(mf) == len(fill), (len(mf), len(fill))
    for m, f in zip(mf, fill):
        b(m)
        emit(b, f)
def split(ops, counts):
    out = []; k = 0
    for c in counts:
        out.append(list(ops[k:k + c])); k += c
    assert k >= len(ops), (k, len(ops))
    return out
def spread(ops, n):
    out = []; k = 0
    for i in range(n):
        m = (len(ops) * (i + 1)) // n
        out.append(list(ops[k:m])); k = m
    return out
def zipf(*lists):
    return [sum((l[i] for l in lists), []) for i in range(len(lists[0]))]
def rng(a, n): return set(range(a, a + n))
def W(regs): return lambda b: b.waitfor(regs)

vK, vV, vWQ, vX = 242, 246, 247, 248
e = P.block('L_entry', [], label=False)
e('s_cmp_ge_u32 s2, 256')
e('s_cbranch_scc1 L_end')
if OPT['stamps']:
    e('s_memrealtime s[%d:%d]' % (sST0, sST0 + 1))
if OPT['prof']: e('s_memtime s[%d:%d]' % (sPA, sPA + 1))
e('s_load_dwordx16 s[36:51], s[0:1], 0')
e('s_load_dwordx8 s[52:59], s[0:1], 64')
e('s_load_dwordx2 s[60:61], s[0:1], 96')
e('v_lshrrev_b32 v1, 6, v0')
e('v_and_b32 v0, 63, v0')
e('v_readfirstlane_b32 s%d, v1' % sWAVE)
e('s_and_b32 s%d, s2, 7' % sT)
e('s_lshr_b32 s%d, s2, 3' % sT2)
e('s_lshr_b32 s%d, s%d, 2' % (sBR, sT))
e('s_and_b32 s%d, s%d, 3' % (sT, sT))
e('s_lshr_b32 s%d, s%d, 1' % (sB, sT2))
e('s_and_b32 s%d, s%d, 1' % (sT2, sT2))
e('s_lshl_b32 s%d, s%d, 1' % (sME, sT))
e('s_add_u32 s%d, s%d, s%d' % (sME, sME, sT2))
e('s_lshl_b32 s%d, s%d, 2' % (sH0, sME))
e('s_mul_i32 s%d, s%d, 5' % (sT2, sT2))
if OPT['krot']:
    e('s_lshr_b32 s%d, s%d, 1' % (sKROT, sB))
    e('s_add_u32 s%d, s%d, s%d' % (sKROT, sKROT, sT))
    e('s_add_u32 s%d, s%d, s%d' % (sKROT, sKROT, sT2))
    e('s_and_b32 s%d, s%d, 7' % (sKROT, sKROT))
    e('s_lshl_b32 s%d, s%d, 14' % (sKROT, sKROT))
else: e('s_mov_b32 s%d, 0' % sKROT)
e('s_lshl_b32 s%d, s%d, 4' % (sGRP, sBR))
e('s_add_u32 s%d, s%d, s%d' % (sGRP, sGRP, sB))
if OPT['rot']:
    e('s_mul_i32 s%d, s%d, 5' % (sROT, sB))
    e('s_lshr_b32 s%d, s%d, 2' % (sROT, sROT))
    e('s_lshl_b32 s%d, s%d, 1' % (sT2, sT2))
    e('s_add_u32 s%d, s%d, s%d' % (sROT, sROT, sT2))
    e('s_cmp_ge_u32 s%d, 20' % sROT)
    e('s_cselect_b32 s%d, 20, 0' % sT2)
    e('s_sub_u32 s%d, s%d, s%d' % (sKC, sROT, sT2))
else:
    e('s_mov_b32 s%d, 0' % sKC)
e('s_mov_b32 s%d, 0' % sJ8)
e('s_lshl_b32 s%d, s%d, 13' % (sJ2, sWAVE))
e('v_lshrrev_b32 v4, 4, v0')
e('v_and_b32 v5, 15, v0')
e('v_lshlrev_b32 v6, 2, v4')
e('v_xor_b32 v6, v6, v5')
e('v_lshlrev_b32 v6, 4, v6')
e('v_lshl_add_u32 v%d, v4, 13, v6' % vWQ)
e('v_lshl_add_u32 v%d, v4, 8, v6' % vV)
e('v_and_b32 v6, 3, v0')
e('v_xor_b32 v6, v6, v4')
e('v_lshlrev_b32 v6, 4, v6')
e('v_lshrrev_b32 v7, 2, v0')
e('v_mul_u32_u24 v7, 1280, v7')
e('v_add_u32 v%d, v7, v6' % vX)
e('s_mul_i32 s%d, s%d, 122880' % (sXO, sB))
e('s_mul_i32 s%d, s%d, 20480' % (sT, sWAVE))
e('s_add_u32 s%d, s%d, s%d' % (sXO, sXO, sT))
e('s_lshl_b32 s%d, s%d, 10' % (sWSL, sWAVE))
e('s_add_u32 s%d, s%d, %d' % (sWSL, sWSL, XS0))
e('s_add_u32 s%d, s%d, %d' % (sLJ, sWSL, 4 * XST))
e('s_add_u32 s%d, s%d, s%d' % (sWQO, sH0, sWAVE))
e('s_lshl_b32 s%d, s%d, 8' % (sWQO, sWQO))
e('s_mov_b32 s%d, 0' % sMS)
e('s_mov_b32 s%d, 0' % sU)
if OPT['prof']: e('s_mov_b32 s%d, 0' % sPI)
for d, size in ((sX, 16*96*640*2), (sWQ, 640*4096*2)):
    e('s_mov_b32 s%d, %d' % (d + 2, size))
    e('s_mov_b32 s%d, 0x20000' % (d + 3))
e('s_and_b32 s%d, s%d, 3' % (sT3, sWAVE))
e('s_waitcnt lgkmcnt(0)')
if OPT['prof']: e('s_memtime s[%d:%d]' % (sPB, sPB + 1))
e('s_cmp_eq_u32 s%d, 0' % sBR)
for (dst, a, b_) in ((sX, 36, 46), (sWQ, 42, 52), (sK, 38, 48), (sV, 40, 50), (sWO, 44, 54)):
    e('s_cselect_b64 s[%d:%d], s[%d:%d], s[%d:%d]' % (dst, dst + 1, a, a + 1, b_, b_ + 1))
for d in (sX, sWQ):
    e('s_and_b32 s%d, s%d, 0xffff' % (d + 1, d + 1))
e('s_cmp_ge_u32 s%d, 4' % sWAVE)
e('s_cbranch_scc1 L_qp')
def rest_srd(b):
    for (dst, size) in ((sK, 16*32*512*128*2), (sV, 16*32*512*128*2), (sWO, 640*4096*2)):
        b('s_mov_b32 s%d, %d' % (dst + 2, size))
        b('s_mov_b32 s%d, 0x20000' % (dst + 3))
    for (dst, a, size) in ((sOUT, 56, 16*96*1280*2), (sWS, 60, 293339136)):
        b('s_mov_b64 s[%d:%d], s[%d:%d]' % (dst, dst + 1, a, a + 1))
        b('s_mov_b32 s%d, %d' % (dst + 2, size))
        b('s_mov_b32 s%d, 0x20000' % (dst + 3))
    for d in (sK, sV, sWO, sOUT, sWS):
        b('s_and_b32 s%d, s%d, 0xffff' % (d + 1, d + 1))
    b('s_mov_b64 s[%d:%d], s[58:59]' % (sDBG, sDBG + 1))

NX = [0]
def issue_Q():
    nx = NX[0]; NX[0] += 1
    o = ['s_add_u32 m0, s%d, s%d' % (sMS, sJ2),
         's_lshl_b32 s%d, s%d, 18' % (sT, sKC),
         's_add_u32 s%d, s%d, s%d' % (sT, sT, sWQO)]
    RS = 32768
    for m in range(8):
        if m == 4:
            o += ['s_add_u32 m0, m0, 4096', 's_add_u32 s%d, s%d, %d' % (sT, sT, RS + 3072)]
        elif m: o.append('s_add_u32 s%d, s%d, %d' % (sT, sT, RS - 1024))
        o.append('buffer_load_dwordx4 v%d, %s, s%d offen offset:%d lds' % (vWQ, srd(sWQ), sT, (m & 3) * 1024))
    o += ['s_mov_b32 m0, s%d' % sWSL,
          's_lshl_b32 s%d, s%d, 6' % (sT, sKC),
          's_add_u32 s%d, s%d, s%d' % (sT, sT, sXO),
          'buffer_load_dwordx4 v%d, %s, s%d offen lds' % (vX, srd(sX), sT),
          's_cmp_ge_u32 s%d, 2' % sWAVE,
          's_cbranch_scc1 L_nx%d' % nx,
          's_add_u32 m0, s%d, 4096' % sWSL,
          's_add_u32 s%d, s%d, %d' % (sT, sT, 4 * 20480),
          'buffer_load_dwordx4 v%d, %s, s%d offen lds' % (vX, srd(sX), sT),
          lambda b: b.raw('L_nx%d:' % nx),
          's_add_u32 s%d, s%d, 1' % (sKC, sKC),
          's_cmp_eq_u32 s%d, 20' % sKC,
          's_cselect_b32 s%d, 0, s%d' % (sKC, sKC),
          's_add_u32 s%d, s%d, %d' % (sMS, sMS, SLOT),
          's_and_b32 s%d, s%d, 0x18000' % (sMS, sMS),
          's_add_u32 s%d, s%d, %d' % (sWSL, sWSL, XST),
          's_cmp_eq_u32 s%d, s%d' % (sWSL, sLJ),
          's_cselect_b32 s%d, %d, 0' % (sT, 4 * XST),
          's_sub_u32 s%d, s%d, s%d' % (sWSL, sWSL, sT)]
    return o
def issue_H(half, ng=2):
    o = []
    for gq in range(ng):
        off = 16384 * half + 4096 * gq
        if off: o.append('s_add_u32 m0, s%d, %d' % (sAS, off))
        else: o.append('s_mov_b32 m0, s%d' % sAS)
        if gq: o.append('s_add_u32 s%d, s%d, %d' % (sT, sKVO, 4096 * gq))
        for e_ in range(4):
            o.append('buffer_load_dwordx4 v%d, %s, s%d offen offset:%d%s lds' % (vV if half else vK + e_, srd(sV if half else sK), sT if gq else sKVO, e_ * 1024, NT))
    if half:
        o += ['s_add_u32 s%d, s%d, 16384' % (sKVO, sKVO),
              's_and_b32 s%d, s%d, 0x1c000' % (sT2, sKVO),
              's_cselect_b32 s%d, 0, 0x20000' % sT2,
              's_sub_u32 s%d, s%d, s%d' % (sKVO, sKVO, sT2),
              's_add_u32 s%d, s%d, %d' % (sAS, sAS, SLOT),
              's_cmp_ge_u32 s%d, %d' % (sAS, 3 * SLOT),
              's_cselect_b32 s%d, s%d, s%d' % (sAS, sJ8, sAS)]
    return o
def issue_A(ng=2): return issue_H(0, ng) + issue_H(1, ng)
def gend(b, vm=None, loop=None, lg=False, tail=None, cmp=None):
    if lg or OPT['prof']: b('s_waitcnt lgkmcnt(0)')
    pstamp(b, sPB)
    if vm is not None: b('s_waitcnt vmcnt(%d)' % vm)
    if OPT['prof']:
        b('s_waitcnt lgkmcnt(0)')
        pwrite(b, [sPC, sPA, sPB]); pstamp(b, sPC)
    if tail: emit(b, tail)
    if loop and not cmp:
        b('s_sub_u32 s%d, s%d, 1' % (sCNT, sCNT))
        b('s_cmp_lg_u32 s%d, 0' % sCNT)
    if cmp: b(cmp)
    b('s_barrier')
    if loop: b('s_cbranch_scc1 %s' % loop)
def pshift_unit(b, lab):
    if OPT['prof']:
        b('s_and_b32 s%d, s%d, 7' % (sT, sN))
        b('s_cmp_lg_u32 s%d, 7' % sT)
        b('s_cbranch_scc1 %s' % lab)
        pshift(b)
        b.raw(lab + ':')

def qbar(b, vm=None, loop=None, lg=False):
    if vm is not None: b('s_waitcnt vmcnt(%d)' % vm)
    if lg or OPT['prof']: b('s_waitcnt lgkmcnt(0)')
    pwrite(b, [sPC]); pstamp(b, sPC)
    if loop:
        b('s_sub_u32 s%d, s%d, 1' % (sCNT, sCNT))
        b('s_cmp_lg_u32 s%d, 0' % sCNT)
    b('s_barrier')
    if loop: b('s_cbranch_scc1 %s' % loop)
def lanes(b):
    b('v_lshrrev_b32 v1, 5, v0')
    b('v_bfe_u32 v3, v0, 2, 2')
    b('v_lshl_add_u32 v2, v1, 3, v3')
    b('v_lshlrev_b32 v2, 8, v2')
    b('v_bfe_u32 v8, v0, 4, 1')
    b('v_lshl_add_u32 v2, v8, 5, v2')
    b('v_and_b32 v8, 1, v0')
    b('v_lshl_add_u32 v2, v8, 4, v2')
    b('v_bfe_u32 v8, v0, 1, 1')
    b('v_lshl_add_u32 v2, v8, 3, v2')
SCALE = (128 ** -0.5) * math.log2(math.e)
SCB = struct.unpack('<I', struct.pack('<f', SCALE))[0]
OA, QF, SA, SB, F0, F1, NM, PP, aK, aT, aX, LS, TM, aOW, RL = 0, 64, 96, 112, 128, 160, 192, 208, 216, 224, 228, 232, 234, 236, 238
ld = P.block('L_ld', ['L_entry'])
if OPT['pld']: ld('s_setprio %d' % OPT['pld'])
emit(ld, issue_Q() + issue_Q() + issue_Q())
rest_srd(ld)
ld('v_xor_b32 v6, v5, v4')
ld('v_lshlrev_b32 v6, 4, v6')
ld('v_lshl_add_u32 v6, v4, 8, v6')
for e_ in range(4):
    ld('v_xor_b32 v%d, %d, v6' % (vK + e_, 64 * e_))
ld('s_lshl_b32 s%d, s%d, 5' % (sT2, sB))
ld('s_add_u32 s%d, s%d, s%d' % (sT, sH0, sT2))
ld('s_lshl_b32 s%d, s%d, 17' % (sKVO, sT))
ld('s_add_u32 s%d, s%d, s%d' % (sKVO, sKVO, sKROT))
ld('s_mov_b32 s%d, 0' % sAS)
lanes(ld)
for t in range(4):
    ld('v_xor_b32 v5, %d, v3' % t)
    ld('v_lshl_add_u32 v%d, v5, 6, v2' % (aT + t))
ld('s_lshl_b32 s%d, s%d, 10' % (sT, sT3))
ld('s_add_u32 s%d, s%d, %d' % (sT, sT, W0))
ld('v_lshlrev_b32 v7, 4, v0')
ld('v_add_u32 v%d, s%d, v7' % (aOW, sT))
ld('v_and_b32 v5, 0x13, v0')
ld('v_bfe_u32 v6, v0, 2, 1')
ld('v_lshl_or_b32 v5, v6, 3, v5')
ld('v_bfe_u32 v6, v0, 3, 1')
ld('v_lshl_or_b32 v5, v6, 2, v5')
ld('v_and_b32 v6, 15, v5')
ld('v_xor_b32 v6, v6, v1')
ld('v_lshlrev_b32 v6, 4, v6')
ld('v_lshl_add_u32 v6, v5, 8, v6')
for s_ in range(8):
    ld('v_xor_b32 v%d, %d, v6' % (aK + s_, 32 * s_))
ld('s_mov_b32 s%d, 0x42000000' % sTHR)
ld('s_mov_b32 s%d, 0' % sSLOT)
ld('s_mov_b32 s%d, 17' % sCNT)
if OPT['prof']:
    ld('s_waitcnt lgkmcnt(0)')
    for i, r_ in enumerate((sPA, sPB)): ld('v_writelane_b32 v250, s%d, %d' % (r_, 56 + i))
ld('s_waitcnt vmcnt(18)')
pstamp(ld, sPC)
ld('s_barrier')
lq = P.block('L_ld_q', ['L_ld', 'L_ld_q'])
emit(lq, issue_Q())
qbar(lq, vm=18, loop='L_ld_q')
l7 = P.block('L_ld_7', ['L_ld_q'])
l7('s_cmp_lg_u32 s%d, 3' % sWAVE)
l7('s_cbranch_scc1 L_att')
l7 = P.block('L_ld_8', ['L_ld_7'])
emit(l7, issue_A(4))
qbar(l7, vm=41)
l7('s_waitcnt vmcnt(32)')
emit(l7, issue_A(4))
qbar(l7)
qbar(l7)
l7('s_mov_b32 s%d, 0' % sN)
qbar(l7, vm=32)
def bump(reg, at, by):
    return ['s_and_b32 s%d, s%d, 7' % (sT, sN),
            's_cmp_eq_u32 s%d, %d' % (sT, at),
            's_cselect_b32 s%d, %d, 0' % (sT, by),
            's_add_u32 s%d, s%d, s%d' % (reg, reg, sT)]
lm = P.block('L_ld_m', ['L_ld_8', 'L_ld_m'])
emit(lm, bump(sKVO, 6, 0x20000) + issue_A(4))
pstamp(lm, sPA)
gend(lm, vm=32, loop='L_ld_m', tail=[lambda b: pshift_unit(b, 'L_ps1'), 's_add_u32 s%d, s%d, 1' % (sN, sN)], cmp='s_cmp_lg_u32 s%d, 30' % sN)
lw = P.block('L_ld_w', ['L_ld_m'])
pstamp(lw, sPA)
gend(lw, vm=0)
pstamp(lw, sPA)
gend(lw, tail=[pshift])
if OPT['prof']:
    lw('s_waitcnt lgkmcnt(0)')
    pwrite(lw, [sPC]); pstamp(lw, sPC)
lw('s_barrier')
lw('s_branch L_tb')

QP = [QF + 8, QF + 24, QF, QF + 16]
def qf(ks): return QP[ks >> 1] + 4 * (ks & 1)
a = P.block('L_att', ['L_ld_7'])
qbar(a, vm=9)
qbar(a, vm=0)
qbar(a)
if OPT['patt'] != OPT['pld']: a('s_setprio %d' % OPT['patt'])
qbar(a)
def ring_slot(step, lo, hi):
    return ['s_add_u32 s%d, s%d, %d' % (sT, sSLOT, step),
            's_cmp_eq_u32 s%d, %d' % (sT, hi),
            's_cselect_b32 s%d, %d, s%d' % (sT, lo, sT),
            's_sub_u32 s%d, s%d, s%d' % (sDELTA, sT, sSLOT),
            's_mov_b32 s%d, s%d' % (sSLOT, sT)]
def kv_slot(): return ring_slot(SLOT, 0, 3 * SLOT)
def adv(base, n, s=None):
    return ['v_add_u32 v%d, s%d, v%d' % (base + i, sDELTA if s is None else s, base + i) for i in range(n)]
def endstep(b, loop=None):
    b('s_waitcnt lgkmcnt(0)')
    pwrite(b, [sPC]); pstamp(b, sPC)
    if loop:
        b('s_sub_u32 s%d, s%d, 1' % (sCNT, sCNT))
        b('s_cmp_lg_u32 s%d, 0' % sCNT)
    b('s_barrier')
    if loop: b('s_cbranch_scc1 %s' % loop)

def k_read(F, s, tile): return 'ds_read_b128 %s, v%d offset:%d' % (vr(F + 4 * s, 4), aK + s, tile * 8192)
def v_read(F, i, tile):
    sp, t = i >> 2, i & 3
    return ['ds_read_b64_tr_b16 %s, v%d offset:%d' % (vr(F + 4 * i + 2 * jj, 2), aT + t, 16384 + tile * 8192 + sp * 4096 + jj * 1024) for jj in range(2)]
def s_mf(F, s, X, c): return '%s %s, %s, %s, %s' % (MF, vr(X, 16), vr(F + 4 * s, 4), vr(qf(s), 4), c)
def pv_mf(F, i, first=False):
    sp, t = i >> 2, i & 3
    c = '0' if (first and sp == 0) else vr(OA + 16 * t, 16)
    return '%s %s, %s, %s, %s' % (MF, vr(OA + 16 * t, 16), vr(F + 4 * i, 4), vr(PP + 4 * sp, 4), c)
def softmax_ops(X, adds=False):
    ops = []
    for i in range(8):
        ops.append('v_exp_f32 v%d, v%d' % (X + 2 * i, X + 2 * i))
        ops.append('v_exp_f32 v%d, v%d' % (X + 2 * i + 1, X + 2 * i + 1))
        if i >= 1:
            ops.append('v_cvt_pk_bf16_f32 v%d, v%d, v%d' % (PP + i - 1, X + 2 * i - 2, X + 2 * i - 1))
            if adds: ops += add_ops(X)[2 * i - 2:2 * i]
    ops.append('v_cvt_pk_bf16_f32 v%d, v%d, v%d' % (PP + 7, X + 14, X + 15))
    if adds: ops += add_ops(X)[14:16]
    return ops
def add_ops(X):
    return ['v_add_f32 v%d, v%d, v%d' % (LS + (i & 1), LS + (i & 1), X + i) for i in range(16)]
def max_ops(X):
    ops = ['v_max3_f32 v%d, v%d, v%d, v%d' % (TM, X, X + 1, X + 2)]
    for i in range(6):
        ops.append('v_max3_f32 v%d, v%d, v%d, v%d' % (TM, TM, X + 3 + 2 * i, X + 4 + 2 * i))
    ops.append('v_max_f32 v%d, v%d, v%d' % (TM, TM, X + 15))
    return ops
CMP = 'v_cmp_lt_f32 vcc, s%d, v%d' % (sTHR, TM)
slow = []
def check(b, X, name):
    b('s_cbranch_vccnz L_slow_%s' % name)
    slow.append((name, X, b.name))
    return P.block('L_back_%s' % name, [b.name, 'L_slow_%s' % name], pend=b.pend)

def pack(src, dst, mul, pk=False):
    o = []
    for h in range(2):
        if pk: o += ['v_pk_mul_f32 %s, %s, %s' % (vr(src + 8 * h + 2 * i, 2), vr(src + 8 * h + 2 * i, 2), pk) for i in range(4)]
        else: o += ['v_mul_f32 v%d, %s, v%d' % (src + 8 * h + i, mul, src + 8 * h + i) for i in range(8)]
        o += ['v_cvt_pk_bf16_f32 v%d, v%d, v%d' % (dst + 4 * h + i, src + 8 * h + 2 * i, src + 8 * h + 2 * i + 1) for i in range(4)]
    return o
def phase_pv0(b, Fa, Fb, first=False, ak=False, cnt=None):
    b.waitfor(rng(Fb, 32))
    vr1 = sum((v_read(Fa, i, 1) for i in range(8)), [])
    ad = add_ops(SA); mx = max_ops(SB)
    fill = zipf(split(vr1, [4, 4, 4, 4, 0, 0, 0, 0]), split(ad, [2, 2, 1, 1, 2, 3, 1, 4]), split(mx, [0, 0, 1, 1, 3, 3, 0, 0]))
    fill[6] = [CMP] + fill[6]
    if ak:
        fill[4] = fill[4] + kv_slot(); fill[5] = fill[5] + adv(aK, 8)
    fill[6] = fill[6] + adv(aT, 4)
    if cnt: fill[7] = fill[7] + [cnt]
    weave(b, [pv_mf(Fb, i, first) for i in range(8)], fill)
def first_max(b, extra=()):
    ex = list(extra)
    mx = max_ops(SA) + ['v_mov_b32 v%d, v%d' % (TM + 1, TM), 'v_permlane32_swap_b32 v%d, v%d' % (TM, TM + 1),
                        'v_max_f32 v%d, v%d, v%d' % (TM, TM, TM + 1)]
    n = min(len(ex), len(mx))
    for i, o in enumerate(mx):
        b(o)
        if i < n: b(ex[i])
    ex = ex[n:]
    for i in range(16):
        b('v_mul_f32 v%d, -1.0, v%d' % (NM + i, TM))
    subs = ['v_sub_f32 v%d, v%d, v%d' % (SA + i, SA + i, TM) for i in range(16)]
    for o in subs[:4]: b(o)
    sm = softmax_ops(SA)
    fill = zipf([subs[4 + 2 * n:6 + 2 * n] + sm[3 * n:3 * n + 3] for n in range(8)], spread(ex, 7) + [[]])
    b.waitfor(rng(F0, 32))
    weave(b, [s_mf(F0, s, SB, vr(NM, 16) if s == 0 else vr(SB, 16)) for s in range(8)], fill)

a0 = P.block('L_att_a0', ['L_att'])
for s in range(8):
    a0('ds_read_b128 %s, v%d offset:%d' % (vr(qf(s), 4), aOW, s * 3072))
    a0(k_read(F0, s, 0))
a0('v_mov_b32 v%d, 0' % LS)
a0('v_mov_b32 v%d, 0' % (LS + 1))
vr0 = sum((v_read(F1, i, 0) for i in range(8)), [])
fill = [[k_read(F0, n, 1)] + vr0[2 * n:2 * n + 2] for n in range(8)]
weave(a0, [s_mf(F0, s, SA, '0' if s == 0 else vr(SA, 16)) for s in range(8)], fill)
first_max(a0)
phase_pv0(a0, F0, F1, first=True, ak=True, cnt='s_mov_b32 s%d, 4' % sCNT)
a0b = check(a0, SB, 'a0')
endstep(a0b)

def a_step(b, Fa, Fb, nm):
    for s in range(8): b(k_read(Fa, s, 0))
    sm = softmax_ops(SB, adds=True)
    HEAD = 12
    for o in sm[:HEAD]: b(o)
    fill = spread(sm[HEAD:], 8)
    fill[3] = fill[3] + [W(rng(Fa + 16, 16))]
    b.waitfor(rng(Fa, 16))
    weave(b, [s_mf(Fa, s, SA, vr(NM, 16) if s == 0 else vr(SA, 16)) for s in range(8)], fill)
    kr = [k_read(Fa, s, 1) for s in range(8)]
    fill = zipf(split(kr, [2, 2, 2, 2, 0, 0, 0, 0]), [v_read(Fb, i, 0) for i in range(8)],
                split(max_ops(SA), [0, 2, 2, 2, 2, 0, 0, 0]))
    ts = kv_slot(); ak = adv(aK, 8)
    fill[0] = fill[0] + ts[:3]; fill[4] = fill[4] + ts[3:]; fill[5] = fill[5] + [CMP] + ak[:2]
    fill[6] = fill[6] + ak[2:6]; fill[7] = fill[7] + ak[6:]
    weave(b, [pv_mf(Fb, i) for i in range(8)], fill)
    b = check(b, SA, nm + '1')
    b.waitfor(rng(Fa, 32))
    weave(b, [s_mf(Fa, s, SB, vr(NM, 16) if s == 0 else vr(SB, 16)) for s in range(8)], spread(softmax_ops(SA), 8))
    phase_pv0(b, Fa, Fb)
    return check(b, SB, nm + '2')
ao = P.block('L_att_ao', ['L_back_a0', 'L_back_ae2', 'L_back_ab'])
ao2 = a_step(ao, F1, F0, 'ao')
ao2('s_waitcnt lgkmcnt(0)')
pwrite(ao2, [sPC]); pstamp(ao2, sPC)
ao2('s_sub_u32 s%d, s%d, 1' % (sCNT, sCNT))
ao2('s_cmp_eq_u32 s%d, 0' % sCNT)
ao2('s_barrier')
ao2('s_cbranch_scc1 L_att_drain')
ae = P.block('L_att_ae', ['L_back_ao2'])
ae2 = a_step(ae, F0, F1, 'ae')
endstep(ae2)
ae2('s_branch L_att_ao')

def lsum(b):
    b('v_add_f32 v%d, v%d, v%d' % (RL, LS, LS + 1))
    b('v_mov_b32 v%d, v%d' % (RL + 1, RL))
    b('v_permlane32_swap_b32 v%d, v%d' % (RL, RL + 1))
    b('v_add_f32 v%d, v%d, v%d' % (RL, RL, RL + 1))
    b('v_rcp_f32 v%d, v%d' % (RL, RL))
    b('v_mov_b32 v%d, v%d' % (RL + 1, RL))
def onorm():
    o = []
    for t in range(4):
        pk = pack(OA + 16 * t, OA + 16 * t, 'v%d' % RL, vr(RL, 2) if OPT['pko'] else False)
        n = len(pk) // 2
        o += pk[:n] + ['ds_write_b128 v%d, %s offset:%d' % (aOW, vr(OA + 16 * t, 4), (2 * t) * 3072)]
        o += pk[n:] + ['ds_write_b128 v%d, %s offset:%d' % (aOW, vr(OA + 16 * t + 4, 4), (2 * t + 1) * 3072)]
    return o
def last_pv(b):
    sm = softmax_ops(SB)
    for o in sm[:14]: b(o)
    fill = zipf(split(sm[14:], [3, 3, 3, 1, 0, 0, 0, 0]), split(add_ops(SB), [0, 0, 0, 2, 3, 3, 4, 4]))
    weave(b, [pv_mf(F1, i) for i in range(8)], fill)
    lsum(b)
d = P.block('L_att_drain', ['L_back_ao2'])
pshift(d)
d('s_add_u32 s%d, s%d, 1' % (sU, sU))
d('s_cmp_eq_u32 s%d, 4' % sU)
d('s_cbranch_scc1 L_att_fin')
ab = P.block('L_att_ab', ['L_att_drain'])
ab('v_xor_b32 v%d, 0x%x, v%d' % (aOW, W0 ^ BUF, aOW))
for s in range(8):
    ab('ds_read_b128 %s, v%d offset:%d' % (vr(qf(s), 4), aOW, s * 3072))
for s in range(7): ab(k_read(F0, s, 0))
sm = softmax_ops(SB)
for o in sm[:14]: ab(o)
fill = zipf(split(sm[14:], [3, 3, 3, 1, 0, 0, 0, 0]), split(add_ops(SB), [0, 0, 0, 2, 3, 3, 4, 4]))
fill[0] = [k_read(F0, 7, 0)] + fill[0]
weave(ab, [pv_mf(F1, i) for i in range(8)], fill)
lsum(ab)
ab('v_mov_b32 v%d, 0' % LS)
ab('v_mov_b32 v%d, 0' % (LS + 1))
on = onorm()
NS0 = len(on) // 2
pieces = [[]] + spread(on[:NS0], 7) if not OPT['pko'] else split(on[:NS0], [2, 4, 5, 5, 5, 5, 5, 5])
fill = [[k_read(F0, n, 1)] + vr0[2 * n:2 * n + 2] + pieces[n] for n in range(8)]
weave(ab, [s_mf(F0, s, SA, '0' if s == 0 else vr(SA, 16)) for s in range(8)], fill)
first_max(ab, on[NS0:])
phase_pv0(ab, F0, F1, first=True, ak=True, cnt='s_mov_b32 s%d, 4' % sCNT)
abb = check(ab, SB, 'ab')
endstep(abb)
abb('s_branch L_att_ao')

fi = P.block('L_att_fin', ['L_att_drain'])
if OPT['pf']: fi('s_setprio %d' % OPT['pf'])
fi('v_subrev_u32 v%d, %d, v%d' % (aOW, BUF - OB[3], aOW))
last_pv(fi)
for o in onorm(): fi(o)
fi('s_waitcnt lgkmcnt(0)')
pwrite(fi, [sPC]); pstamp(fi, sPC)
fi('s_barrier')
fi('s_branch L_tb')

QT = [0, 48, 144, 96]
WF, XF, qW, qX, aQW, aPF = [192, 220], [208, 236], 248, [249, 251], 248, 249
q = P.block('L_qp', ['L_entry'])
if OPT['pq']: q('s_setprio %d' % OPT['pq'])
rest_srd(q)
lanes(q)
q('v_xor_b32 v5, s%d, v3' % sT3)
q('v_lshl_add_u32 v%d, v5, 6, v2' % qW)
q('v_and_b32 v5, 31, v0')
q('v_xor_b32 v6, v3, v1')
q('v_lshlrev_b32 v6, 4, v6')
q('v_lshl_add_u32 v6, v5, 6, v6')
q('v_add_u32 v%d, %d, v6' % (qX[0], XS0))
q('v_xor_b32 v%d, 32, v%d' % (qX[1], qX[0]))
q('s_mov_b32 s%d, 0x%08x' % (sSC, SCB))
q('s_cmp_lg_u32 s%d, 4' % sWAVE)
q('s_cbranch_scc1 L_qp1')
qz = P.block('L_qpz', ['L_qp'])
qz('s_lshl_b32 s%d, s%d, 9' % (sT, sGRP))
qz('s_lshl_b32 s%d, s%d, 2' % (sT2, sME))
qz('s_add_u32 s%d, s%d, s%d' % (sT2, sT2, sT))
qz('s_add_u32 s%d, s%d, %d' % (sT2, sT2, FLAGS))
qz('v_lshlrev_b32 v192, 5, v0')
qz('v_mov_b32 v193, 0')
qz('s_mov_b64 exec, 0xffff')
qz('buffer_store_dword v193, v192, %s, s%d offen sc1' % (srd(sWS), sT2))
qz('s_mov_b64 exec, -1')
q = P.block('L_qp1', ['L_qp', 'L_qpz'])
for r_ in list(range(192)) + list(range(220, 248)): q('v_mov_b32 v%d, 0' % r_)
q('s_mov_b32 s%d, 5' % sCNT)
pstamp(q, sPC)
q('s_barrier')
def q_reads(st, ks):
    w = [['ds_read_b64_tr_b16 %s, v%d offset:%d' % (vr(WF[ks] + 4 * h + 2 * jj, 2), qW, (st & 1) * SLOT + h * 8192 + ks * 4096 + jj * 1024) for jj in range(2)] for h in range(4)]
    x = ['ds_read_b128 %s, v%d offset:%d' % (vr(XF[ks] + 4 * qt, 4), qX[ks], st * XST + qt * 2048) for qt in range(3)]
    return w[0] + x + w[1] + w[2] + w[3]
def q_mfs(ks):
    return ['%s %s, %s, %s, %s' % (MF, vr(QT[h] + 16 * qt, 16), vr(WF[ks] + 4 * h, 4), vr(XF[ks] + 4 * qt, 4), vr(QT[h] + 16 * qt, 16)) for h in range(4) for qt in range(3)]
qm = P.block('L_qp_m', ['L_qp1', 'L_qp_m'])
for st in range(4):
    weave(qm, q_mfs(1), split(q_reads(st, 0), [2, 2, 2, 2, 2, 1, 0, 0, 0, 0, 0, 0]))
    fill = split(q_reads(st, 1), [2, 2, 2, 2, 2, 1, 0, 0, 0, 0, 0, 0])
    if st & 1: fill[7] = ['v_xor_b32 v%d, 0x10000, v%d' % (qW, qW)]
    weave(qm, q_mfs(0), fill)
    qbar(qm, lg=True, loop='L_qp_m' if st == 3 else None)
def q_out(h, dst=None):
    o = []
    for qt in range(3):
        src = QT[h] + 16 * qt
        d_ = src if dst is None else dst + 8 * qt
        pk = pack(src, d_, 's%d' % sSC)
        if dst is None:
            o += pk[:12] + ['ds_write_b128 v%d, %s offset:%d' % (aQW, vr(d_, 4), qt * 1024)]
            o += pk[12:] + ['ds_write_b128 v%d, %s offset:%d' % (aQW, vr(d_ + 4, 4), qt * 1024 + 3072)]
        else: o += pk
    return o
qe = P.block('L_qp_e', ['L_qp_m'])
ad = ['v_mbcnt_lo_u32_b32 v%d, -1, 0' % aPF, 'v_mbcnt_hi_u32_b32 v%d, -1, v%d' % (aPF, aPF),
      's_mul_i32 s%d, s%d, 6144' % (sT, sT3), 's_add_u32 s%d, s%d, %d' % (sT, sT, W0),
      'v_lshlrev_b32 v%d, 4, v%d' % (aQW, aPF), 'v_add_u32 v%d, s%d, v%d' % (aQW, sT, aQW)]
weave(qe, q_mfs(1), [ad[:3], ad[3:], [], []] + spread(q_out(0), 8))
qbar(qe, lg=True)
ACC, AC3, BFR, AFR = 0, 96, [144, 156], [168, 176]
tA, tA1, tO, tOB, tW2, tW1, tONE, tZERO, tSL = 184, 186, 187, 188, 189, 190, 191, 192, 193
FIFO_A = [194 + 4 * i for i in range(13)]
FIFO_B = [96 + 4 * i for i in range(12)] + [194 + 4 * i for i in range(14)]
sPUB, sFLG, sW3 = sXO, sKC, sKS
UO = {1: [0, 1, 2, 3], 2: [2, 1, 0, 3], 3: [2, 1, 0, 3]}
def obase(p, u): return BUF if (p == 1 and u == 0) else OB[u]
class VM:
    def __init__(self): self.q = []
    def add(self, tag): self.q.append(tag)
    def wait(self, tags):
        last = max([i for i, t in enumerate(self.q) if t in tags], default=-1)
        if last < 0: return []
        n = len(self.q) - 1 - last
        self.q = self.q[last + 1:]
        return ['s_waitcnt vmcnt(%d)' % n]
def tail_setup(b, isA):
    b('v_mbcnt_lo_u32_b32 v%d, -1, 0' % tOB)
    b('v_mbcnt_hi_u32_b32 v%d, -1, v%d' % (tOB, tOB))
    L = tOB; x, y = tONE, tZERO
    b('v_lshrrev_b32 v%d, 3, v%d' % (x, L))
    b('v_mul_u32_u24 v%d, 1280, v%d' % (tW2, x))
    b('v_bfe_u32 v%d, v%d, 4, 1' % (x, L))
    b('v_lshlrev_b32 v%d, 2, v%d' % (x, x))
    b('v_and_b32 v%d, 7, v%d' % (y, L))
    b('v_xor_b32 v%d, v%d, v%d' % (x, x, y))
    b('v_lshl_add_u32 v%d, v%d, 4, v%d' % (tW2, x, tW2))
    b('s_lshl_b32 s%d, s%d, 7' % (sT2, sT3))
    if not isA: b('s_add_u32 s%d, s%d, 512' % (sT2, sT2))
    b('s_mul_i32 s%d, s%d, %d' % (sW3, sH0, 128 * 1280))
    b('s_add_u32 s%d, s%d, s%d' % (sWOB, sW3, sT2))
def tail_setup2(b, isA):
    L = tOB; x, y = tONE, tZERO
    if isA:
        b('s_lshl_b32 s%d, s%d, 12' % (sRB, sT3))
        b('s_add_u32 s%d, s%d, %d' % (sRB, sRB, ASL))
        b('s_lshl_b32 s%d, s%d, 6' % (sT2, sT3))
        b('s_add_u32 s%d, s%d, s%d' % (sW3, sW3, sT2))
        b('s_add_u32 s%d, s%d, 1024' % (sW3, sW3))
    else:
        b('s_lshl_b32 s%d, s%d, 3' % (sT, sT3))
        b('s_lshr_b32 s%d, 0x%08x, s%d' % (sRB, sum((BSL[i] >> 12) << (8 * i) for i in range(4)), sT))
        b('s_and_b32 s%d, s%d, 0xff' % (sRB, sRB))
        b('s_lshl_b32 s%d, s%d, 12' % (sRB, sRB))
    b('v_bfe_u32 v%d, v%d, 4, 1' % (x, L))
    b('v_lshlrev_b32 v%d, 5, v%d' % (tA1, x))
    b('v_and_b32 v%d, 1, v%d' % (x, L))
    b('v_lshl_add_u32 v%d, v%d, 4, v%d' % (tA1, x, tA1))
    b('v_bfe_u32 v%d, v%d, 1, 1' % (x, L))
    b('v_lshl_add_u32 v%d, v%d, 3, v%d' % (tA1, x, tA1))
    b('v_add_u32 v%d, s%d, v%d' % (tA1, sRB, tA1))
    b('v_lshrrev_b32 v%d, 5, v%d' % (x, L))
    b('v_bfe_u32 v%d, v%d, 2, 2' % (y, L))
    b('v_lshl_add_u32 v%d, v%d, 3, v%d' % (x, x, y))
    b('v_lshl_add_u32 v%d, v%d, 7, v%d' % (tA, x, tA1))
    b('v_lshl_add_u32 v%d, v%d, 6, v%d' % (tA1, x, tA1))
    b('v_bfe_u32 v%d, v%d, 3, 1' % (y, L))
    b('v_lshl_add_u32 v%d, v%d, 6, v%d' % (tA, y, tA))
    b('v_xor_b32 v%d, 64, v%d' % (tA + 1, tA))
    if isA:
        b('v_lshrrev_b32 v%d, 2, v%d' % (x, L))
        b('v_mul_u32_u24 v%d, 1280, v%d' % (tW1, x))
        b('v_and_b32 v%d, 3, v%d' % (x, L))
        b('v_lshl_add_u32 v%d, v%d, 4, v%d' % (tW1, x, tW1))
    b('v_lshlrev_b32 v%d, 4, v%d' % (tOB, L))
    b('v_add_u32 v%d, s%d, v%d' % (tSL, sRB, tOB))
    b('v_mov_b32 v%d, 1' % tONE)
    b('v_mov_b32 v%d, 0' % tZERO)
    b('s_lshl_b32 s%d, s%d, 3' % (sT, sGRP))
    b('s_add_u32 s%d, s%d, s%d' % (sT, sT, sME))
    b('s_mul_i32 s%d, s%d, 122880' % (sPUB, sT))
    b('s_mul_i32 s%d, s%d, 12288' % (sT, sT3))
    b('s_add_u32 s%d, s%d, s%d' % (sPUB, sPUB, sT))
    if not isA: b('s_add_u32 s%d, s%d, %d' % (sPUB, sPUB, 8 * 6144))
    b('s_lshl_b32 s%d, s%d, 9' % (sFLG, sGRP))
    b('s_lshl_b32 s%d, s%d, 7' % (sT, sT3))
    b('s_add_u32 s%d, s%d, s%d' % (sFLG, sFLG, sT))
    b('s_lshl_b32 s%d, s%d, 2' % (sT, sME))
    b('s_add_u32 s%d, s%d, s%d' % (sFLG, sFLG, sT))
    b('s_add_u32 s%d, s%d, %d' % (sFLG, sFLG, FLAGS + (0 if isA else 32)))
def wrow(p, k): return (UO[p][k >> 3] * 128 + (k & 7) * 16) * 1280
def ncol(p): return 1 if p == 3 else 2
class Stream:
    def __init__(self, seq, fifo):
        self.seq = seq; self.fifo = fifo; self.vm = VM(); self.nl = 0; self.ob = None
        self.items = []; self.first = []
        for (p, k) in seq:
            self.first.append(len(self.items))
            if not self.direct(p, k): self.items += [(p, k, h) for h in range(ncol(p))]
        self.first.append(len(self.items))
    def direct(self, p, k): return p == 3 and k >= 24
    def load(self):
        if self.nl >= len(self.items): return []
        p, k, h = self.items[self.nl]; r_ = self.fifo[self.nl % len(self.fifo)]
        def ld(b, j=self.nl): self.vm.add(j)
        self.nl += 1
        return ['s_add_u32 s%d, s%d, %d' % (sT, sW3 if p == 3 else sWOB, wrow(p, k) + 10240 * h),
                'buffer_load_dwordx4 %s, v%d, %s, s%d offen' % (vr(r_, 4), tW1 if p == 3 else tW2, srd(sWO), sT), ld]
    def writes(self, i):
        if i >= len(self.seq): return [], []
        js = list(range(self.first[i], self.first[i + 1]))
        if not js: return [], []
        w = [lambda b: emit(b, self.vm.wait(set(js)))]
        w += ['ds_write_b128 v%d, %s offset:%d' % (tSL, vr(self.fifo[j % len(self.fifo)], 4), (i & 1) * 2048 + (j - js[0]) * 1024) for j in js]
        return w, js
    def reads(self, i):
        if i >= len(self.seq): return []
        p, k = self.seq[i]; n = ncol(p); o = []
        ob = obase(p, UO[p][k >> 3])
        if ob != self.ob: o.append('v_add_u32 v%d, %d, v%d' % (tO, ob, tOB)); self.ob = ob
        off = (i & 1) * 2048
        if self.direct(p, k):
            if k == 24:
                o += ['s_lshl_b32 s%d, s%d, 13' % (sT2, sT3), 's_sub_u32 s%d, s%d, s%d' % (sT2, sT2, sRB),
                      'v_add_u32 v%d, s%d, v%d' % (tA1, sT2, tA1), lambda b: emit(b, self.vm.wait({'d'}))]
            off = (k - 24) * 1024
        a_ = []
        for t in range(n):
            for jj in range(2):
                a_.append('ds_read_b64_tr_b16 %s, v%d offset:%d' % (vr(AFR[i & 1] + 4 * t + 2 * jj, 2), tA + t if n == 2 else tA1, off + jj * 256 * n))
        b_ = ['ds_read_b128 %s, v%d offset:%d' % (vr(BFR[i & 1] + 4 * qt, 4), tO, (k & 7) * 3072 + qt * 1024) for qt in range(3)]
        return o + a_[:2] + b_ + a_[2:]
    def kstep(self, b, i, top=None, extra=()):
        p, k = self.seq[i]; n = ncol(p); mf = []
        for t in range(n):
            for qt in range(3):
                acc = vr((AC3 if p == 3 else ACC) + 16 * (qt * n + t), 16)
                mf.append('%s %s, %s, %s, %s' % (MF, acc, vr(AFR[i & 1] + 4 * t, 4), vr(BFR[i & 1] + 4 * qt, 4), acc if k else '0'))
        b.waitfor(rng(AFR[i & 1], 4 * n) | rng(BFR[i & 1], 12))
        if top: top(b)
        rd = self.reads(i + 1)
        wr, js = self.writes(i + 2)
        ld = sum((self.load() for _ in js), [])
        if OPT['fine'] and p == 2 and k >= 1:
            if k & 1:
                b('s_memtime s[46:47]')
                wr = ['s_memtime s[48:49]'] + wr[:1] + ['s_memtime s[50:51]'] + wr[1:]
            else:
                b('s_waitcnt lgkmcnt(0)')
                for n_, r_ in enumerate((46, 48, 50)): b('v_writelane_b32 v250, s%d, %d' % (r_, 16 + 3 * (k // 2 - 1) + n_))
        fill = [[] for _ in mf]
        if n == 2:
            fill[0] += rd[:3]; fill[1] += rd[3:6]; fill[2] += rd[6:]
            fill[3] += wr; fill[4] += ld + list(extra)
        else:
            fill[0] += rd[:5]; fill[1] += rd[5:] + wr; fill[2] += ld + list(extra)
        weave(b, mf, fill)
    def slow(self, b, i, extra=()):
        p, k = self.seq[i]
        emit(b, self.reads(i))
        mf = []
        for t in range(2):
            for qt in range(3):
                acc = vr(ACC + 16 * (qt * 2 + t), 16)
                mf.append('%s %s, %s, %s, %s' % (MF, acc, vr(AFR[i & 1] + 4 * t, 4), vr(BFR[i & 1] + 4 * qt, 4), acc if k else '0'))
        wr, js = self.writes(i + 1)
        ld = sum((self.load() for _ in js), [])
        weave(b, mf, [[], [], wr, ld, list(extra), []])
    def prime(self, b):
        for i in range(2):
            wr, js = self.writes(i)
            emit(b, wr + sum((self.load() for _ in js), []))
def publish(b, n, acc0):
    c = 0
    for t in range(n):
        for qt in range(3):
            base = acc0 + 16 * (qt * n + t)
            for i in range(8):
                b('v_cvt_pk_bf16_f32 v%d, v%d, v%d' % (base + i, base + 2 * i, base + 2 * i + 1))
            b('s_add_u32 s%d, s%d, %d' % (sT2, sPUB, (t * 6 + qt * 2) * 1024))
            for h in range(2):
                if OPT['thr'] and n == 2 and acc0 == ACC and b.name.startswith('L_a') and c >= OPT['thr']: b('s_waitcnt vmcnt(%d)' % (OPT['thr'] - 1))
                b('buffer_store_dwordx4 %s, v%d, %s, s%d offen offset:%d sc1' % (vr(base + 4 * h, 4), tOB, srd(sWS), sT2, h * 1024))
                c += 1
def flag(b):
    b('s_waitcnt vmcnt(0)')
    b('s_mov_b64 exec, 1')
    b('buffer_store_dword v%d, v%d, %s, s%d offen sc1' % (tONE, tZERO, srd(sWS), sFLG))
    b('s_mov_b64 exec, -1')

sOO, sSB, sFB = 36, 42, 45
NP = [2, 2, 1]
def red_addr(b, ps, rFO):
    b('v_lshrrev_b32 v%d, 2, v%d' % (rFO, tOB))
    b('v_and_b32 v%d, 0x7f, v%d' % (rFO, rFO))
    b('s_mul_i32 s%d, s%d, %d' % (sT1, sGRP, 8 * 122880))
    b('s_lshl_b32 s%d, s%d, 11' % (sT, sT3))
    b('s_add_u32 s%d, s%d, s%d' % (sT1, sT1, sT))
    b('s_mul_i32 s%d, s%d, 6144' % (sT, sME))
    b('s_add_u32 s%d, s%d, s%d' % (sSB, sT1, sT))
    b('s_lshr_b32 s%d, s%d, 1' % (sT2, sME))
    if 1 in ps:
        b('s_add_u32 s%d, s%d, %d' % (sSB + 1, sSB, 8 * 6144))
        b('s_mul_i32 s%d, s%d, 6144' % (sT, sT2))
        b('s_add_u32 s%d, s%d, s%d' % (sSB + 2, sT1, sT))
        b('s_and_b32 s%d, s%d, 1' % (sN, sME))
        b('s_lshl_b32 s%d, s%d, 10' % (sT, sN))
        b('s_add_u32 s%d, s%d, s%d' % (sSB + 2, sSB + 2, sT))
        b('s_add_u32 s%d, s%d, %d' % (sSB + 2, sSB + 2, 16 * 6144))
    b('s_lshl_b32 s%d, s%d, 9' % (sFB, sGRP))
    b('s_lshl_b32 s%d, s%d, 7' % (sT, sT2))
    b('s_add_u32 s%d, s%d, s%d' % (sFB, sFB, sT))
    b('s_add_u32 s%d, s%d, %d' % (sFB, sFB, FLAGS))
    b('s_mul_i32 s%d, s%d, %d' % (sT1, sB, 96 * 2560))
    b('s_mul_i32 s%d, s%d, 1280' % (sT, sBR))
    b('s_add_u32 s%d, s%d, s%d' % (sT1, sT1, sT))
    b('s_mul_i32 s%d, s%d, %d' % (sT, sT3, 32 * 2560))
    b('s_add_u32 s%d, s%d, s%d' % (sT1, sT1, sT))
    b('s_lshl_b32 s%d, s%d, 6' % (sT, sME))
    b('s_add_u32 s%d, s%d, s%d' % (sOO, sT1, sT))
    if 1 in ps:
        b('s_add_u32 s%d, s%d, 512' % (sOO + 1, sOO))
        b('s_lshl_b32 s%d, s%d, 6' % (sT, sT2))
        b('s_add_u32 s%d, s%d, s%d' % (sOO + 2, sT1, sT))
        b('s_lshl_b32 s%d, s%d, 5' % (sT, sN))
        b('s_add_u32 s%d, s%d, s%d' % (sOO + 2, sOO + 2, sT))
        b('s_add_u32 s%d, s%d, 1024' % (sOO + 2, sOO + 2))
    b('s_mov_b32 s%d, 0x40000' % sCNT)
def red_sel(b, RA, rOUT, t):
    b('v_lshrrev_b32 v%d, 4, v%d' % (t, tOB))
    b('v_and_b32 v%d, 31, v%d' % (t + 1, t))
    b('v_lshrrev_b32 v%d, 5, v%d' % (t + 2, t))
    b('v_mul_u32_u24 v%d, 2560, v%d' % (rOUT, t + 1))
    b('v_lshl_add_u32 v%d, v%d, 4, v%d' % (rOUT, t + 2, rOUT))
    b('v_bfe_u32 v%d, v%d, 2, 1' % (t + 3, t + 1))
    b('v_xor_b32 v%d, v%d, v%d' % (t + 3, t + 3, t + 2))
    b('v_lshrrev_b32 v%d, 4, v%d' % (t + 4, t + 1))
    b('v_or_b32 v%d, v%d, v%d' % (t + 3, t + 3, t + 4))
    b('v_lshlrev_b32 v%d, 3, v%d' % (t + 3, t + 3))
    b('v_bfe_u32 v%d, v%d, 3, 1' % (t + 4, t + 1))
    b('v_bfe_u32 v%d, v%d, 1, 1' % (t, t + 1))
    b('v_lshl_or_b32 v%d, v%d, 1, v%d' % (t + 4, t + 4, t))
    b('v_or_b32 v%d, v%d, v%d' % (t + 3, t + 3, t + 4))
    b('v_and_b32 v%d, 1, v%d' % (t + 4, t + 1))
    b('v_lshlrev_b32 v%d, 4, v%d' % (t + 4, t + 4))
    b('v_mov_b32 v%d, 0x3f80' % t)
    b('v_lshlrev_b32 v%d, v%d, v%d' % (t + 4, t + 4, t))
    for i in range(4):
        b('v_cmp_eq_u32 vcc, %d, v%d' % (i, t + 3))
        b('v_cndmask_b32 v%d, 0, v%d, vcc' % (RA + i, t + 4))
def poll(p, prev, rF, rFO, raw):
    rp = P.block('L_red_p%d' % p, prev + ['L_red_p%d' % p])
    rp('buffer_load_dword v%d, v%d, %s, s%d offen sc1' % (rF, rFO, srd(sWS), sFB))
    rp('s_sub_u32 s%d, s%d, 1' % (sCNT, sCNT))
    rp('s_waitcnt vmcnt(0)')
    rp('v_cmp_eq_u32 vcc, 1, v%d' % rF)
    rp('s_cmp_gt_i32 s%d, 0' % sCNT)
    rp('s_cselect_b32 s%d, 0, -1' % sT2)
    rp('s_or_b32 s%d, vcc_lo, s%d' % (sT, sT2))
    rp('s_bfe_u32 s%d, s%d, 0x%x' % (sT, sT, (8 << 16) | (8 * p)))
    rp('s_cmp_lg_u32 s%d, 0xff' % sT)
    rp('s_cbranch_scc1 L_red_p%d' % p)
    ri = P.block('L_red_i%d' % p, ['L_red_p%d' % p])
    pmark(ri)
    for src in range(8):
        ri('s_add_u32 s%d, s%d, %d' % (sT, sSB + p, src * 122880))
        for h in range(NP[p]):
            ri('buffer_load_dwordx4 %s, v%d, %s, s%d offen offset:%d sc1' % (vr(raw + 4 * (NP[p] * src + h), 4), tOB, srd(sWS), sT, h * 1024))
    return ri
def finish_stage(b, p, raw, racc, RA, rOUT):
    for src in range(8):
        for h in range(NP[p]):
            acc = vr(racc + 16 * h, 16)
            b('%s %s, %s, %s, %s' % (MF, acc, vr(RA, 4), vr(raw + 4 * (NP[p] * src + h), 4), acc if src else '0'))
    for h in range(NP[p]):
        acc = racc + 16 * h
        for i in range(4):
            b('v_cvt_pk_bf16_f32 v%d, v%d, v%d' % (acc + i, acc + 2 * i, acc + 2 * i + 1))
        b('buffer_store_dwordx4 %s, v%d, %s, s%d offen offset:%d' % (vr(acc, 4), rOUT, srd(sOUT), sOO + p, 32 * h))

M3, N31 = OPT['m3'], OPT['n31']
seqA = [(1, k) for k in range(24)] + [(3, k) for k in range(M3)] + [(1, k) for k in range(24, 32)] + [(3, k) for k in range(M3, 32)]
SA_ = Stream(seqA, FIFO_A)
ta = P.block('L_a24', ['L_qp_e'])
def abar0(b, n):
    pstamp(b, sPA)
    gend(b, lg=True, tail=[pshift] if (n & 7) == 7 else None)
def wo_pf(n):
    n -= OPT['wpf0']
    if not 0 <= n < 20: return []
    return ['s_add_u32 s%d, s%d, %d' % (sT, sPK, n * 32768), 's_mov_b64 exec, 15',
            'buffer_load_dword v255, v%d, %s, s%d offen' % (aPF, srd(sWO), sT), 's_mov_b64 exec, -1', lambda b: SA_.vm.add('pf')]
UP, DN = 'v_add_u32 v%d, %d, v%d' % (aQW, BUF - W0, aQW), 'v_subrev_u32 v%d, %d, v%d' % (aQW, BUF - W0, aQW)
emit(ta, [UP] + q_out(1))
abar0(ta, 0)
emit(ta, [DN] + q_out(2) + q_out(3, AC3) + [UP])
ta('v_lshlrev_b32 v%d, 11, v%d' % (aPF, aPF))
ta('s_mul_i32 s%d, s%d, %d' % (sPK, sH0, 128 * 1280))
ta('s_lshl_b32 s%d, s%d, 7' % (sT, sB))
ta('s_add_u32 s%d, s%d, s%d' % (sPK, sPK, sT))
ta('s_lshl_b32 s%d, s%d, 13' % (sT, sT3))
ta('s_add_u32 s%d, s%d, s%d' % (sPK, sPK, sT))
abar0(ta, 1)
ta('s_lshl_b32 s%d, s%d, 3' % (sT, sGRP))
ta('v_mov_b32 v0, s%d' % sT)
ta('s_cmp_lg_u32 s%d, 4' % sWAVE)
ta('s_cbranch_scc1 L_qp2')
ta('v_mov_b32 v1, 1')
ta('s_mov_b64 exec, 1')
ta('s_waitcnt vmcnt(0)')
ta('global_atomic_add v0, v1, s[%d:%d] sc1' % (sDBG, sDBG + 1))
ta('s_mov_b64 exec, -1')
ta.raw('L_qp2:')
tail_setup(ta, True)
tail_setup2(ta, True)
red_addr(ta, [0], 2)
for n in range(2, 8):
    emit(ta, wo_pf(n))
    if n >= 5:
        for _ in range(OPT['pre'] // 3): emit(ta, SA_.load())
    if n == 7:
        ta('global_load_dword v1, v0, s[%d:%d] sc1' % (sDBG, sDBG + 1))
    abar0(ta, n)
ta('s_waitcnt vmcnt(0)')
SA_.vm.q = []
tc = P.block('L_a_c', ['L_a24', 'L_a_c2'])
tc('v_readfirstlane_b32 s%d, v1' % sT)
tc('s_sub_u32 s%d, s%d, 1' % (sCNT, sCNT))
tc('s_cmp_ge_u32 s%d, 8' % sT)
tc('s_cbranch_scc1 L_a_m')
tc2 = P.block('L_a_c2', ['L_a_c'])
tc2('global_load_dword v1, v0, s[%d:%d] sc1' % (sDBG, sDBG + 1))
tc2('s_cmp_gt_i32 s%d, 0' % sCNT)
tc2('s_waitcnt vmcnt(0)')
tc2('s_cbranch_scc1 L_a_c')
ta = P.block('L_a_m', ['L_a_c', 'L_a_c2'])
wr, js = SA_.writes(0)
emit(ta, wr + sum((SA_.load() for _ in js), []) + wo_pf(8))
abar0(ta, 8)
OSV = AC3 + 24
LAST = OPT['last']
for n in range(9, 30):
    if n == 17:
        for j in range(6): ta('ds_read_b128 %s, v%d offset:%d' % (vr(OSV + 4 * j, 4), aQW, (j >> 1) * 1024 + (j & 1) * 3072))
    if n - 9 <= LAST: SA_.slow(ta, n - 9, wo_pf(n))
    else: emit(ta, wo_pf(n))
    if n == 17:
        ta.waitfor(rng(OSV, 24))
        for j in range(6): ta('ds_write_b128 v%d, %s offset:%d' % (aQW, vr(AC3 + 4 * j, 4), (j >> 1) * 1024 + (j & 1) * 3072))
    if n == 28:
        while SA_.nl < len(FIFO_A) + SA_.first[min(n - 9, LAST) + 2]: emit(ta, SA_.load())
    abar0(ta, n)
I0 = LAST + 1
ta('v_subrev_u32 v%d, %d, v%d' % (aQW, BUF - OB[0], aQW))
emit(ta, SA_.reads(I0))
for j in range(6): ta('ds_write_b128 v%d, %s offset:%d' % (aQW, vr(OSV + 4 * j, 4), (j >> 1) * 1024 + (j & 1) * 3072))
wr, js = SA_.writes(I0 + 1)
emit(ta, wr + sum((SA_.load() for _ in js), []))
def abar(tail=None):
    def f(b):
        pstamp(b, sPA)
        gend(b, tail=tail)
    return f
def b30(b):
    b('s_waitcnt lgkmcnt(0)')
    abar()(b)
    b('s_setprio %d' % OPT['pc'])
def bend(b):
    if OPT['prof']:
        b('s_waitcnt lgkmcnt(0)')
        pwrite(b, [sPC]); pstamp(b, sPC)
    b('s_barrier')
tops = {24: b30, 24 + N31: abar([pshift]), 24 + M3 - 1: bend,
        24 + M3: lambda b: b('s_setprio %d' % OPT['pa'])}
assert 0 < N31 < M3 - 1
def direct_dma(k):
    def f(b):
        b('s_lshl_b32 s%d, s%d, 13' % (sT2, sT3))
        b('s_add_u32 m0, s%d, %d' % (sT2, (k - 24) * 1024))
        b('s_add_u32 s%d, s%d, %d' % (sT, sW3, wrow(3, k)))
        b('buffer_load_dwordx4 v%d, %s, s%d offen lds' % (tW1, srd(sWO), sT))
        SA_.vm.add('d')
    return f
for i in range(I0, 32 + M3):
    SA_.kstep(ta, i, tops.get(i), [direct_dma(i)] if 24 <= i < 32 else ())
assert SA_.nl == len(SA_.items)
pmark(ta, True)
ta('s_setprio %d' % OPT['pc'])
publish(ta, 2, ACC)
pmark(ta)
flag(ta)
SA_.vm.q = []
pmark(ta)
ta('s_mul_i32 s%d, s%d, 6144' % (sT, sT3))
ta('s_sub_u32 s%d, s%d, s%d' % (sPUB, sPUB, sT))
ta('s_add_u32 s%d, s%d, %d' % (sPUB, sPUB, 16 * 6144))
ta('s_add_u32 s%d, s%d, 64' % (sFLG, sFLG))
ta('v_lshrrev_b32 v65, 2, v%d' % tOB)
ta('v_and_b32 v65, 0x7f, v65')
ta('s_waitcnt lgkmcnt(0)')
if OPT['bld'] >= 0: ta('s_barrier')
ta('s_cmp_eq_u32 s%d, 3' % sT3)
ta('s_cbranch_scc1 L_a_x')
ri = poll(0, ['L_a_m'], 64, 65, 0)
tx = P.block('L_a_x', ['L_a_m', 'L_red_i0'])
for i in range(32 + M3, len(seqA)): SA_.kstep(tx, i)
pmark(tx)
publish(tx, 1, AC3)
pmark(tx)
flag(tx)
pmark(tx)
tx('s_cmp_eq_u32 s%d, 3' % sT3)
tx('s_cbranch_scc1 %s' % ('L_a_y' if OPT['prof'] else 'L_end'))
tz = P.block('L_a_z', ['L_a_x'])
red_sel(tz, 196, 200, 202)
finish_stage(tz, 0, 0, 64, 196, 200)
ty = P.block('L_a_y', ['L_a_x', 'L_a_z'])
if OPT['prof']: ty('s_branch L_fin')
else: ty('s_endpgm')

SB_ = Stream([(2, k) for k in range(32)], FIFO_B)
tb = P.block('L_tb', ['L_att_fin', 'L_ld_w'])
tb('s_setprio %d' % OPT['pb'])
tail_setup(tb, False)
for _ in range(len(FIFO_B)): emit(tb, SB_.load())
tail_setup2(tb, False)
SB_.prime(tb)
emit(tb, SB_.reads(0))
for i in range(32): SB_.kstep(tb, i, (lambda b: b('s_barrier')) if i == OPT['bld'] else None)
pmark(tb, True)
publish(tb, 2, ACC)
pmark(tb)
RA, rOUT, rF, rFO = 240, 244, 246, 247
red_addr(tb, [1, 2], rFO)
red_sel(tb, RA, rOUT, 230)
flag(tb)
pmark(tb)
tb('s_cmp_eq_u32 s%d, 3' % sWAVE)
tb('s_cbranch_scc1 %s' % ('L_fin' if OPT['prof'] else 'L_end'))
ri = poll(1, ['L_tb'], rF, rFO, 0)
ri = poll(2, ['L_red_i1'], rF, rFO, 64)
finish_stage(ri, 1, 0, 96, RA, rOUT)
ri('s_waitcnt vmcnt(2)')
pmark(ri)
finish_stage(ri, 2, 64, 128, RA, rOUT)
f = P.block('L_fin', ['L_red_i2', 'L_a_z', 'L_a_y', 'L_tb'])
if OPT['prof']:
    f('s_waitcnt vmcnt(0)')
    pmark(f)
    f('s_lshl_b32 s%d, s2, 3' % sT2)
    f('s_add_u32 s%d, s%d, s%d' % (sT2, sT2, sWAVE))
    f('s_mul_i32 s%d, s%d, 1280' % (sT2, sT2))
    f('s_add_u32 s%d, s%d, %d' % (sT2, sT2, 72 << 20))
    f('v_mbcnt_lo_u32_b32 v4, -1, 0')
    f('v_mbcnt_hi_u32_b32 v4, -1, v4')
    f('v_lshlrev_b32 v4, 2, v4')
    for i in range(5):
        f('buffer_store_dword v%d, v4, %s, s%d offen offset:%d' % (254 - i, srd(sWS), sT2, 256 * i))
if OPT['stamps']:
    f('s_waitcnt vmcnt(0)')
    f('s_cmp_lg_u32 s%d, 0' % sWAVE)
    f('s_cbranch_scc1 L_end')
    f('s_memrealtime s[%d:%d]' % (sT, sT + 1))
    f('s_waitcnt lgkmcnt(0)')
    f('v_mov_b32 v0, s%d' % sST0)
    f('v_mov_b32 v1, s%d' % (sST0 + 1))
    f('v_mov_b32 v2, s%d' % sT)
    f('v_mov_b32 v3, s%d' % (sT + 1))
    f('s_lshl_b32 s%d, s2, 4' % sT2)
    f('s_add_u32 s%d, s%d, %d' % (sT2, sT2, 64 << 20))
    f('v_mov_b32 v4, 0')
    f('s_mov_b64 exec, 1')
    f('buffer_store_dwordx4 v[0:3], v4, %s, s%d offen' % (srd(sWS), sT2))
en = P.block('L_end', ['L_fin'])
en('s_endpgm')

for (name, X, frm) in slow:
    s = P.block('L_slow_%s' % name, [frm])
    s('s_nop 15')
    s('v_mov_b32 v%d, v%d' % (TM + 1, TM))
    s('v_permlane32_swap_b32 v%d, v%d' % (TM, TM + 1))
    s('v_max3_f32 v%d, v%d, v%d, 0' % (TM, TM, TM + 1))
    s('v_exp_f32 v%d, -v%d' % (TM + 1, TM))
    for i in range(16):
        s('v_sub_f32 v%d, v%d, v%d' % (X + i, X + i, TM))
        s('v_sub_f32 v%d, v%d, v%d' % (NM + i, NM + i, TM))
    for i in range(64):
        s('v_mul_f32 v%d, v%d, v%d' % (OA + i, TM + 1, OA + i))
    s('v_mul_f32 v%d, v%d, v%d' % (LS, TM + 1, LS))
    s('v_mul_f32 v%d, v%d, v%d' % (LS + 1, TM + 1, LS + 1))
    s('s_nop 1')
    s('s_branch L_back_%s' % name)

body = P.finish()
hdr = open('concat_heads__gqa_block_cached__gqa_block_cached__near_ridge.s.ref').read().split('; Override launch')[0]
out = hdr + """; Override launch geometry by editing the next line (default: block=256,
; grid=ceil(out_elems/256), lds=0). Harness parses it; keep it on one line.
; @launch grid=(256,1,1) block=(512,1,1) lds=%d
.amdgcn_target "amdgcn-amd-amdhsa--gfx950"
.text
.globl %s
.p2align 8
.type %s,@function
%s:
%s
.section .rodata,"a"
.p2align 6
.amdhsa_kernel %s
  .amdhsa_next_free_vgpr 256
  .amdhsa_next_free_sgpr 102
  .amdhsa_accum_offset 256
  .amdhsa_group_segment_fixed_size 0
  .amdhsa_kernarg_size 104
  .amdhsa_user_sgpr_count 2
  .amdhsa_user_sgpr_kernarg_segment_ptr 1
  .amdhsa_system_sgpr_workgroup_id_x 1
.end_amdhsa_kernel
""" % (LDS_BYTES, KN, KN, KN, body, KN)
open(sys.argv[1], 'w').write(out)
```

```python
import sys, math, struct
sys.path.insert(0, 'gen')
from asmlib import *

KN = "concat_heads__gqa_block_cached__gqa_block_cached__near_ridge_kernel"
OPT = dict(stamps=0, nt=1, rot=1, prof=0, krot=1, pkq=0, pko=0, patt=1, pq=2, pf=3, pa=2, pb=1, pc=0, n31=3, m3=11, bld=-1, qpf=2, wpf=5, thr=0, fine=0, pre=6, wpf0=2, last=20, pld=0, nks=1, wpfq=0, top=28, spf=0, spn=5, stag=1, sb=1, early=1, kv2=1, grad=22)
for a in sys.argv[2:]:
    k, v = a.split('='); assert k in OPT, k; OPT[k] = int(v)

SLOT = 32768
S0, S1, S2, W0, W1, BUF = 0, 32768, 65536, 98304, 118784, 139264
XS0, XST = 131072, 6144
FLAGS = 40 << 20
LDS_BYTES = 163840
MF = 'v_mfma_f32_32x32x16_bf16'
NT = ' nt' if OPT['nt'] else ''
OB = [S2, W0, BUF, S1]
ASL, BSL = W0 + 24576, (S2 + 24576, S2 + 28672, S1 + 24576, S1 + 28672)

sWAVE = 3
sK, sV, sX, sWQ, sWO, sWS, sOUT = 4, 8, 12, 16, 20, 24, 28
sDBG = 32
sU, sCNT = 34, 35
sB, sBR, sH0, sME, sGRP = 62, 63, 64, 65, 66
sKVO, sWQO, sXO, sKC, sMS, sT, sT1, sWOB, sWSL = 67, 68, 69, 70, 71, 72, 73, 74, 75
sKS, sN, sT2, sT3, sDELTA, sSLOT, sROT, sLJ, sPK, sAS = 76, 77, 78, 79, 80, 81, 82, 83, 84, 85
sSC, sTHR = 86, 88
sKROT = 89
sST0 = 90
sRB = 92
sPI = 93
sPA, sPB, sPC = 94, 96, 98
sJ8, sJ2 = 100, 101
def srd(n): return 's[%d:%d]' % (n, n + 3)
def vr(a, n): return 'v[%d:%d]' % (a, a + n - 1)

class Prog:
    def __init__(self):
        self.blocks = []; self.preds = {}
    def block(self, name, preds, pend=None, label=True):
        b = Block(name)
        if pend is not None: b.pend = list(pend)
        if label: b.raw(name + ':')
        self.blocks.append(b); self.preds[name] = preds
        return b
    def tails(self, name, need=20, depth=0):
        res = []
        for p in self.preds[name]:
            pb = [b for b in self.blocks if b.name == p]
            assert pb, (name, p)
            ins = pb[0].ins
            st = sum(i.states() for i in ins)
            if st >= need or depth > 3 or not self.preds[p]:
                res.append(list(ins[-40:]))
            else:
                for t in self.tails(p, need - st, depth + 1):
                    res.append(t + list(ins))
        return res
    def finish(self):
        for b in self.blocks:
            b.ins = fix_hazards(b.ins, self.tails(b.name))
        return '\n'.join(text_of(b.ins) for b in self.blocks)

P = Prog()
def pstamp(b, reg):
    if OPT['prof']: b('s_memtime s[%d:%d]' % (reg, reg + 1))
def pwrite(b, regs):
    if OPT['prof']:
        for r_ in regs:
            b('s_mov_b32 m0, s%d' % sPI)
            b('s_nop 0')
            b('v_writelane_b32 v250, s%d, m0' % (r_,))
            b('s_add_u32 s%d, s%d, 1' % (sPI, sPI))
def pshift(b):
    if OPT['prof']:
        for i in (254, 253, 252, 251): b('v_mov_b32 v%d, v%d' % (i, i - 1))
        b('s_mov_b32 s%d, 0' % sPI)
def pmark(b, first=False):
    if OPT['prof']:
        b('s_memtime s[%d:%d]' % (sPA, sPA + 1))
        b('s_waitcnt lgkmcnt(0)')
        pwrite(b, [sPC, sPA] if first else [sPA])
def emit(b, ops):
    for o in ops:
        if callable(o): o(b)
        else: b(o)
def weave(b, mf, fill):
    assert len(mf) == len(fill), (len(mf), len(fill))
    for m, f in zip(mf, fill):
        b(m)
        emit(b, f)
def split(ops, counts):
    out = []; k = 0
    for c in counts:
        out.append(list(ops[k:k + c])); k += c
    assert k >= len(ops), (k, len(ops))
    return out
def spread(ops, n):
    out = []; k = 0
    for i in range(n):
        m = (len(ops) * (i + 1)) // n
        out.append(list(ops[k:m])); k = m
    return out
def zipf(*lists):
    return [sum((l[i] for l in lists), []) for i in range(len(lists[0]))]
def rng(a, n): return set(range(a, a + n))
def W(regs): return lambda b: b.waitfor(regs)

vK, vV, vWQ, vX = 242, 246, 247, 248
e = P.block('L_entry', [], label=False)
e('s_cmp_ge_u32 s2, 256')
e('s_cbranch_scc1 L_end')
if OPT['stamps']:
    e('s_memrealtime s[%d:%d]' % (sST0, sST0 + 1))
if OPT['prof']: e('s_memtime s[%d:%d]' % (sPA, sPA + 1))
e('s_load_dwordx16 s[36:51], s[0:1], 0')
e('s_load_dwordx8 s[52:59], s[0:1], 64')
e('s_load_dwordx2 s[60:61], s[0:1], 96')
e('v_lshrrev_b32 v1, 6, v0')
e('v_and_b32 v0, 63, v0')
e('v_readfirstlane_b32 s%d, v1' % sWAVE)
e('s_and_b32 s%d, s2, 7' % sT)
e('s_lshr_b32 s%d, s2, 3' % sT2)
e('s_lshr_b32 s%d, s%d, 2' % (sBR, sT))
e('s_and_b32 s%d, s%d, 3' % (sT, sT))
e('s_lshr_b32 s%d, s%d, 1' % (sB, sT2))
e('s_and_b32 s%d, s%d, 1' % (sT2, sT2))
e('s_lshl_b32 s%d, s%d, 1' % (sME, sT))
e('s_add_u32 s%d, s%d, s%d' % (sME, sME, sT2))
e('s_lshl_b32 s%d, s%d, 2' % (sH0, sME))
e('s_mul_i32 s%d, s%d, 5' % (sT2, sT2))
if OPT['krot']:
    e('s_lshr_b32 s%d, s%d, 1' % (sKROT, sB))
    e('s_add_u32 s%d, s%d, s%d' % (sKROT, sKROT, sT))
    e('s_add_u32 s%d, s%d, s%d' % (sKROT, sKROT, sT2))
    e('s_and_b32 s%d, s%d, 7' % (sKROT, sKROT))
    e('s_lshl_b32 s%d, s%d, 14' % (sKROT, sKROT))
else: e('s_mov_b32 s%d, 0' % sKROT)
e('s_lshl_b32 s%d, s%d, 4' % (sGRP, sBR))
e('s_add_u32 s%d, s%d, s%d' % (sGRP, sGRP, sB))
if OPT['rot']:
    if OPT['rot'] == 1:
        e('s_mul_i32 s%d, s%d, 5' % (sROT, sB))
        e('s_lshr_b32 s%d, s%d, 2' % (sROT, sROT))
    else:
        e('s_and_b32 s%d, s%d, %d' % (sROT, sB, OPT['rot'] - 1))
        e('s_mul_i32 s%d, s%d, %d' % (sROT, sROT, 20 // OPT['rot']))
    e('s_lshl_b32 s%d, s%d, 1' % (sT2, sT2))
    e('s_add_u32 s%d, s%d, s%d' % (sROT, sROT, sT2))
    e('s_cmp_ge_u32 s%d, 20' % sROT)
    e('s_cselect_b32 s%d, 20, 0' % sT2)
    e('s_sub_u32 s%d, s%d, s%d' % (sKC, sROT, sT2))
else:
    e('s_mov_b32 s%d, 0' % sKC)
e('s_mov_b32 s%d, 0' % sJ8)
e('s_lshl_b32 s%d, s%d, 13' % (sJ2, sWAVE))
e('v_lshrrev_b32 v4, 4, v0')
e('v_and_b32 v5, 15, v0')
e('v_lshlrev_b32 v6, 2, v4')
e('v_xor_b32 v6, v6, v5')
e('v_lshlrev_b32 v6, 4, v6')
e('v_lshl_add_u32 v%d, v4, 13, v6' % vWQ)
e('v_lshl_add_u32 v%d, v4, 8, v6' % vV)
e('v_and_b32 v6, 3, v0')
e('v_xor_b32 v6, v6, v4')
e('v_lshlrev_b32 v6, 4, v6')
e('v_lshrrev_b32 v7, 2, v0')
e('v_mul_u32_u24 v7, 1280, v7')
e('v_add_u32 v%d, v7, v6' % vX)
e('s_mul_i32 s%d, s%d, 122880' % (sXO, sB))
e('s_mul_i32 s%d, s%d, 20480' % (sT, sWAVE))
e('s_add_u32 s%d, s%d, s%d' % (sXO, sXO, sT))
e('s_lshl_b32 s%d, s%d, 10' % (sWSL, sWAVE))
e('s_add_u32 s%d, s%d, %d' % (sWSL, sWSL, XS0))
e('s_add_u32 s%d, s%d, %d' % (sLJ, sWSL, 4 * XST))
e('s_add_u32 s%d, s%d, s%d' % (sWQO, sH0, sWAVE))
e('s_lshl_b32 s%d, s%d, 8' % (sWQO, sWQO))
e('s_mov_b32 s%d, 0' % sMS)
e('s_mov_b32 s%d, 0' % sU)
if OPT['prof']: e('s_mov_b32 s%d, 0' % sPI)
for d, size in ((sX, 16*96*640*2), (sWQ, 640*4096*2)):
    e('s_mov_b32 s%d, %d' % (d + 2, size))
    e('s_mov_b32 s%d, 0x20000' % (d + 3))
e('s_and_b32 s%d, s%d, 3' % (sT3, sWAVE))
e('s_waitcnt lgkmcnt(0)')
if OPT['prof']: e('s_memtime s[%d:%d]' % (sPB, sPB + 1))
e('s_cmp_eq_u32 s%d, 0' % sBR)
for (dst, a, b_) in ((sX, 36, 46), (sWQ, 42, 52), (sK, 38, 48), (sV, 40, 50), (sWO, 44, 54)):
    e('s_cselect_b64 s[%d:%d], s[%d:%d], s[%d:%d]' % (dst, dst + 1, a, a + 1, b_, b_ + 1))
for d in (sX, sWQ):
    e('s_and_b32 s%d, s%d, 0xffff' % (d + 1, d + 1))
e('s_cmp_ge_u32 s%d, 4' % sWAVE)
e('s_cbranch_scc1 L_qp')
def rest_srd(b):
    for (dst, size) in ((sK, 16*32*512*128*2), (sV, 16*32*512*128*2), (sWO, 640*4096*2)):
        b('s_mov_b32 s%d, %d' % (dst + 2, size))
        b('s_mov_b32 s%d, 0x20000' % (dst + 3))
    for (dst, a, size) in ((sOUT, 56, 16*96*1280*2), (sWS, 60, 293339136)):
        b('s_mov_b64 s[%d:%d], s[%d:%d]' % (dst, dst + 1, a, a + 1))
        b('s_mov_b32 s%d, %d' % (dst + 2, size))
        b('s_mov_b32 s%d, 0x20000' % (dst + 3))
    for d in (sK, sV, sWO, sOUT, sWS):
        b('s_and_b32 s%d, s%d, 0xffff' % (d + 1, d + 1))
    b('s_mov_b64 s[%d:%d], s[58:59]' % (sDBG, sDBG + 1))

NX = [0]
def issue_Q():
    nx = NX[0]; NX[0] += 1
    o = ['s_add_u32 m0, s%d, s%d' % (sMS, sJ2),
         's_lshl_b32 s%d, s%d, 18' % (sT, sKC),
         's_add_u32 s%d, s%d, s%d' % (sT, sT, sWQO)]
    RS = 32768
    for m in range(8):
        if m == 4:
            o += ['s_add_u32 m0, m0, 4096', 's_add_u32 s%d, s%d, %d' % (sT, sT, RS + 3072)]
        elif m: o.append('s_add_u32 s%d, s%d, %d' % (sT, sT, RS - 1024))
        o.append('buffer_load_dwordx4 v%d, %s, s%d offen offset:%d lds' % (vWQ, srd(sWQ), sT, (m & 3) * 1024))
    o += ['s_mov_b32 m0, s%d' % sWSL,
          's_lshl_b32 s%d, s%d, 6' % (sT, sKC),
          's_add_u32 s%d, s%d, s%d' % (sT, sT, sXO),
          'buffer_load_dwordx4 v%d, %s, s%d offen lds' % (vX, srd(sX), sT),
          's_cmp_ge_u32 s%d, 2' % sWAVE,
          's_cbranch_scc1 L_nx%d' % nx,
          's_add_u32 m0, s%d, 4096' % sWSL,
          's_add_u32 s%d, s%d, %d' % (sT, sT, 4 * 20480),
          'buffer_load_dwordx4 v%d, %s, s%d offen lds' % (vX, srd(sX), sT),
          lambda b: b.raw('L_nx%d:' % nx),
          's_add_u32 s%d, s%d, 1' % (sKC, sKC),
          's_cmp_eq_u32 s%d, 20' % sKC,
          's_cselect_b32 s%d, 0, s%d' % (sKC, sKC),
          's_add_u32 s%d, s%d, %d' % (sMS, sMS, SLOT),
          's_and_b32 s%d, s%d, 0x18000' % (sMS, sMS),
          's_add_u32 s%d, s%d, %d' % (sWSL, sWSL, XST),
          's_cmp_eq_u32 s%d, s%d' % (sWSL, sLJ),
          's_cselect_b32 s%d, %d, 0' % (sT, 4 * XST),
          's_sub_u32 s%d, s%d, s%d' % (sWSL, sWSL, sT)]
    return o
def issue_H(half, ng=2):
    o = []
    for gq in range(ng):
        off = 16384 * half + 4096 * gq
        if off: o.append('s_add_u32 m0, s%d, %d' % (sAS, off))
        else: o.append('s_mov_b32 m0, s%d' % sAS)
        if gq: o.append('s_add_u32 s%d, s%d, %d' % (sT, sKVO, 4096 * gq))
        for e_ in range(4):
            o.append('buffer_load_dwordx4 v%d, %s, s%d offen offset:%d%s lds' % (vV if half else vK + e_, srd(sV if half else sK), sT if gq else sKVO, e_ * 1024, NT))
    if half:
        o += ['s_add_u32 s%d, s%d, 16384' % (sKVO, sKVO),
              's_and_b32 s%d, s%d, 0x1c000' % (sT2, sKVO),
              's_cselect_b32 s%d, 0, 0x20000' % sT2,
              's_sub_u32 s%d, s%d, s%d' % (sKVO, sKVO, sT2),
              's_add_u32 s%d, s%d, %d' % (sAS, sAS, SLOT),
              's_cmp_ge_u32 s%d, %d' % (sAS, 3 * SLOT),
              's_cselect_b32 s%d, s%d, s%d' % (sAS, sJ8, sAS)]
    return o
def issue_A(ng=2): return issue_H(0, ng) + issue_H(1, ng)
def gend(b, vm=None, loop=None, lg=False, tail=None, cmp=None):
    if lg or OPT['prof']: b('s_waitcnt lgkmcnt(0)')
    pstamp(b, sPB)
    if vm is not None: b('s_waitcnt vmcnt(%d)' % vm)
    if OPT['prof']:
        b('s_waitcnt lgkmcnt(0)')
        pwrite(b, [sPC, sPA, sPB]); pstamp(b, sPC)
    if tail: emit(b, tail)
    if loop and not cmp:
        b('s_sub_u32 s%d, s%d, 1' % (sCNT, sCNT))
        b('s_cmp_lg_u32 s%d, 0' % sCNT)
    if cmp: b(cmp)
    b('s_barrier')
    if loop: b('s_cbranch_scc1 %s' % loop)
def pshift_unit(b, lab):
    if OPT['prof']:
        b('s_and_b32 s%d, s%d, 7' % (sT, sN))
        b('s_cmp_lg_u32 s%d, 7' % sT)
        b('s_cbranch_scc1 %s' % lab)
        pshift(b)
        b.raw(lab + ':')

def qbar(b, vm=None, loop=None, lg=False):
    if vm is not None: b('s_waitcnt vmcnt(%d)' % vm)
    if lg or OPT['prof']: b('s_waitcnt lgkmcnt(0)')
    pwrite(b, [sPC]); pstamp(b, sPC)
    if loop:
        b('s_sub_u32 s%d, s%d, 1' % (sCNT, sCNT))
        b('s_cmp_lg_u32 s%d, 0' % sCNT)
    b('s_barrier')
    if loop: b('s_cbranch_scc1 %s' % loop)
def lanes(b):
    b('v_lshrrev_b32 v1, 5, v0')
    b('v_bfe_u32 v3, v0, 2, 2')
    b('v_lshl_add_u32 v2, v1, 3, v3')
    b('v_lshlrev_b32 v2, 8, v2')
    b('v_bfe_u32 v8, v0, 4, 1')
    b('v_lshl_add_u32 v2, v8, 5, v2')
    b('v_and_b32 v8, 1, v0')
    b('v_lshl_add_u32 v2, v8, 4, v2')
    b('v_bfe_u32 v8, v0, 1, 1')
    b('v_lshl_add_u32 v2, v8, 3, v2')
SCALE = (128 ** -0.5) * math.log2(math.e)
SCB = struct.unpack('<I', struct.pack('<f', SCALE))[0]
OA, QF, SA, SB, F0, F1, NM, PP, aK, aT, aX, LS, TM, aOW, RL = 0, 64, 96, 112, 128, 160, 192, 208, 216, 224, 228, 232, 234, 236, 238
ld = P.block('L_ld', ['L_entry'])
if OPT['pld']: ld('s_setprio %d' % OPT['pld'])
emit(ld, issue_Q() + issue_Q() + issue_Q())
rest_srd(ld)
ld('v_xor_b32 v6, v5, v4')
ld('v_lshlrev_b32 v6, 4, v6')
ld('v_lshl_add_u32 v6, v4, 8, v6')
for e_ in range(4):
    ld('v_xor_b32 v%d, %d, v6' % (vK + e_, 64 * e_))
ld('s_lshl_b32 s%d, s%d, 5' % (sT2, sB))
ld('s_add_u32 s%d, s%d, s%d' % (sT, sH0, sT2))
ld('s_lshl_b32 s%d, s%d, 17' % (sKVO, sT))
ld('s_add_u32 s%d, s%d, s%d' % (sKVO, sKVO, sKROT))
ld('s_mov_b32 s%d, 0' % sAS)
lanes(ld)
for t in range(4):
    ld('v_xor_b32 v5, %d, v3' % t)
    ld('v_lshl_add_u32 v%d, v5, 6, v2' % (aT + t))
ld('s_lshl_b32 s%d, s%d, 10' % (sT, sT3))
ld('s_add_u32 s%d, s%d, %d' % (sT, sT, W0))
ld('v_lshlrev_b32 v7, 4, v0')
ld('v_add_u32 v%d, s%d, v7' % (aOW, sT))
ld('v_and_b32 v5, 0x13, v0')
ld('v_bfe_u32 v6, v0, 2, 1')
ld('v_lshl_or_b32 v5, v6, 3, v5')
ld('v_bfe_u32 v6, v0, 3, 1')
ld('v_lshl_or_b32 v5, v6, 2, v5')
ld('v_and_b32 v6, 15, v5')
ld('v_xor_b32 v6, v6, v1')
ld('v_lshlrev_b32 v6, 4, v6')
ld('v_lshl_add_u32 v6, v5, 8, v6')
for s_ in range(8):
    ld('v_xor_b32 v%d, %d, v6' % (aK + s_, 32 * s_))
ld('v_lshrrev_b32 v5, 3, v0')
ld('v_mul_u32_u24 v%d, 1280, v5' % aX)
ld('v_bfe_u32 v5, v0, 4, 1')
ld('v_lshlrev_b32 v5, 2, v5')
ld('v_and_b32 v6, 7, v0')
ld('v_xor_b32 v5, v5, v6')
ld('v_lshl_add_u32 v%d, v5, 4, v%d' % (aX, aX))
ld('s_lshl_b32 s%d, s%d, 7' % (sT2, sT3))
ld('s_mul_i32 s%d, s%d, %d' % (sWOB, sH0, 128 * 1280))
ld('s_add_u32 s%d, s%d, s%d' % (sWOB, sWOB, sT2))
ld('s_add_u32 s%d, s%d, 512' % (sWOB, sWOB))
FB0 = [96, 100, 104, 108, 128, 132, 136, 140]
def early(b):
    if not OPT['early']: return
    for j, r_ in enumerate(FB0):
        b('s_add_u32 s%d, s%d, %d' % (sT, sWOB, (2 * 128 + (j >> 1) * 16) * 1280 + 10240 * (j & 1)))
        b('buffer_load_dwordx4 %s, v%d, %s, s%d offen' % (vr(r_, 4), aX, srd(sWO), sT))
ld('s_mov_b32 s%d, 0x42000000' % sTHR)
ld('s_mov_b32 s%d, 0' % sSLOT)
ld('s_mov_b32 s%d, 17' % sCNT)
ld('s_mul_i32 s%d, s%d, %d' % (sKS, sH0, 128 * 1280))
ld('s_lshl_b32 s%d, s%d, 7' % (sT, sB))
ld('s_add_u32 s%d, s%d, s%d' % (sKS, sKS, sT))
if OPT['spf'] == 1:
    ld('s_mul_i32 s%d, s%d, %d' % (sT, sWAVE, 2048 * OPT['spn']))
    ld('s_add_u32 s%d, s%d, s%d' % (sKS, sKS, sT))
def spf(n, by):
    return ['s_buffer_load_dword s50, %s, s%d offset:%d' % (srd(sWO), sKS, 2048 * i) for i in range(n)] + ['s_add_u32 s%d, s%d, %d' % (sKS, sKS, by)]
if OPT['prof']:
    ld('s_waitcnt lgkmcnt(0)')
    for i, r_ in enumerate((sPA, sPB)): ld('v_writelane_b32 v250, s%d, %d' % (r_, 56 + i))
ld('s_waitcnt vmcnt(18)')
pstamp(ld, sPC)
ld('s_barrier')
lq = P.block('L_ld_q', ['L_ld', 'L_ld_q'])
emit(lq, issue_Q())
if OPT['spf'] == 1: emit(lq, spf(OPT['spn'], 8192 * OPT['spn']))
qbar(lq, vm=18, loop='L_ld_q')
l7 = P.block('L_ld_7', ['L_ld_q'])
l7('s_cmp_lg_u32 s%d, 3' % sWAVE)
l7('s_cbranch_scc1 L_att')
l7 = P.block('L_ld_8', ['L_ld_7'])
emit(l7, issue_A(4))
qbar(l7, vm=41)
emit(l7, issue_H(0, 4))
qbar(l7, vm=48)
emit(l7, issue_H(1, 4))
if OPT['kv2']: emit(l7, issue_H(0, 4))
qbar(l7)
l7('s_mov_b32 s%d, %d' % (sN, OPT['kv2']))
if OPT['kv2']: emit(l7, issue_H(1, 4))
qbar(l7, vm=63 if OPT['kv2'] else 32)
if OPT['kv2']:
    pstamp(l7, sPA)
    gend(l7, vm=32)
def bump(reg, at, by):
    return ['s_and_b32 s%d, s%d, 7' % (sT, sN),
            's_cmp_eq_u32 s%d, %d' % (sT, at),
            's_cselect_b32 s%d, %d, 0' % (sT, by),
            's_add_u32 s%d, s%d, s%d' % (reg, reg, sT)]
lm = P.block('L_ld_m', ['L_ld_8', 'L_ld_m'])
emit(lm, bump(sKVO, 6, 0x20000) + issue_A(4))
if OPT['spf'] == 2:
    lm('s_cmp_ge_u32 s%d, 20' % sN)
    lm('s_cbranch_scc1 L_nspf')
    emit(lm, spf(16, 32768))
    lm.raw('L_nspf:')
pstamp(lm, sPA)
gend(lm, vm=32, loop='L_ld_m', tail=[lambda b: pshift_unit(b, 'L_ps1'), 's_add_u32 s%d, s%d, 1' % (sN, sN)], cmp='s_cmp_lg_u32 s%d, 30' % sN)
lw = P.block('L_ld_w', ['L_ld_m'])
if OPT['stag']:
    lw('v_lshrrev_b32 v1, 1, v0')
    lw('v_mul_u32_u24 v1, 1280, v1')
    lw('v_and_b32 v2, 1, v0')
    lw('v_lshl_add_u32 v1, v2, 7, v1')
    lw('s_mul_i32 s%d, s%d, %d' % (sT, sH0, 128 * 1280))
    lw('s_mul_i32 s%d, s%d, 40960' % (sT2, sB))
    lw('s_add_u32 s%d, s%d, s%d' % (sT, sT, sT2))
    for i in range(3): lw('buffer_load_dword v255, v1, %s, s%d offen offset:%d' % (srd(sWO), sT, 512 + 256 * i))
pstamp(lw, sPA)
gend(lw, vm=3 if OPT['stag'] else 0, lg=True)
pstamp(lw, sPA)
gend(lw, tail=[pshift])
early(lw)
if OPT['prof']:
    lw('s_waitcnt lgkmcnt(0)')
    pwrite(lw, [sPC]); pstamp(lw, sPC)
lw('s_barrier')
lw('s_branch L_tb')

QP = [QF + 8, QF + 24, QF, QF + 16]
def qf(ks): return QP[ks >> 1] + 4 * (ks & 1)
a = P.block('L_att', ['L_ld_7'])
qbar(a, vm=9)
qbar(a, vm=0)
qbar(a)
if OPT['patt'] != OPT['pld']: a('s_setprio %d' % OPT['patt'])
qbar(a, lg=True)
def ring_slot(step, lo, hi):
    return ['s_add_u32 s%d, s%d, %d' % (sT, sSLOT, step),
            's_cmp_eq_u32 s%d, %d' % (sT, hi),
            's_cselect_b32 s%d, %d, s%d' % (sT, lo, sT),
            's_sub_u32 s%d, s%d, s%d' % (sDELTA, sT, sSLOT),
            's_mov_b32 s%d, s%d' % (sSLOT, sT)]
def kv_slot(): return ring_slot(SLOT, 0, 3 * SLOT)
def adv(base, n, s=None):
    return ['v_add_u32 v%d, s%d, v%d' % (base + i, sDELTA if s is None else s, base + i) for i in range(n)]
def endstep(b, loop=None):
    b('s_waitcnt lgkmcnt(0)')
    pwrite(b, [sPC]); pstamp(b, sPC)
    if loop:
        b('s_sub_u32 s%d, s%d, 1' % (sCNT, sCNT))
        b('s_cmp_lg_u32 s%d, 0' % sCNT)
    b('s_barrier')
    if loop: b('s_cbranch_scc1 %s' % loop)

def k_read(F, s, tile): return 'ds_read_b128 %s, v%d offset:%d' % (vr(F + 4 * s, 4), aK + s, tile * 8192)
def v_read(F, i, tile):
    sp, t = i >> 2, i & 3
    return ['ds_read_b64_tr_b16 %s, v%d offset:%d' % (vr(F + 4 * i + 2 * jj, 2), aT + t, 16384 + tile * 8192 + sp * 4096 + jj * 1024) for jj in range(2)]
def s_mf(F, s, X, c): return '%s %s, %s, %s, %s' % (MF, vr(X, 16), vr(F + 4 * s, 4), vr(qf(s), 4), c)
def pv_mf(F, i, first=False):
    sp, t = i >> 2, i & 3
    c = '0' if (first and sp == 0) else vr(OA + 16 * t, 16)
    return '%s %s, %s, %s, %s' % (MF, vr(OA + 16 * t, 16), vr(F + 4 * i, 4), vr(PP + 4 * sp, 4), c)
def softmax_ops(X, adds=False):
    ops = []
    for i in range(8):
        ops.append('v_exp_f32 v%d, v%d' % (X + 2 * i, X + 2 * i))
        ops.append('v_exp_f32 v%d, v%d' % (X + 2 * i + 1, X + 2 * i + 1))
        if i >= 1:
            ops.append('v_cvt_pk_bf16_f32 v%d, v%d, v%d' % (PP + i - 1, X + 2 * i - 2, X + 2 * i - 1))
            if adds: ops += add_ops(X)[2 * i - 2:2 * i]
    ops.append('v_cvt_pk_bf16_f32 v%d, v%d, v%d' % (PP + 7, X + 14, X + 15))
    if adds: ops += add_ops(X)[14:16]
    return ops
def add_ops(X):
    return ['v_add_f32 v%d, v%d, v%d' % (LS + (i & 1), LS + (i & 1), X + i) for i in range(16)]
def max_ops(X):
    ops = ['v_max3_f32 v%d, v%d, v%d, v%d' % (TM, X, X + 1, X + 2)]
    for i in range(6):
        ops.append('v_max3_f32 v%d, v%d, v%d, v%d' % (TM, TM, X + 3 + 2 * i, X + 4 + 2 * i))
    ops.append('v_max_f32 v%d, v%d, v%d' % (TM, TM, X + 15))
    return ops
CMP = 'v_cmp_lt_f32 vcc, s%d, v%d' % (sTHR, TM)
slow = []
def check(b, X, name):
    b('s_cbranch_vccnz L_slow_%s' % name)
    slow.append((name, X, b.name))
    return P.block('L_back_%s' % name, [b.name, 'L_slow_%s' % name], pend=b.pend)

def pack(src, dst, mul, pk=False):
    o = []
    for h in range(2):
        if pk: o += ['v_pk_mul_f32 %s, %s, %s' % (vr(src + 8 * h + 2 * i, 2), vr(src + 8 * h + 2 * i, 2), pk) for i in range(4)]
        else: o += ['v_mul_f32 v%d, %s, v%d' % (src + 8 * h + i, mul, src + 8 * h + i) for i in range(8)]
        o += ['v_cvt_pk_bf16_f32 v%d, v%d, v%d' % (dst + 4 * h + i, src + 8 * h + 2 * i, src + 8 * h + 2 * i + 1) for i in range(4)]
    return o
def phase_pv0(b, Fa, Fb, first=False, ak=False, cnt=None):
    b.waitfor(rng(Fb, 32))
    vr1 = sum((v_read(Fa, i, 1) for i in range(8)), [])
    ad = add_ops(SA); mx = max_ops(SB)
    fill = zipf(split(vr1, [4, 4, 4, 4, 0, 0, 0, 0]), split(ad, [2, 2, 1, 1, 2, 3, 1, 4]), split(mx, [0, 0, 1, 1, 3, 3, 0, 0]))
    fill[6] = [CMP] + fill[6]
    if ak:
        fill[4] = fill[4] + kv_slot(); fill[5] = fill[5] + adv(aK, 8)
    fill[6] = fill[6] + adv(aT, 4)
    if cnt: fill[7] = fill[7] + [cnt]
    weave(b, [pv_mf(Fb, i, first) for i in range(8)], fill)
def first_max(b, extra=()):
    ex = list(extra)
    mx = max_ops(SA) + ['v_mov_b32 v%d, v%d' % (TM + 1, TM), 'v_permlane32_swap_b32 v%d, v%d' % (TM, TM + 1),
                        'v_max_f32 v%d, v%d, v%d' % (TM, TM, TM + 1)]
    n = min(len(ex), len(mx))
    for i, o in enumerate(mx):
        b(o)
        if i < n: b(ex[i])
    ex = ex[n:]
    for i in range(16):
        b('v_mul_f32 v%d, -1.0, v%d' % (NM + i, TM))
    subs = ['v_sub_f32 v%d, v%d, v%d' % (SA + i, SA + i, TM) for i in range(16)]
    for o in subs[:4]: b(o)
    sm = softmax_ops(SA)
    fill = zipf([subs[4 + 2 * n:6 + 2 * n] + sm[3 * n:3 * n + 3] for n in range(8)], spread(ex, 7) + [[]])
    b.waitfor(rng(F0, 32))
    weave(b, [s_mf(F0, s, SB, vr(NM, 16) if s == 0 else vr(SB, 16)) for s in range(8)], fill)

a0 = P.block('L_att_a0', ['L_att'])
for s in range(8):
    a0('ds_read_b128 %s, v%d offset:%d' % (vr(qf(s), 4), aOW, s * 3072))
    a0(k_read(F0, s, 0))
a0('v_mov_b32 v%d, 0' % LS)
a0('v_mov_b32 v%d, 0' % (LS + 1))
vr0 = sum((v_read(F1, i, 0) for i in range(8)), [])
fill = [[k_read(F0, n, 1)] + vr0[2 * n:2 * n + 2] for n in range(8)]
weave(a0, [s_mf(F0, s, SA, '0' if s == 0 else vr(SA, 16)) for s in range(8)], fill)
first_max(a0)
phase_pv0(a0, F0, F1, first=True, ak=True, cnt='s_mov_b32 s%d, 4' % sCNT)
a0b = check(a0, SB, 'a0')
endstep(a0b)

def a_step(b, Fa, Fb, nm):
    for s in range(8): b(k_read(Fa, s, 0))
    sm = softmax_ops(SB, adds=True)
    HEAD = 12
    for o in sm[:HEAD]: b(o)
    fill = spread(sm[HEAD:], 8)
    fill[3] = fill[3] + [W(rng(Fa + 16, 16))]
    b.waitfor(rng(Fa, 16))
    weave(b, [s_mf(Fa, s, SA, vr(NM, 16) if s == 0 else vr(SA, 16)) for s in range(8)], fill)
    kr = [k_read(Fa, s, 1) for s in range(8)]
    fill = zipf(split(kr, [2, 2, 2, 2, 0, 0, 0, 0]), [v_read(Fb, i, 0) for i in range(8)],
                split(max_ops(SA), [0, 2, 2, 2, 2, 0, 0, 0]))
    ts = kv_slot(); ak = adv(aK, 8)
    fill[0] = fill[0] + ts[:3]; fill[4] = fill[4] + ts[3:]; fill[5] = fill[5] + [CMP] + ak[:2]
    fill[6] = fill[6] + ak[2:6]; fill[7] = fill[7] + ak[6:]
    weave(b, [pv_mf(Fb, i) for i in range(8)], fill)
    b = check(b, SA, nm + '1')
    b.waitfor(rng(Fa, 32))
    weave(b, [s_mf(Fa, s, SB, vr(NM, 16) if s == 0 else vr(SB, 16)) for s in range(8)], spread(softmax_ops(SA), 8))
    phase_pv0(b, Fa, Fb)
    return check(b, SB, nm + '2')
ao = P.block('L_att_ao', ['L_back_a0', 'L_back_ae2', 'L_back_ab'])
ao2 = a_step(ao, F1, F0, 'ao')
ao2('s_waitcnt lgkmcnt(0)')
pwrite(ao2, [sPC]); pstamp(ao2, sPC)
ao2('s_sub_u32 s%d, s%d, 1' % (sCNT, sCNT))
ao2('s_cmp_eq_u32 s%d, 0' % sCNT)
ao2('s_barrier')
ao2('s_cbranch_scc1 L_att_drain')
ae = P.block('L_att_ae', ['L_back_ao2'])
ae2 = a_step(ae, F0, F1, 'ae')
endstep(ae2)
ae2('s_branch L_att_ao')

def lsum(b):
    b('v_add_f32 v%d, v%d, v%d' % (RL, LS, LS + 1))
    b('v_mov_b32 v%d, v%d' % (RL + 1, RL))
    b('v_permlane32_swap_b32 v%d, v%d' % (RL, RL + 1))
    b('v_add_f32 v%d, v%d, v%d' % (RL, RL, RL + 1))
    b('v_rcp_f32 v%d, v%d' % (RL, RL))
    b('v_mov_b32 v%d, v%d' % (RL + 1, RL))
def onorm():
    o = []
    for t in range(4):
        pk = pack(OA + 16 * t, OA + 16 * t, 'v%d' % RL, vr(RL, 2) if OPT['pko'] else False)
        n = len(pk) // 2
        o += pk[:n] + ['ds_write_b128 v%d, %s offset:%d' % (aOW, vr(OA + 16 * t, 4), (2 * t) * 3072)]
        o += pk[n:] + ['ds_write_b128 v%d, %s offset:%d' % (aOW, vr(OA + 16 * t + 4, 4), (2 * t + 1) * 3072)]
    return o
def last_pv(b):
    sm = softmax_ops(SB)
    for o in sm[:14]: b(o)
    fill = zipf(split(sm[14:], [3, 3, 3, 1, 0, 0, 0, 0]), split(add_ops(SB), [0, 0, 0, 2, 3, 3, 4, 4]))
    weave(b, [pv_mf(F1, i) for i in range(8)], fill)
    lsum(b)
d = P.block('L_att_drain', ['L_back_ao2'])
pshift(d)
d('s_add_u32 s%d, s%d, 1' % (sU, sU))
d('s_cmp_eq_u32 s%d, 4' % sU)
d('s_cbranch_scc1 L_att_fin')
ab = P.block('L_att_ab', ['L_att_drain'])
ab('v_xor_b32 v%d, 0x%x, v%d' % (aOW, W0 ^ BUF, aOW))
for s in range(8):
    ab('ds_read_b128 %s, v%d offset:%d' % (vr(qf(s), 4), aOW, s * 3072))
for s in range(7): ab(k_read(F0, s, 0))
sm = softmax_ops(SB)
for o in sm[:14]: ab(o)
fill = zipf(split(sm[14:], [3, 3, 3, 1, 0, 0, 0, 0]), split(add_ops(SB), [0, 0, 0, 2, 3, 3, 4, 4]))
fill[0] = [k_read(F0, 7, 0)] + fill[0]
weave(ab, [pv_mf(F1, i) for i in range(8)], fill)
lsum(ab)
ab('v_mov_b32 v%d, 0' % LS)
ab('v_mov_b32 v%d, 0' % (LS + 1))
on = onorm()
NS0 = len(on) // 2
pieces = [[]] + spread(on[:NS0], 7) if not OPT['pko'] else split(on[:NS0], [2, 4, 5, 5, 5, 5, 5, 5])
fill = [[k_read(F0, n, 1)] + vr0[2 * n:2 * n + 2] + pieces[n] for n in range(8)]
weave(ab, [s_mf(F0, s, SA, '0' if s == 0 else vr(SA, 16)) for s in range(8)], fill)
first_max(ab, on[NS0:])
phase_pv0(ab, F0, F1, first=True, ak=True, cnt='s_mov_b32 s%d, 4' % sCNT)
abb = check(ab, SB, 'ab')
endstep(abb)
abb('s_branch L_att_ao')

fi = P.block('L_att_fin', ['L_att_drain'])
if OPT['pf']: fi('s_setprio %d' % OPT['pf'])
fi('v_subrev_u32 v%d, %d, v%d' % (aOW, BUF - OB[3], aOW))
early(fi)
last_pv(fi)
for o in onorm(): fi(o)
fi('s_waitcnt lgkmcnt(0)')
pwrite(fi, [sPC]); pstamp(fi, sPC)
fi('s_barrier')
fi('s_branch L_tb')

QT = [0, 48, 144, 96]
WF, XF, qW, qX, aQW, aPF = [192, 220], [208, 236], 248, [249, 251], 248, 249
q = P.block('L_qp', ['L_entry'])
if OPT['pq']: q('s_setprio %d' % OPT['pq'])
rest_srd(q)
lanes(q)
q('v_xor_b32 v5, s%d, v3' % sT3)
q('v_lshl_add_u32 v%d, v5, 6, v2' % qW)
q('v_and_b32 v5, 31, v0')
q('v_xor_b32 v6, v3, v1')
q('v_lshlrev_b32 v6, 4, v6')
q('v_lshl_add_u32 v6, v5, 6, v6')
q('v_add_u32 v%d, %d, v6' % (qX[0], XS0))
q('v_xor_b32 v%d, 32, v%d' % (qX[1], qX[0]))
q('s_mov_b32 s%d, 0x%08x' % (sSC, SCB))
q('v_lshlrev_b32 v252, 11, v0')
q('s_mul_i32 s%d, s%d, %d' % (sKS, sH0, 128 * 1280))
q('s_lshl_b32 s%d, s%d, 7' % (sT, sB))
q('s_add_u32 s%d, s%d, s%d' % (sKS, sKS, sT))
q('s_lshl_b32 s%d, s%d, 15' % (sT, sT3))
q('s_add_u32 s%d, s%d, s%d' % (sKS, sKS, sT))
q('s_cmp_lg_u32 s%d, 4' % sWAVE)
q('s_cbranch_scc1 L_qp1')
qz = P.block('L_qpz', ['L_qp'])
qz('s_lshl_b32 s%d, s%d, 9' % (sT, sGRP))
qz('s_lshl_b32 s%d, s%d, 2' % (sT2, sME))
qz('s_add_u32 s%d, s%d, s%d' % (sT2, sT2, sT))
qz('s_add_u32 s%d, s%d, %d' % (sT2, sT2, FLAGS))
qz('v_lshlrev_b32 v192, 5, v0')
qz('v_mov_b32 v193, 0')
qz('s_mov_b64 exec, 0xffff')
qz('buffer_store_dword v193, v192, %s, s%d offen sc1' % (srd(sWS), sT2))
qz('s_mov_b64 exec, -1')
q = P.block('L_qp1', ['L_qp', 'L_qpz'])
for r_ in list(range(192)) + list(range(220, 248)): q('v_mov_b32 v%d, 0' % r_)
q('s_mov_b32 s%d, 5' % sCNT)
def pf_all(b):
    b('s_mov_b64 exec, 0xffff')
    for i in range(5):
        b('buffer_load_dword v255, v252, %s, s%d offen' % (srd(sWO), sKS))
        b('s_add_u32 s%d, s%d, 131072' % (sKS, sKS))
    b('s_mov_b64 exec, -1')
if OPT['wpfq'] == -1: pf_all(q)
pstamp(q, sPC)
q('s_barrier')
if OPT['wpfq'] == -2: pf_all(q)
def q_reads(st, ks):
    w = [['ds_read_b64_tr_b16 %s, v%d offset:%d' % (vr(WF[ks] + 4 * h + 2 * jj, 2), qW, (st & 1) * SLOT + h * 8192 + ks * 4096 + jj * 1024) for jj in range(2)] for h in range(4)]
    x = ['ds_read_b128 %s, v%d offset:%d' % (vr(XF[ks] + 4 * qt, 4), qX[ks], st * XST + qt * 2048) for qt in range(3)]
    return w[0] + x + w[1] + w[2] + w[3]
def q_mfs(ks):
    return ['%s %s, %s, %s, %s' % (MF, vr(QT[h] + 16 * qt, 16), vr(WF[ks] + 4 * h, 4), vr(XF[ks] + 4 * qt, 4), vr(QT[h] + 16 * qt, 16)) for h in range(4) for qt in range(3)]
qm = P.block('L_qp_m', ['L_qp1', 'L_qp_m'])
for st in range(4):
    weave(qm, q_mfs(1), split(q_reads(st, 0), [2, 2, 2, 2, 2, 1, 0, 0, 0, 0, 0, 0]))
    fill = split(q_reads(st, 1), [2, 2, 2, 2, 2, 1, 0, 0, 0, 0, 0, 0])
    if st & 1: fill[7] = ['v_xor_b32 v%d, 0x10000, v%d' % (qW, qW)]
    if st + 1 == OPT['wpfq']:
        fill[8] = ['s_mov_b64 exec, 0xffff', 'buffer_load_dword v255, v252, %s, s%d offen' % (srd(sWO), sKS), 's_mov_b64 exec, -1', 's_add_u32 s%d, s%d, 131072' % (sKS, sKS)]
    weave(qm, q_mfs(0), fill)
    qbar(qm, lg=True, loop='L_qp_m' if st == 3 else None)
def q_out(h, dst=None):
    o = []
    for qt in range(3):
        src = QT[h] + 16 * qt
        d_ = src if dst is None else dst + 8 * qt
        pk = pack(src, d_, 's%d' % sSC)
        if dst is None:
            o += pk[:12] + ['ds_write_b128 v%d, %s offset:%d' % (aQW, vr(d_, 4), qt * 1024)]
            o += pk[12:] + ['ds_write_b128 v%d, %s offset:%d' % (aQW, vr(d_ + 4, 4), qt * 1024 + 3072)]
        else: o += pk
    return o
qe = P.block('L_qp_e', ['L_qp_m'])
ad = ['v_mbcnt_lo_u32_b32 v%d, -1, 0' % aPF, 'v_mbcnt_hi_u32_b32 v%d, -1, v%d' % (aPF, aPF),
      's_mul_i32 s%d, s%d, 6144' % (sT, sT3), 's_add_u32 s%d, s%d, %d' % (sT, sT, W0),
      'v_lshlrev_b32 v%d, 4, v%d' % (aQW, aPF), 'v_add_u32 v%d, s%d, v%d' % (aQW, sT, aQW)]
weave(qe, q_mfs(1), [ad[:3], ad[3:], [], []] + spread(q_out(0), 8))
qbar(qe, lg=True)
ACC, AC3, BFR, AFR = 0, 96, [144, 156], [168, 176]
tA, tA1, tO, tOB, tW2, tW1, tONE, tZERO, tSL = 184, 186, 187, 188, 189, 190, 191, 192, 193
FIFO_A = [194 + 4 * i for i in range(13)]
FIFO_B = FB0 + [112, 116, 120, 124] + [194 + 4 * i for i in range(14)]
sPUB, sFLG, sW3 = sXO, sKC, sKS
UO = {1: [0, 1, 2, 3], 2: [2, 1, 0, 3], 3: [2, 1, 0, 3]}
def obase(p, u): return BUF if (p == 1 and u == 0) else OB[u]
class VM:
    def __init__(self): self.q = []
    def add(self, tag): self.q.append(tag)
    def wait(self, tags):
        last = max([i for i, t in enumerate(self.q) if t in tags], default=-1)
        if last < 0: return []
        n = len(self.q) - 1 - last
        self.q = self.q[last + 1:]
        return ['s_waitcnt vmcnt(%d)' % n]
def tail_setup(b, isA):
    b('v_mbcnt_lo_u32_b32 v%d, -1, 0' % tOB)
    b('v_mbcnt_hi_u32_b32 v%d, -1, v%d' % (tOB, tOB))
    L = tOB; x, y = tONE, tZERO
    b('v_lshrrev_b32 v%d, 3, v%d' % (x, L))
    b('v_mul_u32_u24 v%d, 1280, v%d' % (tW2, x))
    b('v_bfe_u32 v%d, v%d, 4, 1' % (x, L))
    b('v_lshlrev_b32 v%d, 2, v%d' % (x, x))
    b('v_and_b32 v%d, 7, v%d' % (y, L))
    b('v_xor_b32 v%d, v%d, v%d' % (x, x, y))
    b('v_lshl_add_u32 v%d, v%d, 4, v%d' % (tW2, x, tW2))
    b('s_lshl_b32 s%d, s%d, 7' % (sT2, sT3))
    if not isA: b('s_add_u32 s%d, s%d, 512' % (sT2, sT2))
    b('s_mul_i32 s%d, s%d, %d' % (sW3, sH0, 128 * 1280))
    b('s_add_u32 s%d, s%d, s%d' % (sWOB, sW3, sT2))
def tail_setup2(b, isA):
    L = tOB; x, y = tONE, tZERO
    if isA:
        b('s_lshl_b32 s%d, s%d, 12' % (sRB, sT3))
        b('s_add_u32 s%d, s%d, %d' % (sRB, sRB, ASL))
        b('s_lshl_b32 s%d, s%d, 6' % (sT2, sT3))
        b('s_add_u32 s%d, s%d, s%d' % (sW3, sW3, sT2))
        b('s_add_u32 s%d, s%d, 1024' % (sW3, sW3))
    else:
        b('s_lshl_b32 s%d, s%d, 3' % (sT, sT3))
        b('s_lshr_b32 s%d, 0x%08x, s%d' % (sRB, sum((BSL[i] >> 12) << (8 * i) for i in range(4)), sT))
        b('s_and_b32 s%d, s%d, 0xff' % (sRB, sRB))
        b('s_lshl_b32 s%d, s%d, 12' % (sRB, sRB))
    b('v_bfe_u32 v%d, v%d, 4, 1' % (x, L))
    b('v_lshlrev_b32 v%d, 5, v%d' % (tA1, x))
    b('v_and_b32 v%d, 1, v%d' % (x, L))
    b('v_lshl_add_u32 v%d, v%d, 4, v%d' % (tA1, x, tA1))
    b('v_bfe_u32 v%d, v%d, 1, 1' % (x, L))
    b('v_lshl_add_u32 v%d, v%d, 3, v%d' % (tA1, x, tA1))
    b('v_add_u32 v%d, s%d, v%d' % (tA1, sRB, tA1))
    b('v_lshrrev_b32 v%d, 5, v%d' % (x, L))
    b('v_bfe_u32 v%d, v%d, 2, 2' % (y, L))
    b('v_lshl_add_u32 v%d, v%d, 3, v%d' % (x, x, y))
    b('v_lshl_add_u32 v%d, v%d, 7, v%d' % (tA, x, tA1))
    b('v_lshl_add_u32 v%d, v%d, 6, v%d' % (tA1, x, tA1))
    b('v_bfe_u32 v%d, v%d, 3, 1' % (y, L))
    b('v_lshl_add_u32 v%d, v%d, 6, v%d' % (tA, y, tA))
    b('v_xor_b32 v%d, 64, v%d' % (tA + 1, tA))
    if isA:
        b('v_lshrrev_b32 v%d, 2, v%d' % (x, L))
        b('v_mul_u32_u24 v%d, 1280, v%d' % (tW1, x))
        b('v_and_b32 v%d, 3, v%d' % (x, L))
        b('v_lshl_add_u32 v%d, v%d, 4, v%d' % (tW1, x, tW1))
    b('v_lshlrev_b32 v%d, 4, v%d' % (tOB, L))
    b('v_add_u32 v%d, s%d, v%d' % (tSL, sRB, tOB))
    b('v_mov_b32 v%d, 1' % tONE)
    b('v_mov_b32 v%d, 0' % tZERO)
    b('s_lshl_b32 s%d, s%d, 3' % (sT, sGRP))
    b('s_add_u32 s%d, s%d, s%d' % (sT, sT, sME))
    b('s_mul_i32 s%d, s%d, 122880' % (sPUB, sT))
    b('s_mul_i32 s%d, s%d, 12288' % (sT, sT3))
    b('s_add_u32 s%d, s%d, s%d' % (sPUB, sPUB, sT))
    if not isA: b('s_add_u32 s%d, s%d, %d' % (sPUB, sPUB, 8 * 6144))
    b('s_lshl_b32 s%d, s%d, 9' % (sFLG, sGRP))
    b('s_lshl_b32 s%d, s%d, 7' % (sT, sT3))
    b('s_add_u32 s%d, s%d, s%d' % (sFLG, sFLG, sT))
    b('s_lshl_b32 s%d, s%d, 2' % (sT, sME))
    b('s_add_u32 s%d, s%d, s%d' % (sFLG, sFLG, sT))
    b('s_add_u32 s%d, s%d, %d' % (sFLG, sFLG, FLAGS + (0 if isA else 32)))
def wrow(p, k): return (UO[p][k >> 3] * 128 + (k & 7) * 16) * 1280
def ncol(p): return 1 if p == 3 else 2
class Stream:
    def __init__(self, seq, fifo):
        self.seq = seq; self.fifo = fifo; self.vm = VM(); self.nl = 0; self.ob = None
        self.items = []; self.first = []
        for (p, k) in seq:
            self.first.append(len(self.items))
            if not self.direct(p, k): self.items += [(p, k, h) for h in range(ncol(p))]
        self.first.append(len(self.items))
    def direct(self, p, k): return p == 3 and k >= 24
    def load(self):
        if self.nl >= len(self.items): return []
        p, k, h = self.items[self.nl]; r_ = self.fifo[self.nl % len(self.fifo)]
        def ld(b, j=self.nl): self.vm.add(j)
        self.nl += 1
        return ['s_add_u32 s%d, s%d, %d' % (sT, sW3 if p == 3 else sWOB, wrow(p, k) + 10240 * h),
                'buffer_load_dwordx4 %s, v%d, %s, s%d offen' % (vr(r_, 4), tW1 if p == 3 else tW2, srd(sWO), sT), ld]
    def writes(self, i):
        if i >= len(self.seq): return [], []
        js = list(range(self.first[i], self.first[i + 1]))
        if not js: return [], []
        w = [lambda b: emit(b, self.vm.wait(set(js)))]
        w += ['ds_write_b128 v%d, %s offset:%d' % (tSL, vr(self.fifo[j % len(self.fifo)], 4), (i & 1) * 2048 + (j - js[0]) * 1024) for j in js]
        return w, js
    def reads(self, i):
        if i >= len(self.seq): return []
        p, k = self.seq[i]; n = ncol(p); o = []
        ob = obase(p, UO[p][k >> 3])
        if ob != self.ob: o.append('v_add_u32 v%d, %d, v%d' % (tO, ob, tOB)); self.ob = ob
        off = (i & 1) * 2048
        if self.direct(p, k):
            if k == 24:
                o += ['s_lshl_b32 s%d, s%d, 13' % (sT2, sT3), 's_sub_u32 s%d, s%d, s%d' % (sT2, sT2, sRB),
                      'v_add_u32 v%d, s%d, v%d' % (tA1, sT2, tA1), lambda b: emit(b, self.vm.wait({'d'}))]
            off = (k - 24) * 1024
        a_ = []
        for t in range(n):
            for jj in range(2):
                a_.append('ds_read_b64_tr_b16 %s, v%d offset:%d' % (vr(AFR[i & 1] + 4 * t + 2 * jj, 2), tA + t if n == 2 else tA1, off + jj * 256 * n))
        b_ = ['ds_read_b128 %s, v%d offset:%d' % (vr(BFR[i & 1] + 4 * qt, 4), tO, (k & 7) * 3072 + qt * 1024) for qt in range(3)]
        return o + a_[:2] + b_ + a_[2:]
    def kstep(self, b, i, top=None, extra=()):
        p, k = self.seq[i]; n = ncol(p); mf = []
        for t in range(n):
            for qt in range(3):
                acc = vr((AC3 if p == 3 else ACC) + 16 * (qt * n + t), 16)
                mf.append('%s %s, %s, %s, %s' % (MF, acc, vr(AFR[i & 1] + 4 * t, 4), vr(BFR[i & 1] + 4 * qt, 4), acc if k else '0'))
        b.waitfor(rng(AFR[i & 1], 4 * n) | rng(BFR[i & 1], 12))
        if top: top(b)
        rd = self.reads(i + 1)
        wr, js = self.writes(i + 2)
        ld = sum((self.load() for _ in js), [])
        if OPT['fine'] and p == 2 and k >= 1:
            if k & 1:
                b('s_memtime s[46:47]')
                wr = ['s_memtime s[48:49]'] + wr[:1] + ['s_memtime s[50:51]'] + wr[1:]
            else:
                b('s_waitcnt lgkmcnt(0)')
                for n_, r_ in enumerate((46, 48, 50)): b('v_writelane_b32 v250, s%d, %d' % (r_, 16 + 3 * (k // 2 - 1) + n_))
        fill = [[] for _ in mf]
        if n == 2:
            fill[0] += rd[:3]; fill[1] += rd[3:6]; fill[2] += rd[6:]
            fill[3] += wr; fill[4] += ld + list(extra)
        else:
            fill[0] += rd[:5]; fill[1] += rd[5:] + wr; fill[2] += ld + list(extra)
        weave(b, mf, fill)
    def slow(self, b, i, extra=()):
        p, k = self.seq[i]
        emit(b, self.reads(i))
        mf = []
        for t in range(2):
            for qt in range(3):
                acc = vr(ACC + 16 * (qt * 2 + t), 16)
                mf.append('%s %s, %s, %s, %s' % (MF, acc, vr(AFR[i & 1] + 4 * t, 4), vr(BFR[i & 1] + 4 * qt, 4), acc if k else '0'))
        wr, js = self.writes(i + 1)
        ld = sum((self.load() for _ in js), [])
        weave(b, mf, [[], [], wr, ld, list(extra), []])
    def prime(self, b):
        for i in range(2):
            wr, js = self.writes(i)
            emit(b, wr + sum((self.load() for _ in js), []))
def publish(b, n, acc0):
    c = 0
    for t in range(n):
        for qt in range(3):
            base = acc0 + 16 * (qt * n + t)
            for i in range(8):
                b('v_cvt_pk_bf16_f32 v%d, v%d, v%d' % (base + i, base + 2 * i, base + 2 * i + 1))
            b('s_add_u32 s%d, s%d, %d' % (sT2, sPUB, (t * 6 + qt * 2) * 1024))
            for h in range(2):
                if OPT['thr'] and n == 2 and acc0 == ACC and b.name.startswith('L_a') and c >= OPT['thr']: b('s_waitcnt vmcnt(%d)' % (OPT['thr'] - 1))
                b('buffer_store_dwordx4 %s, v%d, %s, s%d offen offset:%d sc1' % (vr(base + 4 * h, 4), tOB, srd(sWS), sT2, h * 1024))
                c += 1
def flag(b):
    b('s_waitcnt vmcnt(0)')
    b('s_mov_b64 exec, 1')
    b('buffer_store_dword v%d, v%d, %s, s%d offen sc1' % (tONE, tZERO, srd(sWS), sFLG))
    b('s_mov_b64 exec, -1')

sOO, sSB, sFB = 36, 42, 45
NP = [2, 2, 1]
def red_addr(b, ps, rFO):
    b('v_lshrrev_b32 v%d, 2, v%d' % (rFO, tOB))
    b('v_and_b32 v%d, 0x7f, v%d' % (rFO, rFO))
    b('s_mul_i32 s%d, s%d, %d' % (sT1, sGRP, 8 * 122880))
    b('s_lshl_b32 s%d, s%d, 11' % (sT, sT3))
    b('s_add_u32 s%d, s%d, s%d' % (sT1, sT1, sT))
    b('s_mul_i32 s%d, s%d, 6144' % (sT, sME))
    b('s_add_u32 s%d, s%d, s%d' % (sSB, sT1, sT))
    b('s_lshr_b32 s%d, s%d, 1' % (sT2, sME))
    if 1 in ps:
        b('s_add_u32 s%d, s%d, %d' % (sSB + 1, sSB, 8 * 6144))
        b('s_mul_i32 s%d, s%d, 6144' % (sT, sT2))
        b('s_add_u32 s%d, s%d, s%d' % (sSB + 2, sT1, sT))
        b('s_and_b32 s%d, s%d, 1' % (sN, sME))
        b('s_lshl_b32 s%d, s%d, 10' % (sT, sN))
        b('s_add_u32 s%d, s%d, s%d' % (sSB + 2, sSB + 2, sT))
        b('s_add_u32 s%d, s%d, %d' % (sSB + 2, sSB + 2, 16 * 6144))
    b('s_lshl_b32 s%d, s%d, 9' % (sFB, sGRP))
    b('s_lshl_b32 s%d, s%d, 7' % (sT, sT2))
    b('s_add_u32 s%d, s%d, s%d' % (sFB, sFB, sT))
    b('s_add_u32 s%d, s%d, %d' % (sFB, sFB, FLAGS))
    b('s_mul_i32 s%d, s%d, %d' % (sT1, sB, 96 * 2560))
    b('s_mul_i32 s%d, s%d, 1280' % (sT, sBR))
    b('s_add_u32 s%d, s%d, s%d' % (sT1, sT1, sT))
    b('s_mul_i32 s%d, s%d, %d' % (sT, sT3, 32 * 2560))
    b('s_add_u32 s%d, s%d, s%d' % (sT1, sT1, sT))
    b('s_lshl_b32 s%d, s%d, 6' % (sT, sME))
    b('s_add_u32 s%d, s%d, s%d' % (sOO, sT1, sT))
    if 1 in ps:
        b('s_add_u32 s%d, s%d, 512' % (sOO + 1, sOO))
        b('s_lshl_b32 s%d, s%d, 6' % (sT, sT2))
        b('s_add_u32 s%d, s%d, s%d' % (sOO + 2, sT1, sT))
        b('s_lshl_b32 s%d, s%d, 5' % (sT, sN))
        b('s_add_u32 s%d, s%d, s%d' % (sOO + 2, sOO + 2, sT))
        b('s_add_u32 s%d, s%d, 1024' % (sOO + 2, sOO + 2))
    b('s_mov_b32 s%d, 0x40000' % sCNT)
def red_sel(b, RA, rOUT, t):
    b('v_lshrrev_b32 v%d, 4, v%d' % (t, tOB))
    b('v_and_b32 v%d, 31, v%d' % (t + 1, t))
    b('v_lshrrev_b32 v%d, 5, v%d' % (t + 2, t))
    b('v_mul_u32_u24 v%d, 2560, v%d' % (rOUT, t + 1))
    b('v_lshl_add_u32 v%d, v%d, 4, v%d' % (rOUT, t + 2, rOUT))
    b('v_bfe_u32 v%d, v%d, 2, 1' % (t + 3, t + 1))
    b('v_xor_b32 v%d, v%d, v%d' % (t + 3, t + 3, t + 2))
    b('v_lshrrev_b32 v%d, 4, v%d' % (t + 4, t + 1))
    b('v_or_b32 v%d, v%d, v%d' % (t + 3, t + 3, t + 4))
    b('v_lshlrev_b32 v%d, 3, v%d' % (t + 3, t + 3))
    b('v_bfe_u32 v%d, v%d, 3, 1' % (t + 4, t + 1))
    b('v_bfe_u32 v%d, v%d, 1, 1' % (t, t + 1))
    b('v_lshl_or_b32 v%d, v%d, 1, v%d' % (t + 4, t + 4, t))
    b('v_or_b32 v%d, v%d, v%d' % (t + 3, t + 3, t + 4))
    b('v_and_b32 v%d, 1, v%d' % (t + 4, t + 1))
    b('v_lshlrev_b32 v%d, 4, v%d' % (t + 4, t + 4))
    b('v_mov_b32 v%d, 0x3f80' % t)
    b('v_lshlrev_b32 v%d, v%d, v%d' % (t + 4, t + 4, t))
    for i in range(4):
        b('v_cmp_eq_u32 vcc, %d, v%d' % (i, t + 3))
        b('v_cndmask_b32 v%d, 0, v%d, vcc' % (RA + i, t + 4))
def poll(p, prev, rF, rFO, raw):
    rp = P.block('L_red_p%d' % p, prev + ['L_red_p%d' % p])
    rp('buffer_load_dword v%d, v%d, %s, s%d offen sc1' % (rF, rFO, srd(sWS), sFB))
    rp('s_sub_u32 s%d, s%d, 1' % (sCNT, sCNT))
    rp('s_waitcnt vmcnt(0)')
    rp('v_cmp_eq_u32 vcc, 1, v%d' % rF)
    rp('s_cmp_gt_i32 s%d, 0' % sCNT)
    rp('s_cselect_b32 s%d, 0, -1' % sT2)
    rp('s_or_b32 s%d, vcc_lo, s%d' % (sT, sT2))
    rp('s_bfe_u32 s%d, s%d, 0x%x' % (sT, sT, (8 << 16) | (8 * p)))
    rp('s_cmp_lg_u32 s%d, 0xff' % sT)
    rp('s_cbranch_scc1 L_red_p%d' % p)
    ri = P.block('L_red_i%d' % p, ['L_red_p%d' % p])
    pmark(ri)
    for src in range(8):
        ri('s_add_u32 s%d, s%d, %d' % (sT, sSB + p, src * 122880))
        for h in range(NP[p]):
            ri('buffer_load_dwordx4 %s, v%d, %s, s%d offen offset:%d sc1' % (vr(raw + 4 * (NP[p] * src + h), 4), tOB, srd(sWS), sT, h * 1024))
    return ri
def finish_stage(b, p, raw, racc, RA, rOUT):
    for src in range(8):
        for h in range(NP[p]):
            acc = vr(racc + 16 * h, 16)
            b('%s %s, %s, %s, %s' % (MF, acc, vr(RA, 4), vr(raw + 4 * (NP[p] * src + h), 4), acc if src else '0'))
    for h in range(NP[p]):
        acc = racc + 16 * h
        for i in range(4):
            b('v_cvt_pk_bf16_f32 v%d, v%d, v%d' % (acc + i, acc + 2 * i, acc + 2 * i + 1))
        b('buffer_store_dwordx4 %s, v%d, %s, s%d offen offset:%d' % (vr(acc, 4), rOUT, srd(sOUT), sOO + p, 32 * h))

M3, N31 = OPT['m3'], OPT['n31']
seqA = [(1, k) for k in range(24)] + [(3, k) for k in range(M3)] + [(1, k) for k in range(24, 32)] + [(3, k) for k in range(M3, 32)]
SA_ = Stream(seqA, FIFO_A)
ta = P.block('L_a24', ['L_qp_e'])
def abar0(b, n):
    pstamp(b, sPA)
    gend(b, lg=True, tail=[pshift] if (n & 7) == 7 else None)
def wo_pf(n):
    if OPT['stag']:
        u, j = divmod(n - OPT['sb'], 8)
        if j >= 4 or not 0 <= u < 4: return []
        return ['s_cmp_lg_u32 s%d, %d' % (sLJ, j), 's_cbranch_scc1 L_npf%d' % n,
                's_add_u32 s%d, s%d, %d' % (sT, sPK, u * 128 * 1280), 's_mov_b64 exec, 0xff',
                'buffer_load_dword v255, v%d, %s, s%d offen' % (aPF, srd(sWO), sT), 's_mov_b64 exec, -1', lambda b: b.raw('L_npf%d:' % n)]
    n -= OPT['wpf0']
    if not 0 <= n < 20: return []
    return ['s_add_u32 s%d, s%d, %d' % (sT, sPK, n * 32768), 's_mov_b64 exec, 15',
            'buffer_load_dword v255, v%d, %s, s%d offen' % (aPF, srd(sWO), sT), 's_mov_b64 exec, -1', lambda b: SA_.vm.add('pf')]
UP, DN = 'v_add_u32 v%d, %d, v%d' % (aQW, BUF - W0, aQW), 'v_subrev_u32 v%d, %d, v%d' % (aQW, BUF - W0, aQW)
emit(ta, [UP] + q_out(1))
if OPT['stag']:
    ta('v_and_b32 v0, 3, v%d' % aPF)
    ta('v_lshrrev_b32 v%d, 2, v%d' % (aPF, aPF))
    ta('v_mul_u32_u24 v%d, 1280, v%d' % (aPF, aPF))
    ta('v_lshl_add_u32 v%d, v0, 7, v%d' % (aPF, aPF))
    ta('s_lshl_b32 s%d, s%d, 2' % (sT, sB))
    ta('s_add_u32 s%d, s%d, s%d' % (sT, sT, sT3))
    ta('s_mul_i32 s%d, s%d, 2560' % (sT, sT))
    ta('s_mul_i32 s%d, s%d, %d' % (sPK, sH0, 128 * 1280))
    ta('s_add_u32 s%d, s%d, s%d' % (sPK, sPK, sT))
    ta('s_and_b32 s%d, s%d, 3' % (sLJ, sB))
abar0(ta, 0)
emit(ta, wo_pf(1))
emit(ta, [DN] + q_out(2) + q_out(3, AC3) + [UP])
if not OPT['stag']:
    ta('v_lshlrev_b32 v%d, 11, v%d' % (aPF, aPF))
    ta('s_mul_i32 s%d, s%d, %d' % (sPK, sH0, 128 * 1280))
    ta('s_lshl_b32 s%d, s%d, 7' % (sT, sB))
    ta('s_add_u32 s%d, s%d, s%d' % (sPK, sPK, sT))
    ta('s_lshl_b32 s%d, s%d, 13' % (sT, sT3))
    ta('s_add_u32 s%d, s%d, s%d' % (sPK, sPK, sT))
abar0(ta, 1)
ta('s_lshl_b32 s%d, s%d, 3' % (sT, sGRP))
ta('v_mov_b32 v0, s%d' % sT)
ta('s_cmp_lg_u32 s%d, 4' % sWAVE)
ta('s_cbranch_scc1 L_qp2')
ta('v_mov_b32 v1, 1')
ta('s_mov_b64 exec, 1')
ta('s_waitcnt vmcnt(0)')
ta('global_atomic_add v0, v1, s[%d:%d] sc1' % (sDBG, sDBG + 1))
ta('s_mov_b64 exec, -1')
ta.raw('L_qp2:')
tail_setup(ta, True)
tail_setup2(ta, True)
red_addr(ta, [0], 2)
for n in range(2, 8):
    emit(ta, wo_pf(n))
    if n >= 5:
        for _ in range(OPT['pre'] // 3): emit(ta, SA_.load())
    if n == 7:
        ta('global_load_dword v1, v0, s[%d:%d] sc1' % (sDBG, sDBG + 1))
    abar0(ta, n)
ta('s_waitcnt vmcnt(0)')
SA_.vm.q = []
tc = P.block('L_a_c', ['L_a24', 'L_a_c2'])
tc('v_readfirstlane_b32 s%d, v1' % sT)
tc('s_sub_u32 s%d, s%d, 1' % (sCNT, sCNT))
tc('s_cmp_ge_u32 s%d, 8' % sT)
tc('s_cbranch_scc1 L_a_m')
tc2 = P.block('L_a_c2', ['L_a_c'])
tc2('global_load_dword v1, v0, s[%d:%d] sc1' % (sDBG, sDBG + 1))
tc2('s_cmp_gt_i32 s%d, 0' % sCNT)
tc2('s_waitcnt vmcnt(0)')
tc2('s_cbranch_scc1 L_a_c')
ta = P.block('L_a_m', ['L_a_c', 'L_a_c2'])
wr, js = SA_.writes(0)
emit(ta, wr + sum((SA_.load() for _ in js), []) + wo_pf(8))
abar0(ta, 8)
OSV = AC3 + 24
LAST = OPT['last']
for n in range(9, 30):
    if n == 17:
        for j in range(6): ta('ds_read_b128 %s, v%d offset:%d' % (vr(OSV + 4 * j, 4), aQW, (j >> 1) * 1024 + (j & 1) * 3072))
    if n - 9 <= LAST: SA_.slow(ta, n - 9, wo_pf(n))
    else: emit(ta, wo_pf(n))
    if n == 17:
        ta.waitfor(rng(OSV, 24))
        for j in range(6): ta('ds_write_b128 v%d, %s offset:%d' % (aQW, vr(AC3 + 4 * j, 4), (j >> 1) * 1024 + (j & 1) * 3072))
    if OPT['grad'] and n >= OPT['grad'] and SA_.nl < len(FIFO_A) + SA_.first[min(n - 9, LAST) + 2]: emit(ta, SA_.load())
    if n == OPT['top']:
        while SA_.nl < len(FIFO_A) + SA_.first[min(n - 9, LAST) + 2]: emit(ta, SA_.load())
    abar0(ta, n)
I0 = LAST + 1
ta('v_subrev_u32 v%d, %d, v%d' % (aQW, BUF - OB[0], aQW))
emit(ta, SA_.reads(I0))
for j in range(6): ta('ds_write_b128 v%d, %s offset:%d' % (aQW, vr(OSV + 4 * j, 4), (j >> 1) * 1024 + (j & 1) * 3072))
wr, js = SA_.writes(I0 + 1)
emit(ta, wr + sum((SA_.load() for _ in js), []))
def abar(tail=None):
    def f(b):
        pstamp(b, sPA)
        gend(b, tail=tail)
    return f
def b30(b):
    b('s_waitcnt lgkmcnt(0)')
    abar()(b)
    b('s_setprio %d' % OPT['pc'])
def bend(b):
    if OPT['prof']:
        b('s_waitcnt lgkmcnt(0)')
        pwrite(b, [sPC]); pstamp(b, sPC)
    b('s_barrier')
tops = {24: b30, 24 + N31: abar([pshift]), 24 + M3 - 1: bend,
        24 + M3: lambda b: b('s_setprio %d' % OPT['pa'])}
assert 0 < N31 < M3 - 1
def direct_dma(k):
    def f(b):
        b('s_lshl_b32 s%d, s%d, 13' % (sT2, sT3))
        b('s_add_u32 m0, s%d, %d' % (sT2, (k - 24) * 1024))
        b('s_add_u32 s%d, s%d, %d' % (sT, sW3, wrow(3, k)))
        b('buffer_load_dwordx4 v%d, %s, s%d offen lds' % (tW1, srd(sWO), sT))
        SA_.vm.add('d')
    return f
for i in range(I0, 32 + M3):
    SA_.kstep(ta, i, tops.get(i), [direct_dma(i)] if 24 <= i < 32 else ())
assert SA_.nl == len(SA_.items)
pmark(ta, True)
ta('s_setprio %d' % OPT['pc'])
publish(ta, 2, ACC)
pmark(ta)
flag(ta)
SA_.vm.q = []
pmark(ta)
ta('s_mul_i32 s%d, s%d, 6144' % (sT, sT3))
ta('s_sub_u32 s%d, s%d, s%d' % (sPUB, sPUB, sT))
ta('s_add_u32 s%d, s%d, %d' % (sPUB, sPUB, 16 * 6144))
ta('s_add_u32 s%d, s%d, 64' % (sFLG, sFLG))
ta('v_lshrrev_b32 v65, 2, v%d' % tOB)
ta('v_and_b32 v65, 0x7f, v65')
ta('s_waitcnt lgkmcnt(0)')
if OPT['bld'] >= 0: ta('s_barrier')
ta('s_cmp_eq_u32 s%d, 3' % sT3)
ta('s_cbranch_scc1 L_a_x')
ri = poll(0, ['L_a_m'], 64, 65, 0)
tx = P.block('L_a_x', ['L_a_m', 'L_red_i0'])
for i in range(32 + M3, len(seqA)): SA_.kstep(tx, i)
pmark(tx)
publish(tx, 1, AC3)
pmark(tx)
flag(tx)
pmark(tx)
tx('s_cmp_eq_u32 s%d, 3' % sT3)
tx('s_cbranch_scc1 %s' % ('L_a_y' if OPT['prof'] else 'L_end'))
tz = P.block('L_a_z', ['L_a_x'])
red_sel(tz, 196, 200, 202)
finish_stage(tz, 0, 0, 64, 196, 200)
ty = P.block('L_a_y', ['L_a_x', 'L_a_z'])
if OPT['prof']: ty('s_branch L_fin')
else: ty('s_endpgm')

SB_ = Stream([(2, k) for k in range(32)], FIFO_B)
tb = P.block('L_tb', ['L_att_fin', 'L_ld_w'])
tb('s_setprio %d' % OPT['pb'])
tail_setup(tb, False)
if OPT['early']:
    assert UO[2][0] == 2
    for _ in FB0: SB_.load()[-1](tb)
while SB_.nl < len(FIFO_B): emit(tb, SB_.load())
tail_setup2(tb, False)
SB_.prime(tb)
emit(tb, SB_.reads(0))
for i in range(32): SB_.kstep(tb, i, (lambda b: b('s_barrier')) if i == OPT['bld'] else None)
pmark(tb, True)
publish(tb, 2, ACC)
pmark(tb)
RA, rOUT, rF, rFO = 240, 244, 246, 247
red_addr(tb, [1, 2], rFO)
red_sel(tb, RA, rOUT, 230)
flag(tb)
pmark(tb)
tb('s_cmp_eq_u32 s%d, 3' % sWAVE)
tb('s_cbranch_scc1 %s' % ('L_fin' if OPT['prof'] else 'L_end'))
ri = poll(1, ['L_tb'], rF, rFO, 0)
ri = poll(2, ['L_red_i1'], rF, rFO, 64)
finish_stage(ri, 1, 0, 96, RA, rOUT)
ri('s_waitcnt vmcnt(2)')
pmark(ri)
finish_stage(ri, 2, 64, 128, RA, rOUT)
f = P.block('L_fin', ['L_red_i2', 'L_a_z', 'L_a_y', 'L_tb'])
if OPT['prof']:
    f('s_waitcnt vmcnt(0)')
    pmark(f)
    f('s_lshl_b32 s%d, s2, 3' % sT2)
    f('s_add_u32 s%d, s%d, s%d' % (sT2, sT2, sWAVE))
    f('s_mul_i32 s%d, s%d, 1280' % (sT2, sT2))
    f('s_add_u32 s%d, s%d, %d' % (sT2, sT2, 72 << 20))
    f('v_mbcnt_lo_u32_b32 v4, -1, 0')
    f('v_mbcnt_hi_u32_b32 v4, -1, v4')
    f('v_lshlrev_b32 v4, 2, v4')
    for i in range(5):
        f('buffer_store_dword v%d, v4, %s, s%d offen offset:%d' % (254 - i, srd(sWS), sT2, 256 * i))
if OPT['stamps']:
    f('s_waitcnt vmcnt(0)')
    f('s_cmp_lg_u32 s%d, 0' % sWAVE)
    f('s_cbranch_scc1 L_end')
    f('s_memrealtime s[%d:%d]' % (sT, sT + 1))
    f('s_waitcnt lgkmcnt(0)')
    f('v_mov_b32 v0, s%d' % sST0)
    f('v_mov_b32 v1, s%d' % (sST0 + 1))
    f('v_mov_b32 v2, s%d' % sT)
    f('v_mov_b32 v3, s%d' % (sT + 1))
    f('s_lshl_b32 s%d, s2, 4' % sT2)
    f('s_add_u32 s%d, s%d, %d' % (sT2, sT2, 64 << 20))
    f('v_mov_b32 v4, 0')
    f('s_mov_b64 exec, 1')
    f('buffer_store_dwordx4 v[0:3], v4, %s, s%d offen' % (srd(sWS), sT2))
en = P.block('L_end', ['L_fin'])
en('s_endpgm')

for (name, X, frm) in slow:
    s = P.block('L_slow_%s' % name, [frm])
    s('s_nop 15')
    s('v_mov_b32 v%d, v%d' % (TM + 1, TM))
    s('v_permlane32_swap_b32 v%d, v%d' % (TM, TM + 1))
    s('v_max3_f32 v%d, v%d, v%d, 0' % (TM, TM, TM + 1))
    s('v_exp_f32 v%d, -v%d' % (TM + 1, TM))
    for i in range(16):
        s('v_sub_f32 v%d, v%d, v%d' % (X + i, X + i, TM))
        s('v_sub_f32 v%d, v%d, v%d' % (NM + i, NM + i, TM))
    for i in range(64):
        s('v_mul_f32 v%d, v%d, v%d' % (OA + i, TM + 1, OA + i))
    s('v_mul_f32 v%d, v%d, v%d' % (LS, TM + 1, LS))
    s('v_mul_f32 v%d, v%d, v%d' % (LS + 1, TM + 1, LS + 1))
    s('s_nop 1')
    s('s_branch L_back_%s' % name)

body = P.finish()
hdr = open('concat_heads__gqa_block_cached__gqa_block_cached__near_ridge.s.ref').read().split('; Override launch')[0]
out = hdr + """; Override launch geometry by editing the next line (default: block=256,
; grid=ceil(out_elems/256), lds=0). Harness parses it; keep it on one line.
; @launch grid=(256,1,1) block=(512,1,1) lds=%d
.amdgcn_target "amdgcn-amd-amdhsa--gfx950"
.text
.globl %s
.p2align 8
.type %s,@function
%s:
%s
.section .rodata,"a"
.p2align 6
.amdhsa_kernel %s
  .amdhsa_next_free_vgpr 256
  .amdhsa_next_free_sgpr 102
  .amdhsa_accum_offset 256
  .amdhsa_group_segment_fixed_size 0
  .amdhsa_kernarg_size 104
  .amdhsa_user_sgpr_count 2
  .amdhsa_user_sgpr_kernarg_segment_ptr 1
  .amdhsa_system_sgpr_workgroup_id_x 1
.end_amdhsa_kernel
""" % (LDS_BYTES, KN, KN, KN, body, KN)
open(sys.argv[1], 'w').write(out)
```

```python
import sys, math, struct
sys.path.insert(0, 'gen')
from asmlib import *

KN = "concat_heads__gqa_block_cached__gqa_block_cached__near_ridge_kernel"
OPT = dict(stamps=0, nt=1, rot=1, prof=0, krot=1, pkq=0, pko=0, patt=1, pq=2, pf=3, pa=2, pb=1, pc=0, n31=3, m3=11, bld=-1, qpf=2, wpf=5, thr=0, fine=0, pre=6, wpf0=2, last=20, pld=0, nks=1, wpfq=0, top=28, spf=0, spn=5, stag=1, sb=1, early=1, kv2=1, grad=22, kpf=0, kc0=3, kn=8)
for a in sys.argv[2:]:
    k, v = a.split('='); assert k in OPT, k; OPT[k] = int(v)

SLOT = 32768
S0, S1, S2, W0, W1, BUF = 0, 32768, 65536, 98304, 118784, 139264
XS0, XST = 131072, 6144
FLAGS = 40 << 20
LDS_BYTES = 163840
MF = 'v_mfma_f32_32x32x16_bf16'
NT = ' nt' if OPT['nt'] else ''
OB = [S2, W0, BUF, S1]
ASL, BSL = W0 + 24576, (S2 + 24576, S2 + 28672, S1 + 24576, S1 + 28672)

sWAVE = 3
sK, sV, sX, sWQ, sWO, sWS, sOUT = 4, 8, 12, 16, 20, 24, 28
sDBG = 32
sU, sCNT = 34, 35
sB, sBR, sH0, sME, sGRP = 62, 63, 64, 65, 66
sKVO, sWQO, sXO, sKC, sMS, sT, sT1, sWOB, sWSL = 67, 68, 69, 70, 71, 72, 73, 74, 75
sKS, sN, sT2, sT3, sDELTA, sSLOT, sROT, sLJ, sPK, sAS = 76, 77, 78, 79, 80, 81, 82, 83, 84, 85
sSC, sTHR = 86, 88
sKROT = 89
sST0 = 90
sRB = 92
sPI = 93
sPA, sPB, sPC = 94, 96, 98
sJ8, sJ2 = 100, 101
def srd(n): return 's[%d:%d]' % (n, n + 3)
def vr(a, n): return 'v[%d:%d]' % (a, a + n - 1)

class Prog:
    def __init__(self):
        self.blocks = []; self.preds = {}
    def block(self, name, preds, pend=None, label=True):
        b = Block(name)
        if pend is not None: b.pend = list(pend)
        if label: b.raw(name + ':')
        self.blocks.append(b); self.preds[name] = preds
        return b
    def tails(self, name, need=20, depth=0):
        res = []
        for p in self.preds[name]:
            pb = [b for b in self.blocks if b.name == p]
            assert pb, (name, p)
            ins = pb[0].ins
            st = sum(i.states() for i in ins)
            if st >= need or depth > 3 or not self.preds[p]:
                res.append(list(ins[-40:]))
            else:
                for t in self.tails(p, need - st, depth + 1):
                    res.append(t + list(ins))
        return res
    def finish(self):
        for b in self.blocks:
            b.ins = fix_hazards(b.ins, self.tails(b.name))
        return '\n'.join(text_of(b.ins) for b in self.blocks)

P = Prog()
def pstamp(b, reg):
    if OPT['prof']: b('s_memtime s[%d:%d]' % (reg, reg + 1))
def pwrite(b, regs):
    if OPT['prof']:
        for r_ in regs:
            b('s_mov_b32 m0, s%d' % sPI)
            b('s_nop 0')
            b('v_writelane_b32 v250, s%d, m0' % (r_,))
            b('s_add_u32 s%d, s%d, 1' % (sPI, sPI))
def pshift(b):
    if OPT['prof']:
        for i in (254, 253, 252, 251): b('v_mov_b32 v%d, v%d' % (i, i - 1))
        b('s_mov_b32 s%d, 0' % sPI)
def pmark(b, first=False):
    if OPT['prof']:
        b('s_memtime s[%d:%d]' % (sPA, sPA + 1))
        b('s_waitcnt lgkmcnt(0)')
        pwrite(b, [sPC, sPA] if first else [sPA])
def emit(b, ops):
    for o in ops:
        if callable(o): o(b)
        else: b(o)
def weave(b, mf, fill):
    assert len(mf) == len(fill), (len(mf), len(fill))
    for m, f in zip(mf, fill):
        b(m)
        emit(b, f)
def split(ops, counts):
    out = []; k = 0
    for c in counts:
        out.append(list(ops[k:k + c])); k += c
    assert k >= len(ops), (k, len(ops))
    return out
def spread(ops, n):
    out = []; k = 0
    for i in range(n):
        m = (len(ops) * (i + 1)) // n
        out.append(list(ops[k:m])); k = m
    return out
def zipf(*lists):
    return [sum((l[i] for l in lists), []) for i in range(len(lists[0]))]
def rng(a, n): return set(range(a, a + n))
def W(regs): return lambda b: b.waitfor(regs)

vK, vV, vWQ, vX = 242, 246, 247, 248
e = P.block('L_entry', [], label=False)
e('s_cmp_ge_u32 s2, 256')
e('s_cbranch_scc1 L_end')
if OPT['stamps']:
    e('s_memrealtime s[%d:%d]' % (sST0, sST0 + 1))
if OPT['prof']: e('s_memtime s[%d:%d]' % (sPA, sPA + 1))
e('s_load_dwordx16 s[36:51], s[0:1], 0')
e('s_load_dwordx8 s[52:59], s[0:1], 64')
e('s_load_dwordx2 s[60:61], s[0:1], 96')
e('v_lshrrev_b32 v1, 6, v0')
e('v_and_b32 v0, 63, v0')
e('v_readfirstlane_b32 s%d, v1' % sWAVE)
e('s_and_b32 s%d, s2, 7' % sT)
e('s_lshr_b32 s%d, s2, 3' % sT2)
e('s_lshr_b32 s%d, s%d, 2' % (sBR, sT))
e('s_and_b32 s%d, s%d, 3' % (sT, sT))
e('s_lshr_b32 s%d, s%d, 1' % (sB, sT2))
e('s_and_b32 s%d, s%d, 1' % (sT2, sT2))
e('s_lshl_b32 s%d, s%d, 1' % (sME, sT))
e('s_add_u32 s%d, s%d, s%d' % (sME, sME, sT2))
e('s_lshl_b32 s%d, s%d, 2' % (sH0, sME))
e('s_mul_i32 s%d, s%d, 5' % (sT2, sT2))
if OPT['krot']:
    e('s_lshr_b32 s%d, s%d, 1' % (sKROT, sB))
    e('s_add_u32 s%d, s%d, s%d' % (sKROT, sKROT, sT))
    e('s_add_u32 s%d, s%d, s%d' % (sKROT, sKROT, sT2))
    e('s_and_b32 s%d, s%d, 7' % (sKROT, sKROT))
    e('s_lshl_b32 s%d, s%d, 14' % (sKROT, sKROT))
else: e('s_mov_b32 s%d, 0' % sKROT)
e('s_lshl_b32 s%d, s%d, 4' % (sGRP, sBR))
e('s_add_u32 s%d, s%d, s%d' % (sGRP, sGRP, sB))
if OPT['rot']:
    if OPT['rot'] == 1:
        e('s_mul_i32 s%d, s%d, 5' % (sROT, sB))
        e('s_lshr_b32 s%d, s%d, 2' % (sROT, sROT))
    else:
        e('s_and_b32 s%d, s%d, %d' % (sROT, sB, OPT['rot'] - 1))
        e('s_mul_i32 s%d, s%d, %d' % (sROT, sROT, 20 // OPT['rot']))
    e('s_lshl_b32 s%d, s%d, 1' % (sT2, sT2))
    e('s_add_u32 s%d, s%d, s%d' % (sROT, sROT, sT2))
    e('s_cmp_ge_u32 s%d, 20' % sROT)
    e('s_cselect_b32 s%d, 20, 0' % sT2)
    e('s_sub_u32 s%d, s%d, s%d' % (sKC, sROT, sT2))
else:
    e('s_mov_b32 s%d, 0' % sKC)
e('s_mov_b32 s%d, 0' % sJ8)
e('s_lshl_b32 s%d, s%d, 13' % (sJ2, sWAVE))
e('v_lshrrev_b32 v4, 4, v0')
e('v_and_b32 v5, 15, v0')
e('v_lshlrev_b32 v6, 2, v4')
e('v_xor_b32 v6, v6, v5')
e('v_lshlrev_b32 v6, 4, v6')
e('v_lshl_add_u32 v%d, v4, 13, v6' % vWQ)
e('v_lshl_add_u32 v%d, v4, 8, v6' % vV)
e('v_and_b32 v6, 3, v0')
e('v_xor_b32 v6, v6, v4')
e('v_lshlrev_b32 v6, 4, v6')
e('v_lshrrev_b32 v7, 2, v0')
e('v_mul_u32_u24 v7, 1280, v7')
e('v_add_u32 v%d, v7, v6' % vX)
e('s_mul_i32 s%d, s%d, 122880' % (sXO, sB))
e('s_mul_i32 s%d, s%d, 20480' % (sT, sWAVE))
e('s_add_u32 s%d, s%d, s%d' % (sXO, sXO, sT))
e('s_lshl_b32 s%d, s%d, 10' % (sWSL, sWAVE))
e('s_add_u32 s%d, s%d, %d' % (sWSL, sWSL, XS0))
e('s_add_u32 s%d, s%d, %d' % (sLJ, sWSL, 4 * XST))
e('s_add_u32 s%d, s%d, s%d' % (sWQO, sH0, sWAVE))
e('s_lshl_b32 s%d, s%d, 8' % (sWQO, sWQO))
e('s_mov_b32 s%d, 0' % sMS)
e('s_mov_b32 s%d, 0' % sU)
if OPT['prof']: e('s_mov_b32 s%d, 0' % sPI)
for d, size in ((sX, 16*96*640*2), (sWQ, 640*4096*2)):
    e('s_mov_b32 s%d, %d' % (d + 2, size))
    e('s_mov_b32 s%d, 0x20000' % (d + 3))
e('s_and_b32 s%d, s%d, 3' % (sT3, sWAVE))
e('s_waitcnt lgkmcnt(0)')
if OPT['prof']: e('s_memtime s[%d:%d]' % (sPB, sPB + 1))
e('s_cmp_eq_u32 s%d, 0' % sBR)
for (dst, a, b_) in ((sX, 36, 46), (sWQ, 42, 52), (sK, 38, 48), (sV, 40, 50), (sWO, 44, 54)):
    e('s_cselect_b64 s[%d:%d], s[%d:%d], s[%d:%d]' % (dst, dst + 1, a, a + 1, b_, b_ + 1))
for d in (sX, sWQ):
    e('s_and_b32 s%d, s%d, 0xffff' % (d + 1, d + 1))
e('s_cmp_ge_u32 s%d, 4' % sWAVE)
e('s_cbranch_scc1 L_qp')
def rest_srd(b):
    for (dst, size) in ((sK, 16*32*512*128*2), (sV, 16*32*512*128*2), (sWO, 640*4096*2)):
        b('s_mov_b32 s%d, %d' % (dst + 2, size))
        b('s_mov_b32 s%d, 0x20000' % (dst + 3))
    for (dst, a, size) in ((sOUT, 56, 16*96*1280*2), (sWS, 60, 293339136)):
        b('s_mov_b64 s[%d:%d], s[%d:%d]' % (dst, dst + 1, a, a + 1))
        b('s_mov_b32 s%d, %d' % (dst + 2, size))
        b('s_mov_b32 s%d, 0x20000' % (dst + 3))
    for d in (sK, sV, sWO, sOUT, sWS):
        b('s_and_b32 s%d, s%d, 0xffff' % (d + 1, d + 1))
    b('s_mov_b64 s[%d:%d], s[58:59]' % (sDBG, sDBG + 1))

NX = [0]
def issue_Q():
    nx = NX[0]; NX[0] += 1
    o = ['s_add_u32 m0, s%d, s%d' % (sMS, sJ2),
         's_lshl_b32 s%d, s%d, 18' % (sT, sKC),
         's_add_u32 s%d, s%d, s%d' % (sT, sT, sWQO)]
    RS = 32768
    for m in range(8):
        if m == 4:
            o += ['s_add_u32 m0, m0, 4096', 's_add_u32 s%d, s%d, %d' % (sT, sT, RS + 3072)]
        elif m: o.append('s_add_u32 s%d, s%d, %d' % (sT, sT, RS - 1024))
        o.append('buffer_load_dwordx4 v%d, %s, s%d offen offset:%d lds' % (vWQ, srd(sWQ), sT, (m & 3) * 1024))
    o += ['s_mov_b32 m0, s%d' % sWSL,
          's_lshl_b32 s%d, s%d, 6' % (sT, sKC),
          's_add_u32 s%d, s%d, s%d' % (sT, sT, sXO),
          'buffer_load_dwordx4 v%d, %s, s%d offen lds' % (vX, srd(sX), sT),
          's_cmp_ge_u32 s%d, 2' % sWAVE,
          's_cbranch_scc1 L_nx%d' % nx,
          's_add_u32 m0, s%d, 4096' % sWSL,
          's_add_u32 s%d, s%d, %d' % (sT, sT, 4 * 20480),
          'buffer_load_dwordx4 v%d, %s, s%d offen lds' % (vX, srd(sX), sT),
          lambda b: b.raw('L_nx%d:' % nx),
          's_add_u32 s%d, s%d, 1' % (sKC, sKC),
          's_cmp_eq_u32 s%d, 20' % sKC,
          's_cselect_b32 s%d, 0, s%d' % (sKC, sKC),
          's_add_u32 s%d, s%d, %d' % (sMS, sMS, SLOT),
          's_and_b32 s%d, s%d, 0x18000' % (sMS, sMS),
          's_add_u32 s%d, s%d, %d' % (sWSL, sWSL, XST),
          's_cmp_eq_u32 s%d, s%d' % (sWSL, sLJ),
          's_cselect_b32 s%d, %d, 0' % (sT, 4 * XST),
          's_sub_u32 s%d, s%d, s%d' % (sWSL, sWSL, sT)]
    return o
def issue_H(half, ng=2):
    o = []
    for gq in range(ng):
        off = 16384 * half + 4096 * gq
        if off: o.append('s_add_u32 m0, s%d, %d' % (sAS, off))
        else: o.append('s_mov_b32 m0, s%d' % sAS)
        if gq: o.append('s_add_u32 s%d, s%d, %d' % (sT, sKVO, 4096 * gq))
        for e_ in range(4):
            o.append('buffer_load_dwordx4 v%d, %s, s%d offen offset:%d%s lds' % (vV if half else vK + e_, srd(sV if half else sK), sT if gq else sKVO, e_ * 1024, NT))
    if half:
        o += ['s_add_u32 s%d, s%d, 16384' % (sKVO, sKVO),
              's_and_b32 s%d, s%d, 0x1c000' % (sT2, sKVO),
              's_cselect_b32 s%d, 0, 0x20000' % sT2,
              's_sub_u32 s%d, s%d, s%d' % (sKVO, sKVO, sT2),
              's_add_u32 s%d, s%d, %d' % (sAS, sAS, SLOT),
              's_cmp_ge_u32 s%d, %d' % (sAS, 3 * SLOT),
              's_cselect_b32 s%d, s%d, s%d' % (sAS, sJ8, sAS)]
    return o
def issue_A(ng=2): return issue_H(0, ng) + issue_H(1, ng)
def gend(b, vm=None, loop=None, lg=False, tail=None, cmp=None):
    if lg or OPT['prof']: b('s_waitcnt lgkmcnt(0)')
    pstamp(b, sPB)
    if vm is not None: b('s_waitcnt vmcnt(%d)' % vm)
    if OPT['prof']:
        b('s_waitcnt lgkmcnt(0)')
        pwrite(b, [sPC, sPA, sPB]); pstamp(b, sPC)
    if tail: emit(b, tail)
    if loop and not cmp:
        b('s_sub_u32 s%d, s%d, 1' % (sCNT, sCNT))
        b('s_cmp_lg_u32 s%d, 0' % sCNT)
    if cmp: b(cmp)
    b('s_barrier')
    if loop: b('s_cbranch_scc1 %s' % loop)
def pshift_unit(b, lab):
    if OPT['prof']:
        b('s_and_b32 s%d, s%d, 7' % (sT, sN))
        b('s_cmp_lg_u32 s%d, 7' % sT)
        b('s_cbranch_scc1 %s' % lab)
        pshift(b)
        b.raw(lab + ':')

def qbar(b, vm=None, loop=None, lg=False):
    if vm is not None: b('s_waitcnt vmcnt(%d)' % vm)
    if lg or OPT['prof']: b('s_waitcnt lgkmcnt(0)')
    pwrite(b, [sPC]); pstamp(b, sPC)
    if loop:
        b('s_sub_u32 s%d, s%d, 1' % (sCNT, sCNT))
        b('s_cmp_lg_u32 s%d, 0' % sCNT)
    b('s_barrier')
    if loop: b('s_cbranch_scc1 %s' % loop)
def lanes(b):
    b('v_lshrrev_b32 v1, 5, v0')
    b('v_bfe_u32 v3, v0, 2, 2')
    b('v_lshl_add_u32 v2, v1, 3, v3')
    b('v_lshlrev_b32 v2, 8, v2')
    b('v_bfe_u32 v8, v0, 4, 1')
    b('v_lshl_add_u32 v2, v8, 5, v2')
    b('v_and_b32 v8, 1, v0')
    b('v_lshl_add_u32 v2, v8, 4, v2')
    b('v_bfe_u32 v8, v0, 1, 1')
    b('v_lshl_add_u32 v2, v8, 3, v2')
SCALE = (128 ** -0.5) * math.log2(math.e)
SCB = struct.unpack('<I', struct.pack('<f', SCALE))[0]
OA, QF, SA, SB, F0, F1, NM, PP, aK, aT, aX, LS, TM, aOW, RL = 0, 64, 96, 112, 128, 160, 192, 208, 216, 224, 228, 232, 234, 236, 238
ld = P.block('L_ld', ['L_entry'])
if OPT['pld']: ld('s_setprio %d' % OPT['pld'])
emit(ld, issue_Q() + issue_Q() + issue_Q())
rest_srd(ld)
ld('v_xor_b32 v6, v5, v4')
ld('v_lshlrev_b32 v6, 4, v6')
ld('v_lshl_add_u32 v6, v4, 8, v6')
for e_ in range(4):
    ld('v_xor_b32 v%d, %d, v6' % (vK + e_, 64 * e_))
ld('s_lshl_b32 s%d, s%d, 5' % (sT2, sB))
ld('s_add_u32 s%d, s%d, s%d' % (sT, sH0, sT2))
ld('s_lshl_b32 s%d, s%d, 17' % (sKVO, sT))
ld('s_add_u32 s%d, s%d, s%d' % (sKVO, sKVO, sKROT))
ld('s_mov_b32 s%d, 0' % sAS)
lanes(ld)
for t in range(4):
    ld('v_xor_b32 v5, %d, v3' % t)
    ld('v_lshl_add_u32 v%d, v5, 6, v2' % (aT + t))
ld('s_lshl_b32 s%d, s%d, 10' % (sT, sT3))
ld('s_add_u32 s%d, s%d, %d' % (sT, sT, W0))
ld('v_lshlrev_b32 v7, 4, v0')
ld('v_add_u32 v%d, s%d, v7' % (aOW, sT))
ld('v_and_b32 v5, 0x13, v0')
ld('v_bfe_u32 v6, v0, 2, 1')
ld('v_lshl_or_b32 v5, v6, 3, v5')
ld('v_bfe_u32 v6, v0, 3, 1')
ld('v_lshl_or_b32 v5, v6, 2, v5')
ld('v_and_b32 v6, 15, v5')
ld('v_xor_b32 v6, v6, v1')
ld('v_lshlrev_b32 v6, 4, v6')
ld('v_lshl_add_u32 v6, v5, 8, v6')
for s_ in range(8):
    ld('v_xor_b32 v%d, %d, v6' % (aK + s_, 32 * s_))
ld('v_lshrrev_b32 v5, 3, v0')
ld('v_mul_u32_u24 v%d, 1280, v5' % aX)
ld('v_bfe_u32 v5, v0, 4, 1')
ld('v_lshlrev_b32 v5, 2, v5')
ld('v_and_b32 v6, 7, v0')
ld('v_xor_b32 v5, v5, v6')
ld('v_lshl_add_u32 v%d, v5, 4, v%d' % (aX, aX))
ld('s_lshl_b32 s%d, s%d, 7' % (sT2, sT3))
ld('s_mul_i32 s%d, s%d, %d' % (sWOB, sH0, 128 * 1280))
ld('s_add_u32 s%d, s%d, s%d' % (sWOB, sWOB, sT2))
ld('s_add_u32 s%d, s%d, 512' % (sWOB, sWOB))
FB0 = [96, 100, 104, 108, 128, 132, 136, 140]
def early(b):
    if not OPT['early']: return
    for j, r_ in enumerate(FB0):
        b('s_add_u32 s%d, s%d, %d' % (sT, sWOB, (2 * 128 + (j >> 1) * 16) * 1280 + 10240 * (j & 1)))
        b('buffer_load_dwordx4 %s, v%d, %s, s%d offen' % (vr(r_, 4), aX, srd(sWO), sT))
ld('s_mov_b32 s%d, 0x42000000' % sTHR)
ld('s_mov_b32 s%d, 0' % sSLOT)
ld('s_mov_b32 s%d, 17' % sCNT)
ld('s_mul_i32 s%d, s%d, %d' % (sKS, sH0, 128 * 1280))
ld('s_lshl_b32 s%d, s%d, 7' % (sT, sB))
ld('s_add_u32 s%d, s%d, s%d' % (sKS, sKS, sT))
if OPT['spf'] == 1:
    ld('s_mul_i32 s%d, s%d, %d' % (sT, sWAVE, 2048 * OPT['spn']))
    ld('s_add_u32 s%d, s%d, s%d' % (sKS, sKS, sT))
if OPT['kpf']:
    ld('s_cmp_lt_u32 s%d, 2' % sWAVE)
    ld('s_cselect_b64 s[48:49], s[%d:%d], s[%d:%d]' % (sK, sK + 1, sV, sV + 1))
    ld('s_mov_b64 s[50:51], s[%d:%d]' % (sK + 2, sK + 3))
    ld('v_lshlrev_b32 v9, 7, v0')
    ld('s_and_b32 s%d, s%d, 1' % (sT, sWAVE))
    ld('s_lshl_b32 s%d, s%d, 13' % (sT, sT))
    ld('s_sub_u32 s%d, s%d, s%d' % (sPK, sKVO, sKROT))
    ld('s_add_u32 s%d, s%d, s%d' % (sPK, sPK, sT))
    ld('s_add_u32 s%d, s%d, %d' % (sN, sKROT, OPT['kc0'] * 16384))
    ld('s_sub_u32 s%d, %d, s%d' % (sU, OPT['kn'], sWAVE))
def spf(n, by):
    return ['s_buffer_load_dword s50, %s, s%d offset:%d' % (srd(sWO), sKS, 2048 * i) for i in range(n)] + ['s_add_u32 s%d, s%d, %d' % (sKS, sKS, by)]
if OPT['prof']:
    ld('s_waitcnt lgkmcnt(0)')
    for i, r_ in enumerate((sPA, sPB)): ld('v_writelane_b32 v250, s%d, %d' % (r_, 56 + i))
ld('s_waitcnt vmcnt(18)')
pstamp(ld, sPC)
ld('s_barrier')
lq = P.block('L_ld_q', ['L_ld', 'L_ld_q'])
emit(lq, issue_Q())
if OPT['kpf']:
    lq('s_cmp_lg_u32 s%d, s%d' % (sCNT, sU))
    lq('s_cbranch_scc1 L_nkpf')
    lq('s_and_b32 s%d, s%d, 0x1c000' % (sT, sN))
    lq('s_add_u32 s%d, s%d, s%d' % (sT, sT, sPK))
    lq('buffer_load_dword v255, v9, s[48:51], s%d offen%s' % (sT, ' nt' if OPT['kpf'] == 2 else ''))
    lq('s_add_u32 s%d, s%d, 16384' % (sN, sN))
    lq('s_sub_u32 s%d, s%d, 4' % (sU, sU))
    lq.raw('L_nkpf:')
if OPT['spf'] == 1: emit(lq, spf(OPT['spn'], 8192 * OPT['spn']))
qbar(lq, vm=18, loop='L_ld_q')
l7 = P.block('L_ld_7', ['L_ld_q'])
l7('s_mov_b32 s%d, 0' % sU)
l7('s_cmp_lg_u32 s%d, 3' % sWAVE)
l7('s_cbranch_scc1 L_att')
l7 = P.block('L_ld_8', ['L_ld_7'])
emit(l7, issue_A(4))
qbar(l7, vm=41)
emit(l7, issue_H(0, 4))
qbar(l7, vm=48)
emit(l7, issue_H(1, 4))
if OPT['kv2']: emit(l7, issue_H(0, 4))
qbar(l7)
l7('s_mov_b32 s%d, %d' % (sN, OPT['kv2']))
if OPT['kv2']: emit(l7, issue_H(1, 4))
qbar(l7, vm=63 if OPT['kv2'] else 32)
if OPT['kv2']:
    pstamp(l7, sPA)
    gend(l7, vm=32)
def bump(reg, at, by):
    return ['s_and_b32 s%d, s%d, 7' % (sT, sN),
            's_cmp_eq_u32 s%d, %d' % (sT, at),
            's_cselect_b32 s%d, %d, 0' % (sT, by),
            's_add_u32 s%d, s%d, s%d' % (reg, reg, sT)]
lm = P.block('L_ld_m', ['L_ld_8', 'L_ld_m'])
emit(lm, bump(sKVO, 6, 0x20000) + issue_A(4))
if OPT['spf'] == 2:
    lm('s_cmp_ge_u32 s%d, 20' % sN)
    lm('s_cbranch_scc1 L_nspf')
    emit(lm, spf(16, 32768))
    lm.raw('L_nspf:')
pstamp(lm, sPA)
gend(lm, vm=32, loop='L_ld_m', tail=[lambda b: pshift_unit(b, 'L_ps1'), 's_add_u32 s%d, s%d, 1' % (sN, sN)], cmp='s_cmp_lg_u32 s%d, 30' % sN)
lw = P.block('L_ld_w', ['L_ld_m'])
if OPT['stag']:
    lw('v_lshrrev_b32 v1, 1, v0')
    lw('v_mul_u32_u24 v1, 1280, v1')
    lw('v_and_b32 v2, 1, v0')
    lw('v_lshl_add_u32 v1, v2, 7, v1')
    lw('s_mul_i32 s%d, s%d, %d' % (sT, sH0, 128 * 1280))
    lw('s_mul_i32 s%d, s%d, 40960' % (sT2, sB))
    lw('s_add_u32 s%d, s%d, s%d' % (sT, sT, sT2))
    for i in range(3): lw('buffer_load_dword v255, v1, %s, s%d offen offset:%d' % (srd(sWO), sT, 512 + 256 * i))
pstamp(lw, sPA)
gend(lw, vm=3 if OPT['stag'] else 0, lg=True)
pstamp(lw, sPA)
gend(lw, tail=[pshift])
early(lw)
if OPT['prof']:
    lw('s_waitcnt lgkmcnt(0)')
    pwrite(lw, [sPC]); pstamp(lw, sPC)
lw('s_barrier')
lw('s_branch L_tb')

QP = [QF + 8, QF + 24, QF, QF + 16]
def qf(ks): return QP[ks >> 1] + 4 * (ks & 1)
a = P.block('L_att', ['L_ld_7'])
qbar(a, vm=9)
qbar(a, vm=0)
qbar(a)
if OPT['patt'] != OPT['pld']: a('s_setprio %d' % OPT['patt'])
qbar(a, lg=True)
def ring_slot(step, lo, hi):
    return ['s_add_u32 s%d, s%d, %d' % (sT, sSLOT, step),
            's_cmp_eq_u32 s%d, %d' % (sT, hi),
            's_cselect_b32 s%d, %d, s%d' % (sT, lo, sT),
            's_sub_u32 s%d, s%d, s%d' % (sDELTA, sT, sSLOT),
            's_mov_b32 s%d, s%d' % (sSLOT, sT)]
def kv_slot(): return ring_slot(SLOT, 0, 3 * SLOT)
def adv(base, n, s=None):
    return ['v_add_u32 v%d, s%d, v%d' % (base + i, sDELTA if s is None else s, base + i) for i in range(n)]
def endstep(b, loop=None):
    b('s_waitcnt lgkmcnt(0)')
    pwrite(b, [sPC]); pstamp(b, sPC)
    if loop:
        b('s_sub_u32 s%d, s%d, 1' % (sCNT, sCNT))
        b('s_cmp_lg_u32 s%d, 0' % sCNT)
    b('s_barrier')
    if loop: b('s_cbranch_scc1 %s' % loop)

def k_read(F, s, tile): return 'ds_read_b128 %s, v%d offset:%d' % (vr(F + 4 * s, 4), aK + s, tile * 8192)
def v_read(F, i, tile):
    sp, t = i >> 2, i & 3
    return ['ds_read_b64_tr_b16 %s, v%d offset:%d' % (vr(F + 4 * i + 2 * jj, 2), aT + t, 16384 + tile * 8192 + sp * 4096 + jj * 1024) for jj in range(2)]
def s_mf(F, s, X, c): return '%s %s, %s, %s, %s' % (MF, vr(X, 16), vr(F + 4 * s, 4), vr(qf(s), 4), c)
def pv_mf(F, i, first=False):
    sp, t = i >> 2, i & 3
    c = '0' if (first and sp == 0) else vr(OA + 16 * t, 16)
    return '%s %s, %s, %s, %s' % (MF, vr(OA + 16 * t, 16), vr(F + 4 * i, 4), vr(PP + 4 * sp, 4), c)
def softmax_ops(X, adds=False):
    ops = []
    for i in range(8):
        ops.append('v_exp_f32 v%d, v%d' % (X + 2 * i, X + 2 * i))
        ops.append('v_exp_f32 v%d, v%d' % (X + 2 * i + 1, X + 2 * i + 1))
        if i >= 1:
            ops.append('v_cvt_pk_bf16_f32 v%d, v%d, v%d' % (PP + i - 1, X + 2 * i - 2, X + 2 * i - 1))
            if adds: ops += add_ops(X)[2 * i - 2:2 * i]
    ops.append('v_cvt_pk_bf16_f32 v%d, v%d, v%d' % (PP + 7, X + 14, X + 15))
    if adds: ops += add_ops(X)[14:16]
    return ops
def add_ops(X):
    return ['v_add_f32 v%d, v%d, v%d' % (LS + (i & 1), LS + (i & 1), X + i) for i in range(16)]
def max_ops(X):
    ops = ['v_max3_f32 v%d, v%d, v%d, v%d' % (TM, X, X + 1, X + 2)]
    for i in range(6):
        ops.append('v_max3_f32 v%d, v%d, v%d, v%d' % (TM, TM, X + 3 + 2 * i, X + 4 + 2 * i))
    ops.append('v_max_f32 v%d, v%d, v%d' % (TM, TM, X + 15))
    return ops
CMP = 'v_cmp_lt_f32 vcc, s%d, v%d' % (sTHR, TM)
slow = []
def check(b, X, name):
    b('s_cbranch_vccnz L_slow_%s' % name)
    slow.append((name, X, b.name))
    return P.block('L_back_%s' % name, [b.name, 'L_slow_%s' % name], pend=b.pend)

def pack(src, dst, mul, pk=False):
    o = []
    for h in range(2):
        if pk: o += ['v_pk_mul_f32 %s, %s, %s' % (vr(src + 8 * h + 2 * i, 2), vr(src + 8 * h + 2 * i, 2), pk) for i in range(4)]
        else: o += ['v_mul_f32 v%d, %s, v%d' % (src + 8 * h + i, mul, src + 8 * h + i) for i in range(8)]
        o += ['v_cvt_pk_bf16_f32 v%d, v%d, v%d' % (dst + 4 * h + i, src + 8 * h + 2 * i, src + 8 * h + 2 * i + 1) for i in range(4)]
    return o
def phase_pv0(b, Fa, Fb, first=False, ak=False, cnt=None):
    b.waitfor(rng(Fb, 32))
    vr1 = sum((v_read(Fa, i, 1) for i in range(8)), [])
    ad = add_ops(SA); mx = max_ops(SB)
    fill = zipf(split(vr1, [4, 4, 4, 4, 0, 0, 0, 0]), split(ad, [2, 2, 1, 1, 2, 3, 1, 4]), split(mx, [0, 0, 1, 1, 3, 3, 0, 0]))
    fill[6] = [CMP] + fill[6]
    if ak:
        fill[4] = fill[4] + kv_slot(); fill[5] = fill[5] + adv(aK, 8)
    fill[6] = fill[6] + adv(aT, 4)
    if cnt: fill[7] = fill[7] + [cnt]
    weave(b, [pv_mf(Fb, i, first) for i in range(8)], fill)
def first_max(b, extra=()):
    ex = list(extra)
    mx = max_ops(SA) + ['v_mov_b32 v%d, v%d' % (TM + 1, TM), 'v_permlane32_swap_b32 v%d, v%d' % (TM, TM + 1),
                        'v_max_f32 v%d, v%d, v%d' % (TM, TM, TM + 1)]
    n = min(len(ex), len(mx))
    for i, o in enumerate(mx):
        b(o)
        if i < n: b(ex[i])
    ex = ex[n:]
    for i in range(16):
        b('v_mul_f32 v%d, -1.0, v%d' % (NM + i, TM))
    subs = ['v_sub_f32 v%d, v%d, v%d' % (SA + i, SA + i, TM) for i in range(16)]
    for o in subs[:4]: b(o)
    sm = softmax_ops(SA)
    fill = zipf([subs[4 + 2 * n:6 + 2 * n] + sm[3 * n:3 * n + 3] for n in range(8)], spread(ex, 7) + [[]])
    b.waitfor(rng(F0, 32))
    weave(b, [s_mf(F0, s, SB, vr(NM, 16) if s == 0 else vr(SB, 16)) for s in range(8)], fill)

a0 = P.block('L_att_a0', ['L_att'])
for s in range(8):
    a0('ds_read_b128 %s, v%d offset:%d' % (vr(qf(s), 4), aOW, s * 3072))
    a0(k_read(F0, s, 0))
a0('v_mov_b32 v%d, 0' % LS)
a0('v_mov_b32 v%d, 0' % (LS + 1))
vr0 = sum((v_read(F1, i, 0) for i in range(8)), [])
fill = [[k_read(F0, n, 1)] + vr0[2 * n:2 * n + 2] for n in range(8)]
weave(a0, [s_mf(F0, s, SA, '0' if s == 0 else vr(SA, 16)) for s in range(8)], fill)
first_max(a0)
phase_pv0(a0, F0, F1, first=True, ak=True, cnt='s_mov_b32 s%d, 4' % sCNT)
a0b = check(a0, SB, 'a0')
endstep(a0b)

def a_step(b, Fa, Fb, nm):
    for s in range(8): b(k_read(Fa, s, 0))
    sm = softmax_ops(SB, adds=True)
    HEAD = 12
    for o in sm[:HEAD]: b(o)
    fill = spread(sm[HEAD:], 8)
    fill[3] = fill[3] + [W(rng(Fa + 16, 16))]
    b.waitfor(rng(Fa, 16))
    weave(b, [s_mf(Fa, s, SA, vr(NM, 16) if s == 0 else vr(SA, 16)) for s in range(8)], fill)
    kr = [k_read(Fa, s, 1) for s in range(8)]
    fill = zipf(split(kr, [2, 2, 2, 2, 0, 0, 0, 0]), [v_read(Fb, i, 0) for i in range(8)],
                split(max_ops(SA), [0, 2, 2, 2, 2, 0, 0, 0]))
    ts = kv_slot(); ak = adv(aK, 8)
    fill[0] = fill[0] + ts[:3]; fill[4] = fill[4] + ts[3:]; fill[5] = fill[5] + [CMP] + ak[:2]
    fill[6] = fill[6] + ak[2:6]; fill[7] = fill[7] + ak[6:]
    weave(b, [pv_mf(Fb, i) for i in range(8)], fill)
    b = check(b, SA, nm + '1')
    b.waitfor(rng(Fa, 32))
    weave(b, [s_mf(Fa, s, SB, vr(NM, 16) if s == 0 else vr(SB, 16)) for s in range(8)], spread(softmax_ops(SA), 8))
    phase_pv0(b, Fa, Fb)
    return check(b, SB, nm + '2')
ao = P.block('L_att_ao', ['L_back_a0', 'L_back_ae2', 'L_back_ab'])
ao2 = a_step(ao, F1, F0, 'ao')
ao2('s_waitcnt lgkmcnt(0)')
pwrite(ao2, [sPC]); pstamp(ao2, sPC)
ao2('s_sub_u32 s%d, s%d, 1' % (sCNT, sCNT))
ao2('s_cmp_eq_u32 s%d, 0' % sCNT)
ao2('s_barrier')
ao2('s_cbranch_scc1 L_att_drain')
ae = P.block('L_att_ae', ['L_back_ao2'])
ae2 = a_step(ae, F0, F1, 'ae')
endstep(ae2)
ae2('s_branch L_att_ao')

def lsum(b):
    b('v_add_f32 v%d, v%d, v%d' % (RL, LS, LS + 1))
    b('v_mov_b32 v%d, v%d' % (RL + 1, RL))
    b('v_permlane32_swap_b32 v%d, v%d' % (RL, RL + 1))
    b('v_add_f32 v%d, v%d, v%d' % (RL, RL, RL + 1))
    b('v_rcp_f32 v%d, v%d' % (RL, RL))
    b('v_mov_b32 v%d, v%d' % (RL + 1, RL))
def onorm():
    o = []
    for t in range(4):
        pk = pack(OA + 16 * t, OA + 16 * t, 'v%d' % RL, vr(RL, 2) if OPT['pko'] else False)
        n = len(pk) // 2
        o += pk[:n] + ['ds_write_b128 v%d, %s offset:%d' % (aOW, vr(OA + 16 * t, 4), (2 * t) * 3072)]
        o += pk[n:] + ['ds_write_b128 v%d, %s offset:%d' % (aOW, vr(OA + 16 * t + 4, 4), (2 * t + 1) * 3072)]
    return o
def last_pv(b):
    sm = softmax_ops(SB)
    for o in sm[:14]: b(o)
    fill = zipf(split(sm[14:], [3, 3, 3, 1, 0, 0, 0, 0]), split(add_ops(SB), [0, 0, 0, 2, 3, 3, 4, 4]))
    weave(b, [pv_mf(F1, i) for i in range(8)], fill)
    lsum(b)
d = P.block('L_att_drain', ['L_back_ao2'])
pshift(d)
d('s_add_u32 s%d, s%d, 1' % (sU, sU))
d('s_cmp_eq_u32 s%d, 4' % sU)
d('s_cbranch_scc1 L_att_fin')
ab = P.block('L_att_ab', ['L_att_drain'])
ab('v_xor_b32 v%d, 0x%x, v%d' % (aOW, W0 ^ BUF, aOW))
for s in range(8):
    ab('ds_read_b128 %s, v%d offset:%d' % (vr(qf(s), 4), aOW, s * 3072))
for s in range(7): ab(k_read(F0, s, 0))
sm = softmax_ops(SB)
for o in sm[:14]: ab(o)
fill = zipf(split(sm[14:], [3, 3, 3, 1, 0, 0, 0, 0]), split(add_ops(SB), [0, 0, 0, 2, 3, 3, 4, 4]))
fill[0] = [k_read(F0, 7, 0)] + fill[0]
weave(ab, [pv_mf(F1, i) for i in range(8)], fill)
lsum(ab)
ab('v_mov_b32 v%d, 0' % LS)
ab('v_mov_b32 v%d, 0' % (LS + 1))
on = onorm()
NS0 = len(on) // 2
pieces = [[]] + spread(on[:NS0], 7) if not OPT['pko'] else split(on[:NS0], [2, 4, 5, 5, 5, 5, 5, 5])
fill = [[k_read(F0, n, 1)] + vr0[2 * n:2 * n + 2] + pieces[n] for n in range(8)]
weave(ab, [s_mf(F0, s, SA, '0' if s == 0 else vr(SA, 16)) for s in range(8)], fill)
first_max(ab, on[NS0:])
phase_pv0(ab, F0, F1, first=True, ak=True, cnt='s_mov_b32 s%d, 4' % sCNT)
abb = check(ab, SB, 'ab')
endstep(abb)
abb('s_branch L_att_ao')

fi = P.block('L_att_fin', ['L_att_drain'])
if OPT['pf']: fi('s_setprio %d' % OPT['pf'])
fi('v_subrev_u32 v%d, %d, v%d' % (aOW, BUF - OB[3], aOW))
early(fi)
last_pv(fi)
for o in onorm(): fi(o)
fi('s_waitcnt lgkmcnt(0)')
pwrite(fi, [sPC]); pstamp(fi, sPC)
fi('s_barrier')
fi('s_branch L_tb')

QT = [0, 48, 144, 96]
WF, XF, qW, qX, aQW, aPF = [192, 220], [208, 236], 248, [249, 251], 248, 249
q = P.block('L_qp', ['L_entry'])
if OPT['pq']: q('s_setprio %d' % OPT['pq'])
rest_srd(q)
lanes(q)
q('v_xor_b32 v5, s%d, v3' % sT3)
q('v_lshl_add_u32 v%d, v5, 6, v2' % qW)
q('v_and_b32 v5, 31, v0')
q('v_xor_b32 v6, v3, v1')
q('v_lshlrev_b32 v6, 4, v6')
q('v_lshl_add_u32 v6, v5, 6, v6')
q('v_add_u32 v%d, %d, v6' % (qX[0], XS0))
q('v_xor_b32 v%d, 32, v%d' % (qX[1], qX[0]))
q('s_mov_b32 s%d, 0x%08x' % (sSC, SCB))
q('v_lshlrev_b32 v252, 11, v0')
q('s_mul_i32 s%d, s%d, %d' % (sKS, sH0, 128 * 1280))
q('s_lshl_b32 s%d, s%d, 7' % (sT, sB))
q('s_add_u32 s%d, s%d, s%d' % (sKS, sKS, sT))
q('s_lshl_b32 s%d, s%d, 15' % (sT, sT3))
q('s_add_u32 s%d, s%d, s%d' % (sKS, sKS, sT))
q('s_cmp_lg_u32 s%d, 4' % sWAVE)
q('s_cbranch_scc1 L_qp1')
qz = P.block('L_qpz', ['L_qp'])
qz('s_lshl_b32 s%d, s%d, 9' % (sT, sGRP))
qz('s_lshl_b32 s%d, s%d, 2' % (sT2, sME))
qz('s_add_u32 s%d, s%d, s%d' % (sT2, sT2, sT))
qz('s_add_u32 s%d, s%d, %d' % (sT2, sT2, FLAGS))
qz('v_lshlrev_b32 v192, 5, v0')
qz('v_mov_b32 v193, 0')
qz('s_mov_b64 exec, 0xffff')
qz('buffer_store_dword v193, v192, %s, s%d offen sc1' % (srd(sWS), sT2))
qz('s_mov_b64 exec, -1')
q = P.block('L_qp1', ['L_qp', 'L_qpz'])
for r_ in list(range(192)) + list(range(220, 248)): q('v_mov_b32 v%d, 0' % r_)
q('s_mov_b32 s%d, 5' % sCNT)
def pf_all(b):
    b('s_mov_b64 exec, 0xffff')
    for i in range(5):
        b('buffer_load_dword v255, v252, %s, s%d offen' % (srd(sWO), sKS))
        b('s_add_u32 s%d, s%d, 131072' % (sKS, sKS))
    b('s_mov_b64 exec, -1')
if OPT['wpfq'] == -1: pf_all(q)
pstamp(q, sPC)
q('s_barrier')
if OPT['wpfq'] == -2: pf_all(q)
def q_reads(st, ks):
    w = [['ds_read_b64_tr_b16 %s, v%d offset:%d' % (vr(WF[ks] + 4 * h + 2 * jj, 2), qW, (st & 1) * SLOT + h * 8192 + ks * 4096 + jj * 1024) for jj in range(2)] for h in range(4)]
    x = ['ds_read_b128 %s, v%d offset:%d' % (vr(XF[ks] + 4 * qt, 4), qX[ks], st * XST + qt * 2048) for qt in range(3)]
    return w[0] + x + w[1] + w[2] + w[3]
def q_mfs(ks):
    return ['%s %s, %s, %s, %s' % (MF, vr(QT[h] + 16 * qt, 16), vr(WF[ks] + 4 * h, 4), vr(XF[ks] + 4 * qt, 4), vr(QT[h] + 16 * qt, 16)) for h in range(4) for qt in range(3)]
qm = P.block('L_qp_m', ['L_qp1', 'L_qp_m'])
for st in range(4):
    weave(qm, q_mfs(1), split(q_reads(st, 0), [2, 2, 2, 2, 2, 1, 0, 0, 0, 0, 0, 0]))
    fill = split(q_reads(st, 1), [2, 2, 2, 2, 2, 1, 0, 0, 0, 0, 0, 0])
    if st & 1: fill[7] = ['v_xor_b32 v%d, 0x10000, v%d' % (qW, qW)]
    if st + 1 == OPT['wpfq']:
        fill[8] = ['s_mov_b64 exec, 0xffff', 'buffer_load_dword v255, v252, %s, s%d offen' % (srd(sWO), sKS), 's_mov_b64 exec, -1', 's_add_u32 s%d, s%d, 131072' % (sKS, sKS)]
    weave(qm, q_mfs(0), fill)
    qbar(qm, lg=True, loop='L_qp_m' if st == 3 else None)
def q_out(h, dst=None):
    o = []
    for qt in range(3):
        src = QT[h] + 16 * qt
        d_ = src if dst is None else dst + 8 * qt
        pk = pack(src, d_, 's%d' % sSC)
        if dst is None:
            o += pk[:12] + ['ds_write_b128 v%d, %s offset:%d' % (aQW, vr(d_, 4), qt * 1024)]
            o += pk[12:] + ['ds_write_b128 v%d, %s offset:%d' % (aQW, vr(d_ + 4, 4), qt * 1024 + 3072)]
        else: o += pk
    return o
qe = P.block('L_qp_e', ['L_qp_m'])
ad = ['v_mbcnt_lo_u32_b32 v%d, -1, 0' % aPF, 'v_mbcnt_hi_u32_b32 v%d, -1, v%d' % (aPF, aPF),
      's_mul_i32 s%d, s%d, 6144' % (sT, sT3), 's_add_u32 s%d, s%d, %d' % (sT, sT, W0),
      'v_lshlrev_b32 v%d, 4, v%d' % (aQW, aPF), 'v_add_u32 v%d, s%d, v%d' % (aQW, sT, aQW)]
weave(qe, q_mfs(1), [ad[:3], ad[3:], [], []] + spread(q_out(0), 8))
qbar(qe, lg=True)
ACC, AC3, BFR, AFR = 0, 96, [144, 156], [168, 176]
tA, tA1, tO, tOB, tW2, tW1, tONE, tZERO, tSL = 184, 186, 187, 188, 189, 190, 191, 192, 193
FIFO_A = [194 + 4 * i for i in range(13)]
FIFO_B = FB0 + [112, 116, 120, 124] + [194 + 4 * i for i in range(14)]
sPUB, sFLG, sW3 = sXO, sKC, sKS
UO = {1: [0, 1, 2, 3], 2: [2, 1, 0, 3], 3: [2, 1, 0, 3]}
def obase(p, u): return BUF if (p == 1 and u == 0) else OB[u]
class VM:
    def __init__(self): self.q = []
    def add(self, tag): self.q.append(tag)
    def wait(self, tags):
        last = max([i for i, t in enumerate(self.q) if t in tags], default=-1)
        if last < 0: return []
        n = len(self.q) - 1 - last
        self.q = self.q[last + 1:]
        return ['s_waitcnt vmcnt(%d)' % n]
def tail_setup(b, isA):
    b('v_mbcnt_lo_u32_b32 v%d, -1, 0' % tOB)
    b('v_mbcnt_hi_u32_b32 v%d, -1, v%d' % (tOB, tOB))
    L = tOB; x, y = tONE, tZERO
    b('v_lshrrev_b32 v%d, 3, v%d' % (x, L))
    b('v_mul_u32_u24 v%d, 1280, v%d' % (tW2, x))
    b('v_bfe_u32 v%d, v%d, 4, 1' % (x, L))
    b('v_lshlrev_b32 v%d, 2, v%d' % (x, x))
    b('v_and_b32 v%d, 7, v%d' % (y, L))
    b('v_xor_b32 v%d, v%d, v%d' % (x, x, y))
    b('v_lshl_add_u32 v%d, v%d, 4, v%d' % (tW2, x, tW2))
    b('s_lshl_b32 s%d, s%d, 7' % (sT2, sT3))
    if not isA: b('s_add_u32 s%d, s%d, 512' % (sT2, sT2))
    b('s_mul_i32 s%d, s%d, %d' % (sW3, sH0, 128 * 1280))
    b('s_add_u32 s%d, s%d, s%d' % (sWOB, sW3, sT2))
def tail_setup2(b, isA):
    L = tOB; x, y = tONE, tZERO
    if isA:
        b('s_lshl_b32 s%d, s%d, 12' % (sRB, sT3))
        b('s_add_u32 s%d, s%d, %d' % (sRB, sRB, ASL))
        b('s_lshl_b32 s%d, s%d, 6' % (sT2, sT3))
        b('s_add_u32 s%d, s%d, s%d' % (sW3, sW3, sT2))
        b('s_add_u32 s%d, s%d, 1024' % (sW3, sW3))
    else:
        b('s_lshl_b32 s%d, s%d, 3' % (sT, sT3))
        b('s_lshr_b32 s%d, 0x%08x, s%d' % (sRB, sum((BSL[i] >> 12) << (8 * i) for i in range(4)), sT))
        b('s_and_b32 s%d, s%d, 0xff' % (sRB, sRB))
        b('s_lshl_b32 s%d, s%d, 12' % (sRB, sRB))
    b('v_bfe_u32 v%d, v%d, 4, 1' % (x, L))
    b('v_lshlrev_b32 v%d, 5, v%d' % (tA1, x))
    b('v_and_b32 v%d, 1, v%d' % (x, L))
    b('v_lshl_add_u32 v%d, v%d, 4, v%d' % (tA1, x, tA1))
    b('v_bfe_u32 v%d, v%d, 1, 1' % (x, L))
    b('v_lshl_add_u32 v%d, v%d, 3, v%d' % (tA1, x, tA1))
    b('v_add_u32 v%d, s%d, v%d' % (tA1, sRB, tA1))
    b('v_lshrrev_b32 v%d, 5, v%d' % (x, L))
    b('v_bfe_u32 v%d, v%d, 2, 2' % (y, L))
    b('v_lshl_add_u32 v%d, v%d, 3, v%d' % (x, x, y))
    b('v_lshl_add_u32 v%d, v%d, 7, v%d' % (tA, x, tA1))
    b('v_lshl_add_u32 v%d, v%d, 6, v%d' % (tA1, x, tA1))
    b('v_bfe_u32 v%d, v%d, 3, 1' % (y, L))
    b('v_lshl_add_u32 v%d, v%d, 6, v%d' % (tA, y, tA))
    b('v_xor_b32 v%d, 64, v%d' % (tA + 1, tA))
    if isA:
        b('v_lshrrev_b32 v%d, 2, v%d' % (x, L))
        b('v_mul_u32_u24 v%d, 1280, v%d' % (tW1, x))
        b('v_and_b32 v%d, 3, v%d' % (x, L))
        b('v_lshl_add_u32 v%d, v%d, 4, v%d' % (tW1, x, tW1))
    b('v_lshlrev_b32 v%d, 4, v%d' % (tOB, L))
    b('v_add_u32 v%d, s%d, v%d' % (tSL, sRB, tOB))
    b('v_mov_b32 v%d, 1' % tONE)
    b('v_mov_b32 v%d, 0' % tZERO)
    b('s_lshl_b32 s%d, s%d, 3' % (sT, sGRP))
    b('s_add_u32 s%d, s%d, s%d' % (sT, sT, sME))
    b('s_mul_i32 s%d, s%d, 122880' % (sPUB, sT))
    b('s_mul_i32 s%d, s%d, 12288' % (sT, sT3))
    b('s_add_u32 s%d, s%d, s%d' % (sPUB, sPUB, sT))
    if not isA: b('s_add_u32 s%d, s%d, %d' % (sPUB, sPUB, 8 * 6144))
    b('s_lshl_b32 s%d, s%d, 9' % (sFLG, sGRP))
    b('s_lshl_b32 s%d, s%d, 7' % (sT, sT3))
    b('s_add_u32 s%d, s%d, s%d' % (sFLG, sFLG, sT))
    b('s_lshl_b32 s%d, s%d, 2' % (sT, sME))
    b('s_add_u32 s%d, s%d, s%d' % (sFLG, sFLG, sT))
    b('s_add_u32 s%d, s%d, %d' % (sFLG, sFLG, FLAGS + (0 if isA else 32)))
def wrow(p, k): return (UO[p][k >> 3] * 128 + (k & 7) * 16) * 1280
def ncol(p): return 1 if p == 3 else 2
class Stream:
    def __init__(self, seq, fifo):
        self.seq = seq; self.fifo = fifo; self.vm = VM(); self.nl = 0; self.ob = None
        self.items = []; self.first = []
        for (p, k) in seq:
            self.first.append(len(self.items))
            if not self.direct(p, k): self.items += [(p, k, h) for h in range(ncol(p))]
        self.first.append(len(self.items))
    def direct(self, p, k): return p == 3 and k >= 24
    def load(self):
        if self.nl >= len(self.items): return []
        p, k, h = self.items[self.nl]; r_ = self.fifo[self.nl % len(self.fifo)]
        def ld(b, j=self.nl): self.vm.add(j)
        self.nl += 1
        return ['s_add_u32 s%d, s%d, %d' % (sT, sW3 if p == 3 else sWOB, wrow(p, k) + 10240 * h),
                'buffer_load_dwordx4 %s, v%d, %s, s%d offen' % (vr(r_, 4), tW1 if p == 3 else tW2, srd(sWO), sT), ld]
    def writes(self, i):
        if i >= len(self.seq): return [], []
        js = list(range(self.first[i], self.first[i + 1]))
        if not js: return [], []
        w = [lambda b: emit(b, self.vm.wait(set(js)))]
        w += ['ds_write_b128 v%d, %s offset:%d' % (tSL, vr(self.fifo[j % len(self.fifo)], 4), (i & 1) * 2048 + (j - js[0]) * 1024) for j in js]
        return w, js
    def reads(self, i):
        if i >= len(self.seq): return []
        p, k = self.seq[i]; n = ncol(p); o = []
        ob = obase(p, UO[p][k >> 3])
        if ob != self.ob: o.append('v_add_u32 v%d, %d, v%d' % (tO, ob, tOB)); self.ob = ob
        off = (i & 1) * 2048
        if self.direct(p, k):
            if k == 24:
                o += ['s_lshl_b32 s%d, s%d, 13' % (sT2, sT3), 's_sub_u32 s%d, s%d, s%d' % (sT2, sT2, sRB),
                      'v_add_u32 v%d, s%d, v%d' % (tA1, sT2, tA1), lambda b: emit(b, self.vm.wait({'d'}))]
            off = (k - 24) * 1024
        a_ = []
        for t in range(n):
            for jj in range(2):
                a_.append('ds_read_b64_tr_b16 %s, v%d offset:%d' % (vr(AFR[i & 1] + 4 * t + 2 * jj, 2), tA + t if n == 2 else tA1, off + jj * 256 * n))
        b_ = ['ds_read_b128 %s, v%d offset:%d' % (vr(BFR[i & 1] + 4 * qt, 4), tO, (k & 7) * 3072 + qt * 1024) for qt in range(3)]
        return o + a_[:2] + b_ + a_[2:]
    def kstep(self, b, i, top=None, extra=()):
        p, k = self.seq[i]; n = ncol(p); mf = []
        for t in range(n):
            for qt in range(3):
                acc = vr((AC3 if p == 3 else ACC) + 16 * (qt * n + t), 16)
                mf.append('%s %s, %s, %s, %s' % (MF, acc, vr(AFR[i & 1] + 4 * t, 4), vr(BFR[i & 1] + 4 * qt, 4), acc if k else '0'))
        b.waitfor(rng(AFR[i & 1], 4 * n) | rng(BFR[i & 1], 12))
        if top: top(b)
        rd = self.reads(i + 1)
        wr, js = self.writes(i + 2)
        ld = sum((self.load() for _ in js), [])
        if OPT['fine'] and p == 2 and k >= 1:
            if k & 1:
                b('s_memtime s[46:47]')
                wr = ['s_memtime s[48:49]'] + wr[:1] + ['s_memtime s[50:51]'] + wr[1:]
            else:
                b('s_waitcnt lgkmcnt(0)')
                for n_, r_ in enumerate((46, 48, 50)): b('v_writelane_b32 v250, s%d, %d' % (r_, 16 + 3 * (k // 2 - 1) + n_))
        fill = [[] for _ in mf]
        if n == 2:
            fill[0] += rd[:3]; fill[1] += rd[3:6]; fill[2] += rd[6:]
            fill[3] += wr; fill[4] += ld + list(extra)
        else:
            fill[0] += rd[:5]; fill[1] += rd[5:] + wr; fill[2] += ld + list(extra)
        weave(b, mf, fill)
    def slow(self, b, i, extra=()):
        p, k = self.seq[i]
        emit(b, self.reads(i))
        mf = []
        for t in range(2):
            for qt in range(3):
                acc = vr(ACC + 16 * (qt * 2 + t), 16)
                mf.append('%s %s, %s, %s, %s' % (MF, acc, vr(AFR[i & 1] + 4 * t, 4), vr(BFR[i & 1] + 4 * qt, 4), acc if k else '0'))
        wr, js = self.writes(i + 1)
        ld = sum((self.load() for _ in js), [])
        weave(b, mf, [[], [], wr, ld, list(extra), []])
    def prime(self, b):
        for i in range(2):
            wr, js = self.writes(i)
            emit(b, wr + sum((self.load() for _ in js), []))
def publish(b, n, acc0):
    c = 0
    for t in range(n):
        for qt in range(3):
            base = acc0 + 16 * (qt * n + t)
            for i in range(8):
                b('v_cvt_pk_bf16_f32 v%d, v%d, v%d' % (base + i, base + 2 * i, base + 2 * i + 1))
            b('s_add_u32 s%d, s%d, %d' % (sT2, sPUB, (t * 6 + qt * 2) * 1024))
            for h in range(2):
                if OPT['thr'] and n == 2 and acc0 == ACC and b.name.startswith('L_a') and c >= OPT['thr']: b('s_waitcnt vmcnt(%d)' % (OPT['thr'] - 1))
                b('buffer_store_dwordx4 %s, v%d, %s, s%d offen offset:%d sc1' % (vr(base + 4 * h, 4), tOB, srd(sWS), sT2, h * 1024))
                c += 1
def flag(b):
    b('s_waitcnt vmcnt(0)')
    b('s_mov_b64 exec, 1')
    b('buffer_store_dword v%d, v%d, %s, s%d offen sc1' % (tONE, tZERO, srd(sWS), sFLG))
    b('s_mov_b64 exec, -1')

sOO, sSB, sFB = 36, 42, 45
NP = [2, 2, 1]
def red_addr(b, ps, rFO):
    b('v_lshrrev_b32 v%d, 2, v%d' % (rFO, tOB))
    b('v_and_b32 v%d, 0x7f, v%d' % (rFO, rFO))
    b('s_mul_i32 s%d, s%d, %d' % (sT1, sGRP, 8 * 122880))
    b('s_lshl_b32 s%d, s%d, 11' % (sT, sT3))
    b('s_add_u32 s%d, s%d, s%d' % (sT1, sT1, sT))
    b('s_mul_i32 s%d, s%d, 6144' % (sT, sME))
    b('s_add_u32 s%d, s%d, s%d' % (sSB, sT1, sT))
    b('s_lshr_b32 s%d, s%d, 1' % (sT2, sME))
    if 1 in ps:
        b('s_add_u32 s%d, s%d, %d' % (sSB + 1, sSB, 8 * 6144))
        b('s_mul_i32 s%d, s%d, 6144' % (sT, sT2))
        b('s_add_u32 s%d, s%d, s%d' % (sSB + 2, sT1, sT))
        b('s_and_b32 s%d, s%d, 1' % (sN, sME))
        b('s_lshl_b32 s%d, s%d, 10' % (sT, sN))
        b('s_add_u32 s%d, s%d, s%d' % (sSB + 2, sSB + 2, sT))
        b('s_add_u32 s%d, s%d, %d' % (sSB + 2, sSB + 2, 16 * 6144))
    b('s_lshl_b32 s%d, s%d, 9' % (sFB, sGRP))
    b('s_lshl_b32 s%d, s%d, 7' % (sT, sT2))
    b('s_add_u32 s%d, s%d, s%d' % (sFB, sFB, sT))
    b('s_add_u32 s%d, s%d, %d' % (sFB, sFB, FLAGS))
    b('s_mul_i32 s%d, s%d, %d' % (sT1, sB, 96 * 2560))
    b('s_mul_i32 s%d, s%d, 1280' % (sT, sBR))
    b('s_add_u32 s%d, s%d, s%d' % (sT1, sT1, sT))
    b('s_mul_i32 s%d, s%d, %d' % (sT, sT3, 32 * 2560))
    b('s_add_u32 s%d, s%d, s%d' % (sT1, sT1, sT))
    b('s_lshl_b32 s%d, s%d, 6' % (sT, sME))
    b('s_add_u32 s%d, s%d, s%d' % (sOO, sT1, sT))
    if 1 in ps:
        b('s_add_u32 s%d, s%d, 512' % (sOO + 1, sOO))
        b('s_lshl_b32 s%d, s%d, 6' % (sT, sT2))
        b('s_add_u32 s%d, s%d, s%d' % (sOO + 2, sT1, sT))
        b('s_lshl_b32 s%d, s%d, 5' % (sT, sN))
        b('s_add_u32 s%d, s%d, s%d' % (sOO + 2, sOO + 2, sT))
        b('s_add_u32 s%d, s%d, 1024' % (sOO + 2, sOO + 2))
    b('s_mov_b32 s%d, 0x40000' % sCNT)
def red_sel(b, RA, rOUT, t):
    b('v_lshrrev_b32 v%d, 4, v%d' % (t, tOB))
    b('v_and_b32 v%d, 31, v%d' % (t + 1, t))
    b('v_lshrrev_b32 v%d, 5, v%d' % (t + 2, t))
    b('v_mul_u32_u24 v%d, 2560, v%d' % (rOUT, t + 1))
    b('v_lshl_add_u32 v%d, v%d, 4, v%d' % (rOUT, t + 2, rOUT))
    b('v_bfe_u32 v%d, v%d, 2, 1' % (t + 3, t + 1))
    b('v_xor_b32 v%d, v%d, v%d' % (t + 3, t + 3, t + 2))
    b('v_lshrrev_b32 v%d, 4, v%d' % (t + 4, t + 1))
    b('v_or_b32 v%d, v%d, v%d' % (t + 3, t + 3, t + 4))
    b('v_lshlrev_b32 v%d, 3, v%d' % (t + 3, t + 3))
    b('v_bfe_u32 v%d, v%d, 3, 1' % (t + 4, t + 1))
    b('v_bfe_u32 v%d, v%d, 1, 1' % (t, t + 1))
    b('v_lshl_or_b32 v%d, v%d, 1, v%d' % (t + 4, t + 4, t))
    b('v_or_b32 v%d, v%d, v%d' % (t + 3, t + 3, t + 4))
    b('v_and_b32 v%d, 1, v%d' % (t + 4, t + 1))
    b('v_lshlrev_b32 v%d, 4, v%d' % (t + 4, t + 4))
    b('v_mov_b32 v%d, 0x3f80' % t)
    b('v_lshlrev_b32 v%d, v%d, v%d' % (t + 4, t + 4, t))
    for i in range(4):
        b('v_cmp_eq_u32 vcc, %d, v%d' % (i, t + 3))
        b('v_cndmask_b32 v%d, 0, v%d, vcc' % (RA + i, t + 4))
def poll(p, prev, rF, rFO, raw):
    rp = P.block('L_red_p%d' % p, prev + ['L_red_p%d' % p])
    rp('buffer_load_dword v%d, v%d, %s, s%d offen sc1' % (rF, rFO, srd(sWS), sFB))
    rp('s_sub_u32 s%d, s%d, 1' % (sCNT, sCNT))
    rp('s_waitcnt vmcnt(0)')
    rp('v_cmp_eq_u32 vcc, 1, v%d' % rF)
    rp('s_cmp_gt_i32 s%d, 0' % sCNT)
    rp('s_cselect_b32 s%d, 0, -1' % sT2)
    rp('s_or_b32 s%d, vcc_lo, s%d' % (sT, sT2))
    rp('s_bfe_u32 s%d, s%d, 0x%x' % (sT, sT, (8 << 16) | (8 * p)))
    rp('s_cmp_lg_u32 s%d, 0xff' % sT)
    rp('s_cbranch_scc1 L_red_p%d' % p)
    ri = P.block('L_red_i%d' % p, ['L_red_p%d' % p])
    pmark(ri)
    for src in range(8):
        ri('s_add_u32 s%d, s%d, %d' % (sT, sSB + p, src * 122880))
        for h in range(NP[p]):
            ri('buffer_load_dwordx4 %s, v%d, %s, s%d offen offset:%d sc1' % (vr(raw + 4 * (NP[p] * src + h), 4), tOB, srd(sWS), sT, h * 1024))
    return ri
def finish_stage(b, p, raw, racc, RA, rOUT):
    for src in range(8):
        for h in range(NP[p]):
            acc = vr(racc + 16 * h, 16)
            b('%s %s, %s, %s, %s' % (MF, acc, vr(RA, 4), vr(raw + 4 * (NP[p] * src + h), 4), acc if src else '0'))
    for h in range(NP[p]):
        acc = racc + 16 * h
        for i in range(4):
            b('v_cvt_pk_bf16_f32 v%d, v%d, v%d' % (acc + i, acc + 2 * i, acc + 2 * i + 1))
        b('buffer_store_dwordx4 %s, v%d, %s, s%d offen offset:%d' % (vr(acc, 4), rOUT, srd(sOUT), sOO + p, 32 * h))

M3, N31 = OPT['m3'], OPT['n31']
seqA = [(1, k) for k in range(24)] + [(3, k) for k in range(M3)] + [(1, k) for k in range(24, 32)] + [(3, k) for k in range(M3, 32)]
SA_ = Stream(seqA, FIFO_A)
ta = P.block('L_a24', ['L_qp_e'])
def abar0(b, n):
    pstamp(b, sPA)
    gend(b, lg=True, tail=[pshift] if (n & 7) == 7 else None)
def wo_pf(n):
    if OPT['stag']:
        u, j = divmod(n - OPT['sb'], 8)
        if j >= 4 or not 0 <= u < 4: return []
        return ['s_cmp_lg_u32 s%d, %d' % (sLJ, j), 's_cbranch_scc1 L_npf%d' % n,
                's_add_u32 s%d, s%d, %d' % (sT, sPK, u * 128 * 1280), 's_mov_b64 exec, 0xff',
                'buffer_load_dword v255, v%d, %s, s%d offen' % (aPF, srd(sWO), sT), 's_mov_b64 exec, -1', lambda b: b.raw('L_npf%d:' % n)]
    n -= OPT['wpf0']
    if not 0 <= n < 20: return []
    return ['s_add_u32 s%d, s%d, %d' % (sT, sPK, n * 32768), 's_mov_b64 exec, 15',
            'buffer_load_dword v255, v%d, %s, s%d offen' % (aPF, srd(sWO), sT), 's_mov_b64 exec, -1', lambda b: SA_.vm.add('pf')]
UP, DN = 'v_add_u32 v%d, %d, v%d' % (aQW, BUF - W0, aQW), 'v_subrev_u32 v%d, %d, v%d' % (aQW, BUF - W0, aQW)
emit(ta, [UP] + q_out(1))
if OPT['stag']:
    ta('v_and_b32 v0, 3, v%d' % aPF)
    ta('v_lshrrev_b32 v%d, 2, v%d' % (aPF, aPF))
    ta('v_mul_u32_u24 v%d, 1280, v%d' % (aPF, aPF))
    ta('v_lshl_add_u32 v%d, v0, 7, v%d' % (aPF, aPF))
    ta('s_lshl_b32 s%d, s%d, 2' % (sT, sB))
    ta('s_add_u32 s%d, s%d, s%d' % (sT, sT, sT3))
    ta('s_mul_i32 s%d, s%d, 2560' % (sT, sT))
    ta('s_mul_i32 s%d, s%d, %d' % (sPK, sH0, 128 * 1280))
    ta('s_add_u32 s%d, s%d, s%d' % (sPK, sPK, sT))
    ta('s_and_b32 s%d, s%d, 3' % (sLJ, sB))
abar0(ta, 0)
emit(ta, wo_pf(1))
emit(ta, [DN] + q_out(2) + q_out(3, AC3) + [UP])
if not OPT['stag']:
    ta('v_lshlrev_b32 v%d, 11, v%d' % (aPF, aPF))
    ta('s_mul_i32 s%d, s%d, %d' % (sPK, sH0, 128 * 1280))
    ta('s_lshl_b32 s%d, s%d, 7' % (sT, sB))
    ta('s_add_u32 s%d, s%d, s%d' % (sPK, sPK, sT))
    ta('s_lshl_b32 s%d, s%d, 13' % (sT, sT3))
    ta('s_add_u32 s%d, s%d, s%d' % (sPK, sPK, sT))
abar0(ta, 1)
ta('s_lshl_b32 s%d, s%d, 3' % (sT, sGRP))
ta('v_mov_b32 v0, s%d' % sT)
ta('s_cmp_lg_u32 s%d, 4' % sWAVE)
ta('s_cbranch_scc1 L_qp2')
ta('v_mov_b32 v1, 1')
ta('s_mov_b64 exec, 1')
ta('s_waitcnt vmcnt(0)')
ta('global_atomic_add v0, v1, s[%d:%d] sc1' % (sDBG, sDBG + 1))
ta('s_mov_b64 exec, -1')
ta.raw('L_qp2:')
tail_setup(ta, True)
tail_setup2(ta, True)
red_addr(ta, [0], 2)
for n in range(2, 8):
    emit(ta, wo_pf(n))
    if n >= 5:
        for _ in range(OPT['pre'] // 3): emit(ta, SA_.load())
    if n == 7:
        ta('global_load_dword v1, v0, s[%d:%d] sc1' % (sDBG, sDBG + 1))
    abar0(ta, n)
ta('s_waitcnt vmcnt(0)')
SA_.vm.q = []
tc = P.block('L_a_c', ['L_a24', 'L_a_c2'])
tc('v_readfirstlane_b32 s%d, v1' % sT)
tc('s_sub_u32 s%d, s%d, 1' % (sCNT, sCNT))
tc('s_cmp_ge_u32 s%d, 8' % sT)
tc('s_cbranch_scc1 L_a_m')
tc2 = P.block('L_a_c2', ['L_a_c'])
tc2('global_load_dword v1, v0, s[%d:%d] sc1' % (sDBG, sDBG + 1))
tc2('s_cmp_gt_i32 s%d, 0' % sCNT)
tc2('s_waitcnt vmcnt(0)')
tc2('s_cbranch_scc1 L_a_c')
ta = P.block('L_a_m', ['L_a_c', 'L_a_c2'])
wr, js = SA_.writes(0)
emit(ta, wr + sum((SA_.load() for _ in js), []) + wo_pf(8))
abar0(ta, 8)
OSV = AC3 + 24
LAST = OPT['last']
for n in range(9, 30):
    if n == 17:
        for j in range(6): ta('ds_read_b128 %s, v%d offset:%d' % (vr(OSV + 4 * j, 4), aQW, (j >> 1) * 1024 + (j & 1) * 3072))
    if n - 9 <= LAST: SA_.slow(ta, n - 9, wo_pf(n))
    else: emit(ta, wo_pf(n))
    if n == 17:
        ta.waitfor(rng(OSV, 24))
        for j in range(6): ta('ds_write_b128 v%d, %s offset:%d' % (aQW, vr(AC3 + 4 * j, 4), (j >> 1) * 1024 + (j & 1) * 3072))
    if OPT['grad'] and n >= OPT['grad'] and SA_.nl < len(FIFO_A) + SA_.first[min(n - 9, LAST) + 2]: emit(ta, SA_.load())
    if n == OPT['top']:
        while SA_.nl < len(FIFO_A) + SA_.first[min(n - 9, LAST) + 2]: emit(ta, SA_.load())
    abar0(ta, n)
I0 = LAST + 1
ta('v_subrev_u32 v%d, %d, v%d' % (aQW, BUF - OB[0], aQW))
emit(ta, SA_.reads(I0))
for j in range(6): ta('ds_write_b128 v%d, %s offset:%d' % (aQW, vr(OSV + 4 * j, 4), (j >> 1) * 1024 + (j & 1) * 3072))
wr, js = SA_.writes(I0 + 1)
emit(ta, wr + sum((SA_.load() for _ in js), []))
def abar(tail=None):
    def f(b):
        pstamp(b, sPA)
        gend(b, tail=tail)
    return f
def b30(b):
    b('s_waitcnt lgkmcnt(0)')
    abar()(b)
    b('s_setprio %d' % OPT['pc'])
def bend(b):
    if OPT['prof']:
        b('s_waitcnt lgkmcnt(0)')
        pwrite(b, [sPC]); pstamp(b, sPC)
    b('s_barrier')
tops = {24: b30, 24 + N31: abar([pshift]), 24 + M3 - 1: bend,
        24 + M3: lambda b: b('s_setprio %d' % OPT['pa'])}
assert 0 < N31 < M3 - 1
def direct_dma(k):
    def f(b):
        b('s_lshl_b32 s%d, s%d, 13' % (sT2, sT3))
        b('s_add_u32 m0, s%d, %d' % (sT2, (k - 24) * 1024))
        b('s_add_u32 s%d, s%d, %d' % (sT, sW3, wrow(3, k)))
        b('buffer_load_dwordx4 v%d, %s, s%d offen lds' % (tW1, srd(sWO), sT))
        SA_.vm.add('d')
    return f
for i in range(I0, 32 + M3):
    SA_.kstep(ta, i, tops.get(i), [direct_dma(i)] if 24 <= i < 32 else ())
assert SA_.nl == len(SA_.items)
pmark(ta, True)
ta('s_setprio %d' % OPT['pc'])
publish(ta, 2, ACC)
pmark(ta)
flag(ta)
SA_.vm.q = []
pmark(ta)
ta('s_mul_i32 s%d, s%d, 6144' % (sT, sT3))
ta('s_sub_u32 s%d, s%d, s%d' % (sPUB, sPUB, sT))
ta('s_add_u32 s%d, s%d, %d' % (sPUB, sPUB, 16 * 6144))
ta('s_add_u32 s%d, s%d, 64' % (sFLG, sFLG))
ta('v_lshrrev_b32 v65, 2, v%d' % tOB)
ta('v_and_b32 v65, 0x7f, v65')
ta('s_waitcnt lgkmcnt(0)')
if OPT['bld'] >= 0: ta('s_barrier')
ta('s_cmp_eq_u32 s%d, 3' % sT3)
ta('s_cbranch_scc1 L_a_x')
ri = poll(0, ['L_a_m'], 64, 65, 0)
tx = P.block('L_a_x', ['L_a_m', 'L_red_i0'])
for i in range(32 + M3, len(seqA)): SA_.kstep(tx, i)
pmark(tx)
publish(tx, 1, AC3)
pmark(tx)
flag(tx)
pmark(tx)
tx('s_cmp_eq_u32 s%d, 3' % sT3)
tx('s_cbranch_scc1 %s' % ('L_a_y' if OPT['prof'] else 'L_end'))
tz = P.block('L_a_z', ['L_a_x'])
red_sel(tz, 196, 200, 202)
finish_stage(tz, 0, 0, 64, 196, 200)
ty = P.block('L_a_y', ['L_a_x', 'L_a_z'])
if OPT['prof']: ty('s_branch L_fin')
else: ty('s_endpgm')

SB_ = Stream([(2, k) for k in range(32)], FIFO_B)
tb = P.block('L_tb', ['L_att_fin', 'L_ld_w'])
tb('s_setprio %d' % OPT['pb'])
tail_setup(tb, False)
if OPT['early']:
    assert UO[2][0] == 2
    for _ in FB0: SB_.load()[-1](tb)
while SB_.nl < len(FIFO_B): emit(tb, SB_.load())
tail_setup2(tb, False)
SB_.prime(tb)
emit(tb, SB_.reads(0))
for i in range(32): SB_.kstep(tb, i, (lambda b: b('s_barrier')) if i == OPT['bld'] else None)
pmark(tb, True)
publish(tb, 2, ACC)
pmark(tb)
RA, rOUT, rF, rFO = 240, 244, 246, 247
red_addr(tb, [1, 2], rFO)
red_sel(tb, RA, rOUT, 230)
flag(tb)
pmark(tb)
tb('s_cmp_eq_u32 s%d, 3' % sWAVE)
tb('s_cbranch_scc1 %s' % ('L_fin' if OPT['prof'] else 'L_end'))
ri = poll(1, ['L_tb'], rF, rFO, 0)
ri = poll(2, ['L_red_i1'], rF, rFO, 64)
finish_stage(ri, 1, 0, 96, RA, rOUT)
ri('s_waitcnt vmcnt(2)')
pmark(ri)
finish_stage(ri, 2, 64, 128, RA, rOUT)
f = P.block('L_fin', ['L_red_i2', 'L_a_z', 'L_a_y', 'L_tb'])
if OPT['prof']:
    f('s_waitcnt vmcnt(0)')
    pmark(f)
    f('s_lshl_b32 s%d, s2, 3' % sT2)
    f('s_add_u32 s%d, s%d, s%d' % (sT2, sT2, sWAVE))
    f('s_mul_i32 s%d, s%d, 1280' % (sT2, sT2))
    f('s_add_u32 s%d, s%d, %d' % (sT2, sT2, 72 << 20))
    f('v_mbcnt_lo_u32_b32 v4, -1, 0')
    f('v_mbcnt_hi_u32_b32 v4, -1, v4')
    f('v_lshlrev_b32 v4, 2, v4')
    for i in range(5):
        f('buffer_store_dword v%d, v4, %s, s%d offen offset:%d' % (254 - i, srd(sWS), sT2, 256 * i))
if OPT['stamps']:
    f('s_waitcnt vmcnt(0)')
    f('s_cmp_lg_u32 s%d, 0' % sWAVE)
    f('s_cbranch_scc1 L_end')
    f('s_memrealtime s[%d:%d]' % (sT, sT + 1))
    f('s_waitcnt lgkmcnt(0)')
    f('v_mov_b32 v0, s%d' % sST0)
    f('v_mov_b32 v1, s%d' % (sST0 + 1))
    f('v_mov_b32 v2, s%d' % sT)
    f('v_mov_b32 v3, s%d' % (sT + 1))
    f('s_lshl_b32 s%d, s2, 4' % sT2)
    f('s_add_u32 s%d, s%d, %d' % (sT2, sT2, 64 << 20))
    f('v_mov_b32 v4, 0')
    f('s_mov_b64 exec, 1')
    f('buffer_store_dwordx4 v[0:3], v4, %s, s%d offen' % (srd(sWS), sT2))
en = P.block('L_end', ['L_fin'])
en('s_endpgm')

for (name, X, frm) in slow:
    s = P.block('L_slow_%s' % name, [frm])
    s('s_nop 15')
    s('v_mov_b32 v%d, v%d' % (TM + 1, TM))
    s('v_permlane32_swap_b32 v%d, v%d' % (TM, TM + 1))
    s('v_max3_f32 v%d, v%d, v%d, 0' % (TM, TM, TM + 1))
    s('v_exp_f32 v%d, -v%d' % (TM + 1, TM))
    for i in range(16):
        s('v_sub_f32 v%d, v%d, v%d' % (X + i, X + i, TM))
        s('v_sub_f32 v%d, v%d, v%d' % (NM + i, NM + i, TM))
    for i in range(64):
        s('v_mul_f32 v%d, v%d, v%d' % (OA + i, TM + 1, OA + i))
    s('v_mul_f32 v%d, v%d, v%d' % (LS, TM + 1, LS))
    s('v_mul_f32 v%d, v%d, v%d' % (LS + 1, TM + 1, LS + 1))
    s('s_nop 1')
    s('s_branch L_back_%s' % name)

body = P.finish()
hdr = open('concat_heads__gqa_block_cached__gqa_block_cached__near_ridge.s.ref').read().split('; Override launch')[0]
out = hdr + """; Override launch geometry by editing the next line (default: block=256,
; grid=ceil(out_elems/256), lds=0). Harness parses it; keep it on one line.
; @launch grid=(256,1,1) block=(512,1,1) lds=%d
.amdgcn_target "amdgcn-amd-amdhsa--gfx950"
.text
.globl %s
.p2align 8
.type %s,@function
%s:
%s
.section .rodata,"a"
.p2align 6
.amdhsa_kernel %s
  .amdhsa_next_free_vgpr 256
  .amdhsa_next_free_sgpr 102
  .amdhsa_accum_offset 256
  .amdhsa_group_segment_fixed_size 0
  .amdhsa_kernarg_size 104
  .amdhsa_user_sgpr_count 2
  .amdhsa_user_sgpr_kernarg_segment_ptr 1
  .amdhsa_system_sgpr_workgroup_id_x 1
.end_amdhsa_kernel
""" % (LDS_BYTES, KN, KN, KN, body, KN)
open(sys.argv[1], 'w').write(out)
```

```python
import sys, math, struct
sys.path.insert(0, 'gen')
from asmlib import *

KN = "concat_heads__gqa_block_cached__gqa_block_cached__near_ridge_kernel"
OPT = dict(stamps=0, nt=1, rot=1, prof=0, krot=1, pkq=0, pko=0, patt=1, pq=2, pf=3, pa=2, pb=1, pc=0, n31=3, m3=11, bld=-1, qpf=2, wpf=5, thr=0, fine=0, pre=6, wpf0=2, last=20, pld=0, nks=1, wpfq=0, top=28, spf=0, spn=5, stag=1, sb=1, early=1, kv2=1, grad=22, kpf=0, kc0=3, kn=8)
for a in sys.argv[2:]:
    k, v = a.split('='); assert k in OPT, k; OPT[k] = int(v)

SLOT = 32768
S0, S1, S2, W0, W1, BUF = 0, 32768, 65536, 98304, 118784, 139264
XS0, XST = 131072, 6144
FLAGS = 40 << 20
LDS_BYTES = 163840
MF = 'v_mfma_f32_32x32x16_bf16'
NT = ' nt' if OPT['nt'] else ''
OB = [S2, W0, BUF, S1]
ASL, BSL = W0 + 24576, (S2 + 24576, S2 + 28672, S1 + 24576, S1 + 28672)

sWAVE = 3
sK, sV, sX, sWQ, sWO, sWS, sOUT = 4, 8, 12, 16, 20, 24, 28
sDBG = 32
sU, sCNT = 34, 35
sB, sBR, sH0, sME, sGRP = 62, 63, 64, 65, 66
sKVO, sWQO, sXO, sKC, sMS, sT, sT1, sWOB, sWSL = 67, 68, 69, 70, 71, 72, 73, 74, 75
sKS, sN, sT2, sT3, sDELTA, sSLOT, sROT, sLJ, sPK, sAS = 76, 77, 78, 79, 80, 81, 82, 83, 84, 85
sSC, sTHR = 86, 88
sKROT = 89
sST0 = 90
sRB = 92
sPI = 93
sPA, sPB, sPC = 94, 96, 98
sJ8, sJ2 = 100, 101
def srd(n): return 's[%d:%d]' % (n, n + 3)
def vr(a, n): return 'v[%d:%d]' % (a, a + n - 1)

class Prog:
    def __init__(self):
        self.blocks = []; self.preds = {}
    def block(self, name, preds, pend=None, label=True):
        b = Block(name)
        if pend is not None: b.pend = list(pend)
        if label: b.raw(name + ':')
        self.blocks.append(b); self.preds[name] = preds
        return b
    def tails(self, name, need=20, depth=0):
        res = []
        for p in self.preds[name]:
            pb = [b for b in self.blocks if b.name == p]
            assert pb, (name, p)
            ins = pb[0].ins
            st = sum(i.states() for i in ins)
            if st >= need or depth > 3 or not self.preds[p]:
                res.append(list(ins[-40:]))
            else:
                for t in self.tails(p, need - st, depth + 1):
                    res.append(t + list(ins))
        return res
    def finish(self):
        for b in self.blocks:
            b.ins = fix_hazards(b.ins, self.tails(b.name))
        return '\n'.join(text_of(b.ins) for b in self.blocks)

P = Prog()
def pstamp(b, reg):
    if OPT['prof']: b('s_memtime s[%d:%d]' % (reg, reg + 1))
def pwrite(b, regs):
    if OPT['prof']:
        for r_ in regs:
            b('s_mov_b32 m0, s%d' % sPI)
            b('s_nop 0')
            b('v_writelane_b32 v250, s%d, m0' % (r_,))
            b('s_add_u32 s%d, s%d, 1' % (sPI, sPI))
def pshift(b):
    if OPT['prof']:
        for i in (254, 253, 252, 251): b('v_mov_b32 v%d, v%d' % (i, i - 1))
        b('s_mov_b32 s%d, 0' % sPI)
def pmark(b, first=False):
    if OPT['prof']:
        b('s_memtime s[%d:%d]' % (sPA, sPA + 1))
        b('s_waitcnt lgkmcnt(0)')
        pwrite(b, [sPC, sPA] if first else [sPA])
def emit(b, ops):
    for o in ops:
        if callable(o): o(b)
        else: b(o)
def weave(b, mf, fill):
    assert len(mf) == len(fill), (len(mf), len(fill))
    for m, f in zip(mf, fill):
        b(m)
        emit(b, f)
def split(ops, counts):
    out = []; k = 0
    for c in counts:
        out.append(list(ops[k:k + c])); k += c
    assert k >= len(ops), (k, len(ops))
    return out
def spread(ops, n):
    out = []; k = 0
    for i in range(n):
        m = (len(ops) * (i + 1)) // n
        out.append(list(ops[k:m])); k = m
    return out
def zipf(*lists):
    return [sum((l[i] for l in lists), []) for i in range(len(lists[0]))]
def rng(a, n): return set(range(a, a + n))
def W(regs): return lambda b: b.waitfor(regs)

vK, vV, vWQ, vX = 242, 246, 247, 248
e = P.block('L_entry', [], label=False)
e('s_cmp_ge_u32 s2, 256')
e('s_cbranch_scc1 L_end')
if OPT['stamps']:
    e('s_memrealtime s[%d:%d]' % (sST0, sST0 + 1))
if OPT['prof']: e('s_memtime s[%d:%d]' % (sPA, sPA + 1))
e('s_load_dwordx16 s[36:51], s[0:1], 0')
e('s_load_dwordx8 s[52:59], s[0:1], 64')
e('s_load_dwordx2 s[60:61], s[0:1], 96')
e('v_lshrrev_b32 v1, 6, v0')
e('v_and_b32 v0, 63, v0')
e('v_readfirstlane_b32 s%d, v1' % sWAVE)
e('s_and_b32 s%d, s2, 7' % sT)
e('s_lshr_b32 s%d, s2, 3' % sT2)
e('s_lshr_b32 s%d, s%d, 2' % (sBR, sT))
e('s_and_b32 s%d, s%d, 3' % (sT, sT))
e('s_lshr_b32 s%d, s%d, 1' % (sB, sT2))
e('s_and_b32 s%d, s%d, 1' % (sT2, sT2))
e('s_lshl_b32 s%d, s%d, 1' % (sME, sT))
e('s_add_u32 s%d, s%d, s%d' % (sME, sME, sT2))
e('s_lshl_b32 s%d, s%d, 2' % (sH0, sME))
e('s_mul_i32 s%d, s%d, 5' % (sT2, sT2))
if OPT['krot']:
    e('s_lshr_b32 s%d, s%d, 1' % (sKROT, sB))
    e('s_add_u32 s%d, s%d, s%d' % (sKROT, sKROT, sT))
    e('s_add_u32 s%d, s%d, s%d' % (sKROT, sKROT, sT2))
    e('s_and_b32 s%d, s%d, 7' % (sKROT, sKROT))
    e('s_lshl_b32 s%d, s%d, 14' % (sKROT, sKROT))
else: e('s_mov_b32 s%d, 0' % sKROT)
e('s_lshl_b32 s%d, s%d, 4' % (sGRP, sBR))
e('s_add_u32 s%d, s%d, s%d' % (sGRP, sGRP, sB))
if OPT['rot']:
    if OPT['rot'] == 1:
        e('s_mul_i32 s%d, s%d, 5' % (sROT, sB))
        e('s_lshr_b32 s%d, s%d, 2' % (sROT, sROT))
    else:
        e('s_and_b32 s%d, s%d, %d' % (sROT, sB, OPT['rot'] - 1))
        e('s_mul_i32 s%d, s%d, %d' % (sROT, sROT, 20 // OPT['rot']))
    e('s_lshl_b32 s%d, s%d, 1' % (sT2, sT2))
    e('s_add_u32 s%d, s%d, s%d' % (sROT, sROT, sT2))
    e('s_cmp_ge_u32 s%d, 20' % sROT)
    e('s_cselect_b32 s%d, 20, 0' % sT2)
    e('s_sub_u32 s%d, s%d, s%d' % (sKC, sROT, sT2))
else:
    e('s_mov_b32 s%d, 0' % sKC)
e('s_mov_b32 s%d, 0' % sJ8)
e('s_lshl_b32 s%d, s%d, 13' % (sJ2, sWAVE))
e('v_lshrrev_b32 v4, 4, v0')
e('v_and_b32 v5, 15, v0')
e('v_lshlrev_b32 v6, 2, v4')
e('v_xor_b32 v6, v6, v5')
e('v_lshlrev_b32 v6, 4, v6')
e('v_lshl_add_u32 v%d, v4, 13, v6' % vWQ)
e('v_lshl_add_u32 v%d, v4, 8, v6' % vV)
e('v_and_b32 v6, 3, v0')
e('v_xor_b32 v6, v6, v4')
e('v_lshlrev_b32 v6, 4, v6')
e('v_lshrrev_b32 v7, 2, v0')
e('v_mul_u32_u24 v7, 1280, v7')
e('v_add_u32 v%d, v7, v6' % vX)
e('s_mul_i32 s%d, s%d, 122880' % (sXO, sB))
e('s_mul_i32 s%d, s%d, 20480' % (sT, sWAVE))
e('s_add_u32 s%d, s%d, s%d' % (sXO, sXO, sT))
e('s_lshl_b32 s%d, s%d, 10' % (sWSL, sWAVE))
e('s_add_u32 s%d, s%d, %d' % (sWSL, sWSL, XS0))
e('s_add_u32 s%d, s%d, %d' % (sLJ, sWSL, 4 * XST))
e('s_add_u32 s%d, s%d, s%d' % (sWQO, sH0, sWAVE))
e('s_lshl_b32 s%d, s%d, 8' % (sWQO, sWQO))
e('s_mov_b32 s%d, 0' % sMS)
e('s_mov_b32 s%d, 0' % sU)
if OPT['prof']: e('s_mov_b32 s%d, 0' % sPI)
for d, size in ((sX, 16*96*640*2), (sWQ, 640*4096*2)):
    e('s_mov_b32 s%d, %d' % (d + 2, size))
    e('s_mov_b32 s%d, 0x20000' % (d + 3))
e('s_and_b32 s%d, s%d, 3' % (sT3, sWAVE))
e('s_waitcnt lgkmcnt(0)')
if OPT['prof']: e('s_memtime s[%d:%d]' % (sPB, sPB + 1))
e('s_cmp_eq_u32 s%d, 0' % sBR)
for (dst, a, b_) in ((sX, 36, 46), (sWQ, 42, 52), (sK, 38, 48), (sV, 40, 50), (sWO, 44, 54)):
    e('s_cselect_b64 s[%d:%d], s[%d:%d], s[%d:%d]' % (dst, dst + 1, a, a + 1, b_, b_ + 1))
for d in (sX, sWQ):
    e('s_and_b32 s%d, s%d, 0xffff' % (d + 1, d + 1))
e('s_cmp_ge_u32 s%d, 4' % sWAVE)
e('s_cbranch_scc1 L_qp')
def rest_srd(b):
    for (dst, size) in ((sK, 16*32*512*128*2), (sV, 16*32*512*128*2), (sWO, 640*4096*2)):
        b('s_mov_b32 s%d, %d' % (dst + 2, size))
        b('s_mov_b32 s%d, 0x20000' % (dst + 3))
    for (dst, a, size) in ((sOUT, 56, 16*96*1280*2), (sWS, 60, 293339136)):
        b('s_mov_b64 s[%d:%d], s[%d:%d]' % (dst, dst + 1, a, a + 1))
        b('s_mov_b32 s%d, %d' % (dst + 2, size))
        b('s_mov_b32 s%d, 0x20000' % (dst + 3))
    for d in (sK, sV, sWO, sOUT, sWS):
        b('s_and_b32 s%d, s%d, 0xffff' % (d + 1, d + 1))
    b('s_mov_b64 s[%d:%d], s[58:59]' % (sDBG, sDBG + 1))

NX = [0]
def issue_Q():
    nx = NX[0]; NX[0] += 1
    o = ['s_add_u32 m0, s%d, s%d' % (sMS, sJ2),
         's_lshl_b32 s%d, s%d, 18' % (sT, sKC),
         's_add_u32 s%d, s%d, s%d' % (sT, sT, sWQO)]
    RS = 32768
    for m in range(8):
        if m == 4:
            o += ['s_add_u32 m0, m0, 4096', 's_add_u32 s%d, s%d, %d' % (sT, sT, RS + 3072)]
        elif m: o.append('s_add_u32 s%d, s%d, %d' % (sT, sT, RS - 1024))
        o.append('buffer_load_dwordx4 v%d, %s, s%d offen offset:%d lds' % (vWQ, srd(sWQ), sT, (m & 3) * 1024))
    o += ['s_mov_b32 m0, s%d' % sWSL,
          's_lshl_b32 s%d, s%d, 6' % (sT, sKC),
          's_add_u32 s%d, s%d, s%d' % (sT, sT, sXO),
          'buffer_load_dwordx4 v%d, %s, s%d offen lds' % (vX, srd(sX), sT),
          's_cmp_ge_u32 s%d, 2' % sWAVE,
          's_cbranch_scc1 L_nx%d' % nx,
          's_add_u32 m0, s%d, 4096' % sWSL,
          's_add_u32 s%d, s%d, %d' % (sT, sT, 4 * 20480),
          'buffer_load_dwordx4 v%d, %s, s%d offen lds' % (vX, srd(sX), sT),
          lambda b: b.raw('L_nx%d:' % nx),
          's_add_u32 s%d, s%d, 1' % (sKC, sKC),
          's_cmp_eq_u32 s%d, 20' % sKC,
          's_cselect_b32 s%d, 0, s%d' % (sKC, sKC),
          's_add_u32 s%d, s%d, %d' % (sMS, sMS, SLOT),
          's_and_b32 s%d, s%d, 0x18000' % (sMS, sMS),
          's_add_u32 s%d, s%d, %d' % (sWSL, sWSL, XST),
          's_cmp_eq_u32 s%d, s%d' % (sWSL, sLJ),
          's_cselect_b32 s%d, %d, 0' % (sT, 4 * XST),
          's_sub_u32 s%d, s%d, s%d' % (sWSL, sWSL, sT)]
    return o
def issue_H(half, ng=2):
    o = []
    for gq in range(ng):
        off = 16384 * half + 4096 * gq
        if off: o.append('s_add_u32 m0, s%d, %d' % (sAS, off))
        else: o.append('s_mov_b32 m0, s%d' % sAS)
        if gq: o.append('s_add_u32 s%d, s%d, %d' % (sT, sKVO, 4096 * gq))
        for e_ in range(4):
            o.append('buffer_load_dwordx4 v%d, %s, s%d offen offset:%d%s lds' % (vV if half else vK + e_, srd(sV if half else sK), sT if gq else sKVO, e_ * 1024, NT))
    if half:
        o += ['s_add_u32 s%d, s%d, 16384' % (sKVO, sKVO),
              's_and_b32 s%d, s%d, 0x1c000' % (sT2, sKVO),
              's_cselect_b32 s%d, 0, 0x20000' % sT2,
              's_sub_u32 s%d, s%d, s%d' % (sKVO, sKVO, sT2),
              's_add_u32 s%d, s%d, %d' % (sAS, sAS, SLOT),
              's_cmp_ge_u32 s%d, %d' % (sAS, 3 * SLOT),
              's_cselect_b32 s%d, s%d, s%d' % (sAS, sJ8, sAS)]
    return o
def issue_A(ng=2): return issue_H(0, ng) + issue_H(1, ng)
def gend(b, vm=None, loop=None, lg=False, tail=None, cmp=None):
    if lg or OPT['prof']: b('s_waitcnt lgkmcnt(0)')
    pstamp(b, sPB)
    if vm is not None: b('s_waitcnt vmcnt(%d)' % vm)
    if OPT['prof']:
        b('s_waitcnt lgkmcnt(0)')
        pwrite(b, [sPC, sPA, sPB]); pstamp(b, sPC)
    if tail: emit(b, tail)
    if loop and not cmp:
        b('s_sub_u32 s%d, s%d, 1' % (sCNT, sCNT))
        b('s_cmp_lg_u32 s%d, 0' % sCNT)
    if cmp: b(cmp)
    b('s_barrier')
    if loop: b('s_cbranch_scc1 %s' % loop)
def pshift_unit(b, lab):
    if OPT['prof']:
        b('s_and_b32 s%d, s%d, 7' % (sT, sN))
        b('s_cmp_lg_u32 s%d, 7' % sT)
        b('s_cbranch_scc1 %s' % lab)
        pshift(b)
        b.raw(lab + ':')

def qbar(b, vm=None, loop=None, lg=False):
    if vm is not None: b('s_waitcnt vmcnt(%d)' % vm)
    if lg or OPT['prof']: b('s_waitcnt lgkmcnt(0)')
    pwrite(b, [sPC]); pstamp(b, sPC)
    if loop:
        b('s_sub_u32 s%d, s%d, 1' % (sCNT, sCNT))
        b('s_cmp_lg_u32 s%d, 0' % sCNT)
    b('s_barrier')
    if loop: b('s_cbranch_scc1 %s' % loop)
def lanes(b):
    b('v_lshrrev_b32 v1, 5, v0')
    b('v_bfe_u32 v3, v0, 2, 2')
    b('v_lshl_add_u32 v2, v1, 3, v3')
    b('v_lshlrev_b32 v2, 8, v2')
    b('v_bfe_u32 v8, v0, 4, 1')
    b('v_lshl_add_u32 v2, v8, 5, v2')
    b('v_and_b32 v8, 1, v0')
    b('v_lshl_add_u32 v2, v8, 4, v2')
    b('v_bfe_u32 v8, v0, 1, 1')
    b('v_lshl_add_u32 v2, v8, 3, v2')
SCALE = (128 ** -0.5) * math.log2(math.e)
SCB = struct.unpack('<I', struct.pack('<f', SCALE))[0]
OA, QF, SA, SB, F0, F1, NM, PP, aK, aT, aX, LS, TM, aOW, RL = 0, 64, 96, 112, 128, 160, 192, 208, 216, 224, 228, 232, 234, 236, 238
ld = P.block('L_ld', ['L_entry'])
if OPT['pld']: ld('s_setprio %d' % OPT['pld'])
emit(ld, issue_Q() + issue_Q() + issue_Q())
rest_srd(ld)
ld('v_xor_b32 v6, v5, v4')
ld('v_lshlrev_b32 v6, 4, v6')
ld('v_lshl_add_u32 v6, v4, 8, v6')
for e_ in range(4):
    ld('v_xor_b32 v%d, %d, v6' % (vK + e_, 64 * e_))
ld('s_lshl_b32 s%d, s%d, 5' % (sT2, sB))
ld('s_add_u32 s%d, s%d, s%d' % (sT, sH0, sT2))
ld('s_lshl_b32 s%d, s%d, 17' % (sKVO, sT))
ld('s_add_u32 s%d, s%d, s%d' % (sKVO, sKVO, sKROT))
ld('s_mov_b32 s%d, 0' % sAS)
lanes(ld)
for t in range(4):
    ld('v_xor_b32 v5, %d, v3' % t)
    ld('v_lshl_add_u32 v%d, v5, 6, v2' % (aT + t))
ld('s_lshl_b32 s%d, s%d, 10' % (sT, sT3))
ld('s_add_u32 s%d, s%d, %d' % (sT, sT, W0))
ld('v_lshlrev_b32 v7, 4, v0')
ld('v_add_u32 v%d, s%d, v7' % (aOW, sT))
ld('v_and_b32 v5, 0x13, v0')
ld('v_bfe_u32 v6, v0, 2, 1')
ld('v_lshl_or_b32 v5, v6, 3, v5')
ld('v_bfe_u32 v6, v0, 3, 1')
ld('v_lshl_or_b32 v5, v6, 2, v5')
ld('v_and_b32 v6, 15, v5')
ld('v_xor_b32 v6, v6, v1')
ld('v_lshlrev_b32 v6, 4, v6')
ld('v_lshl_add_u32 v6, v5, 8, v6')
for s_ in range(8):
    ld('v_xor_b32 v%d, %d, v6' % (aK + s_, 32 * s_))
ld('v_lshrrev_b32 v5, 3, v0')
ld('v_mul_u32_u24 v%d, 1280, v5' % aX)
ld('v_bfe_u32 v5, v0, 4, 1')
ld('v_lshlrev_b32 v5, 2, v5')
ld('v_and_b32 v6, 7, v0')
ld('v_xor_b32 v5, v5, v6')
ld('v_lshl_add_u32 v%d, v5, 4, v%d' % (aX, aX))
ld('s_lshl_b32 s%d, s%d, 7' % (sT2, sT3))
ld('s_mul_i32 s%d, s%d, %d' % (sWOB, sH0, 128 * 1280))
ld('s_add_u32 s%d, s%d, s%d' % (sWOB, sWOB, sT2))
ld('s_add_u32 s%d, s%d, 512' % (sWOB, sWOB))
FB0 = [96, 100, 104, 108, 128, 132, 136, 140]
def early(b):
    if not OPT['early']: return
    for j, r_ in enumerate(FB0):
        b('s_add_u32 s%d, s%d, %d' % (sT, sWOB, (2 * 128 + (j >> 1) * 16) * 1280 + 10240 * (j & 1)))
        b('buffer_load_dwordx4 %s, v%d, %s, s%d offen' % (vr(r_, 4), aX, srd(sWO), sT))
ld('s_mov_b32 s%d, 0x42000000' % sTHR)
ld('s_mov_b32 s%d, 0' % sSLOT)
ld('s_mov_b32 s%d, 17' % sCNT)
ld('s_mul_i32 s%d, s%d, %d' % (sKS, sH0, 128 * 1280))
ld('s_lshl_b32 s%d, s%d, 7' % (sT, sB))
ld('s_add_u32 s%d, s%d, s%d' % (sKS, sKS, sT))
if OPT['spf'] == 1:
    ld('s_mul_i32 s%d, s%d, %d' % (sT, sWAVE, 2048 * OPT['spn']))
    ld('s_add_u32 s%d, s%d, s%d' % (sKS, sKS, sT))
if OPT['kpf']:
    ld('s_cmp_lt_u32 s%d, 2' % sWAVE)
    ld('s_cselect_b64 s[48:49], s[%d:%d], s[%d:%d]' % (sK, sK + 1, sV, sV + 1))
    ld('s_mov_b64 s[50:51], s[%d:%d]' % (sK + 2, sK + 3))
    ld('v_lshlrev_b32 v9, 7, v0')
    ld('s_and_b32 s%d, s%d, 1' % (sT, sWAVE))
    ld('s_lshl_b32 s%d, s%d, 13' % (sT, sT))
    ld('s_sub_u32 s%d, s%d, s%d' % (sPK, sKVO, sKROT))
    ld('s_add_u32 s%d, s%d, s%d' % (sPK, sPK, sT))
    ld('s_add_u32 s%d, s%d, %d' % (sN, sKROT, OPT['kc0'] * 16384))
    ld('s_sub_u32 s%d, %d, s%d' % (sU, OPT['kn'], sWAVE))
def spf(n, by):
    return ['s_buffer_load_dword s50, %s, s%d offset:%d' % (srd(sWO), sKS, 2048 * i) for i in range(n)] + ['s_add_u32 s%d, s%d, %d' % (sKS, sKS, by)]
if OPT['prof']:
    ld('s_waitcnt lgkmcnt(0)')
    for i, r_ in enumerate((sPA, sPB)): ld('v_writelane_b32 v250, s%d, %d' % (r_, 56 + i))
ld('s_waitcnt vmcnt(18)')
pstamp(ld, sPC)
ld('s_barrier')
lq = P.block('L_ld_q', ['L_ld', 'L_ld_q'])
emit(lq, issue_Q())
if OPT['kpf']:
    lq('s_cmp_lg_u32 s%d, s%d' % (sCNT, sU))
    lq('s_cbranch_scc1 L_nkpf')
    lq('s_and_b32 s%d, s%d, 0x1c000' % (sT, sN))
    lq('s_add_u32 s%d, s%d, s%d' % (sT, sT, sPK))
    lq('buffer_load_dword v255, v9, s[48:51], s%d offen%s' % (sT, ' nt' if OPT['kpf'] == 2 else ''))
    lq('s_add_u32 s%d, s%d, 16384' % (sN, sN))
    lq('s_sub_u32 s%d, s%d, 4' % (sU, sU))
    lq.raw('L_nkpf:')
if OPT['spf'] == 1: emit(lq, spf(OPT['spn'], 8192 * OPT['spn']))
qbar(lq, vm=18, loop='L_ld_q')
l7 = P.block('L_ld_7', ['L_ld_q'])
l7('s_mov_b32 s%d, 0' % sU)
l7('s_cmp_lg_u32 s%d, 3' % sWAVE)
l7('s_cbranch_scc1 L_att')
l7 = P.block('L_ld_8', ['L_ld_7'])
emit(l7, issue_A(4))
qbar(l7, vm=41)
emit(l7, issue_H(0, 4))
qbar(l7, vm=48)
emit(l7, issue_H(1, 4))
if OPT['kv2']: emit(l7, issue_H(0, 4))
qbar(l7)
l7('s_mov_b32 s%d, %d' % (sN, OPT['kv2']))
if OPT['kv2']: emit(l7, issue_H(1, 4))
qbar(l7, vm=63 if OPT['kv2'] else 32)
if OPT['kv2']:
    pstamp(l7, sPA)
    gend(l7, vm=32)
def bump(reg, at, by):
    return ['s_and_b32 s%d, s%d, 7' % (sT, sN),
            's_cmp_eq_u32 s%d, %d' % (sT, at),
            's_cselect_b32 s%d, %d, 0' % (sT, by),
            's_add_u32 s%d, s%d, s%d' % (reg, reg, sT)]
lm = P.block('L_ld_m', ['L_ld_8', 'L_ld_m'])
emit(lm, bump(sKVO, 6, 0x20000) + issue_A(4))
if OPT['spf'] == 2:
    lm('s_cmp_ge_u32 s%d, 20' % sN)
    lm('s_cbranch_scc1 L_nspf')
    emit(lm, spf(16, 32768))
    lm.raw('L_nspf:')
pstamp(lm, sPA)
gend(lm, vm=32, loop='L_ld_m', tail=[lambda b: pshift_unit(b, 'L_ps1'), 's_add_u32 s%d, s%d, 1' % (sN, sN)], cmp='s_cmp_lg_u32 s%d, 30' % sN)
lw = P.block('L_ld_w', ['L_ld_m'])
if 1:
    lw('v_lshrrev_b32 v1, 1, v0')
    lw('v_mul_u32_u24 v1, 1280, v1')
    lw('v_and_b32 v2, 1, v0')
    lw('v_lshl_add_u32 v1, v2, 7, v1')
    lw('s_mul_i32 s%d, s%d, %d' % (sT, sH0, 128 * 1280))
    lw('s_mul_i32 s%d, s%d, 40960' % (sT2, sB))
    lw('s_add_u32 s%d, s%d, s%d' % (sT, sT, sT2))
    for i in range(3): lw('buffer_load_dword v255, v1, %s, s%d offen offset:%d' % (srd(sWO), sT, 512 + 256 * i))
pstamp(lw, sPA)
gend(lw, vm=3, lg=True)
pstamp(lw, sPA)
gend(lw, tail=[pshift])
early(lw)
if OPT['prof']:
    lw('s_waitcnt lgkmcnt(0)')
    pwrite(lw, [sPC]); pstamp(lw, sPC)
lw('s_barrier')
lw('s_branch L_tb')

QP = [QF + 8, QF + 24, QF, QF + 16]
def qf(ks): return QP[ks >> 1] + 4 * (ks & 1)
a = P.block('L_att', ['L_ld_7'])
qbar(a, vm=9)
qbar(a, vm=0)
qbar(a)
if OPT['patt'] != OPT['pld']: a('s_setprio %d' % OPT['patt'])
qbar(a, lg=True)
def ring_slot(step, lo, hi):
    return ['s_add_u32 s%d, s%d, %d' % (sT, sSLOT, step),
            's_cmp_eq_u32 s%d, %d' % (sT, hi),
            's_cselect_b32 s%d, %d, s%d' % (sT, lo, sT),
            's_sub_u32 s%d, s%d, s%d' % (sDELTA, sT, sSLOT),
            's_mov_b32 s%d, s%d' % (sSLOT, sT)]
def kv_slot(): return ring_slot(SLOT, 0, 3 * SLOT)
def adv(base, n, s=None):
    return ['v_add_u32 v%d, s%d, v%d' % (base + i, sDELTA if s is None else s, base + i) for i in range(n)]
def endstep(b, loop=None):
    b('s_waitcnt lgkmcnt(0)')
    pwrite(b, [sPC]); pstamp(b, sPC)
    if loop:
        b('s_sub_u32 s%d, s%d, 1' % (sCNT, sCNT))
        b('s_cmp_lg_u32 s%d, 0' % sCNT)
    b('s_barrier')
    if loop: b('s_cbranch_scc1 %s' % loop)

def k_read(F, s, tile): return 'ds_read_b128 %s, v%d offset:%d' % (vr(F + 4 * s, 4), aK + s, tile * 8192)
def v_read(F, i, tile):
    sp, t = i >> 2, i & 3
    return ['ds_read_b64_tr_b16 %s, v%d offset:%d' % (vr(F + 4 * i + 2 * jj, 2), aT + t, 16384 + tile * 8192 + sp * 4096 + jj * 1024) for jj in range(2)]
def s_mf(F, s, X, c): return '%s %s, %s, %s, %s' % (MF, vr(X, 16), vr(F + 4 * s, 4), vr(qf(s), 4), c)
def pv_mf(F, i, first=False):
    sp, t = i >> 2, i & 3
    c = '0' if (first and sp == 0) else vr(OA + 16 * t, 16)
    return '%s %s, %s, %s, %s' % (MF, vr(OA + 16 * t, 16), vr(F + 4 * i, 4), vr(PP + 4 * sp, 4), c)
def softmax_ops(X, adds=False):
    ops = []
    for i in range(8):
        ops.append('v_exp_f32 v%d, v%d' % (X + 2 * i, X + 2 * i))
        ops.append('v_exp_f32 v%d, v%d' % (X + 2 * i + 1, X + 2 * i + 1))
        if i >= 1:
            ops.append('v_cvt_pk_bf16_f32 v%d, v%d, v%d' % (PP + i - 1, X + 2 * i - 2, X + 2 * i - 1))
            if adds: ops += add_ops(X)[2 * i - 2:2 * i]
    ops.append('v_cvt_pk_bf16_f32 v%d, v%d, v%d' % (PP + 7, X + 14, X + 15))
    if adds: ops += add_ops(X)[14:16]
    return ops
def add_ops(X):
    return ['v_add_f32 v%d, v%d, v%d' % (LS + (i & 1), LS + (i & 1), X + i) for i in range(16)]
def max_ops(X):
    ops = ['v_max3_f32 v%d, v%d, v%d, v%d' % (TM, X, X + 1, X + 2)]
    for i in range(6):
        ops.append('v_max3_f32 v%d, v%d, v%d, v%d' % (TM, TM, X + 3 + 2 * i, X + 4 + 2 * i))
    ops.append('v_max_f32 v%d, v%d, v%d' % (TM, TM, X + 15))
    return ops
CMP = 'v_cmp_lt_f32 vcc, s%d, v%d' % (sTHR, TM)
slow = []
def check(b, X, name):
    b('s_cbranch_vccnz L_slow_%s' % name)
    slow.append((name, X, b.name))
    return P.block('L_back_%s' % name, [b.name, 'L_slow_%s' % name], pend=b.pend)

def pack(src, dst, mul, pk=False):
    o = []
    for h in range(2):
        if pk: o += ['v_pk_mul_f32 %s, %s, %s' % (vr(src + 8 * h + 2 * i, 2), vr(src + 8 * h + 2 * i, 2), pk) for i in range(4)]
        else: o += ['v_mul_f32 v%d, %s, v%d' % (src + 8 * h + i, mul, src + 8 * h + i) for i in range(8)]
        o += ['v_cvt_pk_bf16_f32 v%d, v%d, v%d' % (dst + 4 * h + i, src + 8 * h + 2 * i, src + 8 * h + 2 * i + 1) for i in range(4)]
    return o
def phase_pv0(b, Fa, Fb, first=False, ak=False, cnt=None):
    b.waitfor(rng(Fb, 32))
    vr1 = sum((v_read(Fa, i, 1) for i in range(8)), [])
    ad = add_ops(SA); mx = max_ops(SB)
    fill = zipf(split(vr1, [4, 4, 4, 4, 0, 0, 0, 0]), split(ad, [2, 2, 1, 1, 2, 3, 1, 4]), split(mx, [0, 0, 1, 1, 3, 3, 0, 0]))
    fill[6] = [CMP] + fill[6]
    if ak:
        fill[4] = fill[4] + kv_slot(); fill[5] = fill[5] + adv(aK, 8)
    fill[6] = fill[6] + adv(aT, 4)
    if cnt: fill[7] = fill[7] + [cnt]
    weave(b, [pv_mf(Fb, i, first) for i in range(8)], fill)
def first_max(b, extra=()):
    ex = list(extra)
    mx = max_ops(SA) + ['v_mov_b32 v%d, v%d' % (TM + 1, TM), 'v_permlane32_swap_b32 v%d, v%d' % (TM, TM + 1),
                        'v_max_f32 v%d, v%d, v%d' % (TM, TM, TM + 1)]
    n = min(len(ex), len(mx))
    for i, o in enumerate(mx):
        b(o)
        if i < n: b(ex[i])
    ex = ex[n:]
    for i in range(16):
        b('v_mul_f32 v%d, -1.0, v%d' % (NM + i, TM))
    subs = ['v_sub_f32 v%d, v%d, v%d' % (SA + i, SA + i, TM) for i in range(16)]
    for o in subs[:4]: b(o)
    sm = softmax_ops(SA)
    fill = zipf([subs[4 + 2 * n:6 + 2 * n] + sm[3 * n:3 * n + 3] for n in range(8)], spread(ex, 7) + [[]])
    b.waitfor(rng(F0, 32))
    weave(b, [s_mf(F0, s, SB, vr(NM, 16) if s == 0 else vr(SB, 16)) for s in range(8)], fill)

a0 = P.block('L_att_a0', ['L_att'])
for s in range(8):
    a0('ds_read_b128 %s, v%d offset:%d' % (vr(qf(s), 4), aOW, s * 3072))
    a0(k_read(F0, s, 0))
a0('v_mov_b32 v%d, 0' % LS)
a0('v_mov_b32 v%d, 0' % (LS + 1))
vr0 = sum((v_read(F1, i, 0) for i in range(8)), [])
fill = [[k_read(F0, n, 1)] + vr0[2 * n:2 * n + 2] for n in range(8)]
weave(a0, [s_mf(F0, s, SA, '0' if s == 0 else vr(SA, 16)) for s in range(8)], fill)
first_max(a0)
phase_pv0(a0, F0, F1, first=True, ak=True, cnt='s_mov_b32 s%d, 4' % sCNT)
a0b = check(a0, SB, 'a0')
endstep(a0b)

def a_step(b, Fa, Fb, nm):
    for s in range(8): b(k_read(Fa, s, 0))
    sm = softmax_ops(SB, adds=True)
    HEAD = 12
    for o in sm[:HEAD]: b(o)
    fill = spread(sm[HEAD:], 8)
    fill[3] = fill[3] + [W(rng(Fa + 16, 16))]
    b.waitfor(rng(Fa, 16))
    weave(b, [s_mf(Fa, s, SA, vr(NM, 16) if s == 0 else vr(SA, 16)) for s in range(8)], fill)
    kr = [k_read(Fa, s, 1) for s in range(8)]
    fill = zipf(split(kr, [2, 2, 2, 2, 0, 0, 0, 0]), [v_read(Fb, i, 0) for i in range(8)],
                split(max_ops(SA), [0, 2, 2, 2, 2, 0, 0, 0]))
    ts = kv_slot(); ak = adv(aK, 8)
    fill[0] = fill[0] + ts[:3]; fill[4] = fill[4] + ts[3:]; fill[5] = fill[5] + [CMP] + ak[:2]
    fill[6] = fill[6] + ak[2:6]; fill[7] = fill[7] + ak[6:]
    weave(b, [pv_mf(Fb, i) for i in range(8)], fill)
    b = check(b, SA, nm + '1')
    b.waitfor(rng(Fa, 32))
    weave(b, [s_mf(Fa, s, SB, vr(NM, 16) if s == 0 else vr(SB, 16)) for s in range(8)], spread(softmax_ops(SA), 8))
    phase_pv0(b, Fa, Fb)
    return check(b, SB, nm + '2')
ao = P.block('L_att_ao', ['L_back_a0', 'L_back_ae2', 'L_back_ab'])
ao2 = a_step(ao, F1, F0, 'ao')
ao2('s_waitcnt lgkmcnt(0)')
pwrite(ao2, [sPC]); pstamp(ao2, sPC)
ao2('s_sub_u32 s%d, s%d, 1' % (sCNT, sCNT))
ao2('s_cmp_eq_u32 s%d, 0' % sCNT)
ao2('s_barrier')
ao2('s_cbranch_scc1 L_att_drain')
ae = P.block('L_att_ae', ['L_back_ao2'])
ae2 = a_step(ae, F0, F1, 'ae')
endstep(ae2)
ae2('s_branch L_att_ao')

def lsum(b):
    b('v_add_f32 v%d, v%d, v%d' % (RL, LS, LS + 1))
    b('v_mov_b32 v%d, v%d' % (RL + 1, RL))
    b('v_permlane32_swap_b32 v%d, v%d' % (RL, RL + 1))
    b('v_add_f32 v%d, v%d, v%d' % (RL, RL, RL + 1))
    b('v_rcp_f32 v%d, v%d' % (RL, RL))
    b('v_mov_b32 v%d, v%d' % (RL + 1, RL))
def onorm():
    o = []
    for t in range(4):
        pk = pack(OA + 16 * t, OA + 16 * t, 'v%d' % RL, vr(RL, 2) if OPT['pko'] else False)
        n = len(pk) // 2
        o += pk[:n] + ['ds_write_b128 v%d, %s offset:%d' % (aOW, vr(OA + 16 * t, 4), (2 * t) * 3072)]
        o += pk[n:] + ['ds_write_b128 v%d, %s offset:%d' % (aOW, vr(OA + 16 * t + 4, 4), (2 * t + 1) * 3072)]
    return o
def last_pv(b):
    sm = softmax_ops(SB)
    for o in sm[:14]: b(o)
    fill = zipf(split(sm[14:], [3, 3, 3, 1, 0, 0, 0, 0]), split(add_ops(SB), [0, 0, 0, 2, 3, 3, 4, 4]))
    weave(b, [pv_mf(F1, i) for i in range(8)], fill)
    lsum(b)
d = P.block('L_att_drain', ['L_back_ao2'])
pshift(d)
d('s_add_u32 s%d, s%d, 1' % (sU, sU))
d('s_cmp_eq_u32 s%d, 4' % sU)
d('s_cbranch_scc1 L_att_fin')
ab = P.block('L_att_ab', ['L_att_drain'])
ab('v_xor_b32 v%d, 0x%x, v%d' % (aOW, W0 ^ BUF, aOW))
for s in range(8):
    ab('ds_read_b128 %s, v%d offset:%d' % (vr(qf(s), 4), aOW, s * 3072))
for s in range(7): ab(k_read(F0, s, 0))
sm = softmax_ops(SB)
for o in sm[:14]: ab(o)
fill = zipf(split(sm[14:], [3, 3, 3, 1, 0, 0, 0, 0]), split(add_ops(SB), [0, 0, 0, 2, 3, 3, 4, 4]))
fill[0] = [k_read(F0, 7, 0)] + fill[0]
weave(ab, [pv_mf(F1, i) for i in range(8)], fill)
lsum(ab)
ab('v_mov_b32 v%d, 0' % LS)
ab('v_mov_b32 v%d, 0' % (LS + 1))
on = onorm()
NS0 = len(on) // 2
pieces = [[]] + spread(on[:NS0], 7) if not OPT['pko'] else split(on[:NS0], [2, 4, 5, 5, 5, 5, 5, 5])
fill = [[k_read(F0, n, 1)] + vr0[2 * n:2 * n + 2] + pieces[n] for n in range(8)]
weave(ab, [s_mf(F0, s, SA, '0' if s == 0 else vr(SA, 16)) for s in range(8)], fill)
first_max(ab, on[NS0:])
phase_pv0(ab, F0, F1, first=True, ak=True, cnt='s_mov_b32 s%d, 4' % sCNT)
abb = check(ab, SB, 'ab')
endstep(abb)
abb('s_branch L_att_ao')

fi = P.block('L_att_fin', ['L_att_drain'])
if OPT['pf']: fi('s_setprio %d' % OPT['pf'])
fi('v_subrev_u32 v%d, %d, v%d' % (aOW, BUF - OB[3], aOW))
early(fi)
last_pv(fi)
for o in onorm(): fi(o)
fi('s_waitcnt lgkmcnt(0)')
pwrite(fi, [sPC]); pstamp(fi, sPC)
fi('s_barrier')
fi('s_branch L_tb')

QT = [0, 48, 144, 96]
WF, XF, qW, qX, aQW, aPF = [192, 220], [208, 236], 248, [249, 251], 248, 249
q = P.block('L_qp', ['L_entry'])
if OPT['pq']: q('s_setprio %d' % OPT['pq'])
rest_srd(q)
lanes(q)
q('v_xor_b32 v5, s%d, v3' % sT3)
q('v_lshl_add_u32 v%d, v5, 6, v2' % qW)
q('v_and_b32 v5, 31, v0')
q('v_xor_b32 v6, v3, v1')
q('v_lshlrev_b32 v6, 4, v6')
q('v_lshl_add_u32 v6, v5, 6, v6')
q('v_add_u32 v%d, %d, v6' % (qX[0], XS0))
q('v_xor_b32 v%d, 32, v%d' % (qX[1], qX[0]))
q('s_mov_b32 s%d, 0x%08x' % (sSC, SCB))
q('v_lshlrev_b32 v252, 11, v0')
q('s_mul_i32 s%d, s%d, %d' % (sKS, sH0, 128 * 1280))
q('s_lshl_b32 s%d, s%d, 7' % (sT, sB))
q('s_add_u32 s%d, s%d, s%d' % (sKS, sKS, sT))
q('s_lshl_b32 s%d, s%d, 15' % (sT, sT3))
q('s_add_u32 s%d, s%d, s%d' % (sKS, sKS, sT))
q('s_cmp_lg_u32 s%d, 4' % sWAVE)
q('s_cbranch_scc1 L_qp1')
qz = P.block('L_qpz', ['L_qp'])
qz('s_lshl_b32 s%d, s%d, 9' % (sT, sGRP))
qz('s_lshl_b32 s%d, s%d, 2' % (sT2, sME))
qz('s_add_u32 s%d, s%d, s%d' % (sT2, sT2, sT))
qz('s_add_u32 s%d, s%d, %d' % (sT2, sT2, FLAGS))
qz('v_lshlrev_b32 v192, 5, v0')
qz('v_mov_b32 v193, 0')
qz('s_mov_b64 exec, 0xffff')
qz('buffer_store_dword v193, v192, %s, s%d offen sc1' % (srd(sWS), sT2))
qz('s_mov_b64 exec, -1')
q = P.block('L_qp1', ['L_qp', 'L_qpz'])
for r_ in list(range(192)) + list(range(220, 248)): q('v_mov_b32 v%d, 0' % r_)
q('s_mov_b32 s%d, 5' % sCNT)
def pf_all(b):
    b('s_mov_b64 exec, 0xffff')
    for i in range(5):
        b('buffer_load_dword v255, v252, %s, s%d offen' % (srd(sWO), sKS))
        b('s_add_u32 s%d, s%d, 131072' % (sKS, sKS))
    b('s_mov_b64 exec, -1')
if OPT['wpfq'] == -1: pf_all(q)
pstamp(q, sPC)
q('s_barrier')
if OPT['wpfq'] == -2: pf_all(q)
def q_reads(st, ks):
    w = [['ds_read_b64_tr_b16 %s, v%d offset:%d' % (vr(WF[ks] + 4 * h + 2 * jj, 2), qW, (st & 1) * SLOT + h * 8192 + ks * 4096 + jj * 1024) for jj in range(2)] for h in range(4)]
    x = ['ds_read_b128 %s, v%d offset:%d' % (vr(XF[ks] + 4 * qt, 4), qX[ks], st * XST + qt * 2048) for qt in range(3)]
    return w[0] + x + w[1] + w[2] + w[3]
def q_mfs(ks):
    return ['%s %s, %s, %s, %s' % (MF, vr(QT[h] + 16 * qt, 16), vr(WF[ks] + 4 * h, 4), vr(XF[ks] + 4 * qt, 4), vr(QT[h] + 16 * qt, 16)) for h in range(4) for qt in range(3)]
qm = P.block('L_qp_m', ['L_qp1', 'L_qp_m'])
for st in range(4):
    weave(qm, q_mfs(1), split(q_reads(st, 0), [2, 2, 2, 2, 2, 1, 0, 0, 0, 0, 0, 0]))
    fill = split(q_reads(st, 1), [2, 2, 2, 2, 2, 1, 0, 0, 0, 0, 0, 0])
    if st & 1: fill[7] = ['v_xor_b32 v%d, 0x10000, v%d' % (qW, qW)]
    if st + 1 == OPT['wpfq']:
        fill[8] = ['s_mov_b64 exec, 0xffff', 'buffer_load_dword v255, v252, %s, s%d offen' % (srd(sWO), sKS), 's_mov_b64 exec, -1', 's_add_u32 s%d, s%d, 131072' % (sKS, sKS)]
    weave(qm, q_mfs(0), fill)
    qbar(qm, lg=True, loop='L_qp_m' if st == 3 else None)
def q_out(h, dst=None):
    o = []
    for qt in range(3):
        src = QT[h] + 16 * qt
        d_ = src if dst is None else dst + 8 * qt
        pk = pack(src, d_, 's%d' % sSC)
        if dst is None:
            o += pk[:12] + ['ds_write_b128 v%d, %s offset:%d' % (aQW, vr(d_, 4), qt * 1024)]
            o += pk[12:] + ['ds_write_b128 v%d, %s offset:%d' % (aQW, vr(d_ + 4, 4), qt * 1024 + 3072)]
        else: o += pk
    return o
qe = P.block('L_qp_e', ['L_qp_m'])
ad = ['v_mbcnt_lo_u32_b32 v%d, -1, 0' % aPF, 'v_mbcnt_hi_u32_b32 v%d, -1, v%d' % (aPF, aPF),
      's_mul_i32 s%d, s%d, 6144' % (sT, sT3), 's_add_u32 s%d, s%d, %d' % (sT, sT, W0),
      'v_lshlrev_b32 v%d, 4, v%d' % (aQW, aPF), 'v_add_u32 v%d, s%d, v%d' % (aQW, sT, aQW)]
weave(qe, q_mfs(1), [ad[:3], ad[3:], [], []] + spread(q_out(0), 8))
qbar(qe, lg=True)
ACC, AC3, BFR, AFR = 0, 96, [144, 156], [168, 176]
tA, tA1, tO, tOB, tW2, tW1, tONE, tZERO, tSL = 184, 186, 187, 188, 189, 190, 191, 192, 193
FIFO_A = [194 + 4 * i for i in range(13)]
FIFO_B = FB0 + [112, 116, 120, 124] + [194 + 4 * i for i in range(14)]
sPUB, sFLG, sW3 = sXO, sKC, sKS
UO = {1: [0, 1, 2, 3], 2: [2, 1, 0, 3], 3: [2, 1, 0, 3]}
def obase(p, u): return BUF if (p == 1 and u == 0) else OB[u]
class VM:
    def __init__(self): self.q = []
    def add(self, tag): self.q.append(tag)
    def wait(self, tags):
        last = max([i for i, t in enumerate(self.q) if t in tags], default=-1)
        if last < 0: return []
        n = len(self.q) - 1 - last
        self.q = self.q[last + 1:]
        return ['s_waitcnt vmcnt(%d)' % n]
def tail_setup(b, isA):
    b('v_mbcnt_lo_u32_b32 v%d, -1, 0' % tOB)
    b('v_mbcnt_hi_u32_b32 v%d, -1, v%d' % (tOB, tOB))
    L = tOB; x, y = tONE, tZERO
    b('v_lshrrev_b32 v%d, 3, v%d' % (x, L))
    b('v_mul_u32_u24 v%d, 1280, v%d' % (tW2, x))
    b('v_bfe_u32 v%d, v%d, 4, 1' % (x, L))
    b('v_lshlrev_b32 v%d, 2, v%d' % (x, x))
    b('v_and_b32 v%d, 7, v%d' % (y, L))
    b('v_xor_b32 v%d, v%d, v%d' % (x, x, y))
    b('v_lshl_add_u32 v%d, v%d, 4, v%d' % (tW2, x, tW2))
    b('s_lshl_b32 s%d, s%d, 7' % (sT2, sT3))
    if not isA: b('s_add_u32 s%d, s%d, 512' % (sT2, sT2))
    b('s_mul_i32 s%d, s%d, %d' % (sW3, sH0, 128 * 1280))
    b('s_add_u32 s%d, s%d, s%d' % (sWOB, sW3, sT2))
def tail_setup2(b, isA):
    L = tOB; x, y = tONE, tZERO
    if isA:
        b('s_lshl_b32 s%d, s%d, 12' % (sRB, sT3))
        b('s_add_u32 s%d, s%d, %d' % (sRB, sRB, ASL))
        b('s_lshl_b32 s%d, s%d, 6' % (sT2, sT3))
        b('s_add_u32 s%d, s%d, s%d' % (sW3, sW3, sT2))
        b('s_add_u32 s%d, s%d, 1024' % (sW3, sW3))
    else:
        b('s_lshl_b32 s%d, s%d, 3' % (sT, sT3))
        b('s_lshr_b32 s%d, 0x%08x, s%d' % (sRB, sum((BSL[i] >> 12) << (8 * i) for i in range(4)), sT))
        b('s_and_b32 s%d, s%d, 0xff' % (sRB, sRB))
        b('s_lshl_b32 s%d, s%d, 12' % (sRB, sRB))
    b('v_bfe_u32 v%d, v%d, 4, 1' % (x, L))
    b('v_lshlrev_b32 v%d, 5, v%d' % (tA1, x))
    b('v_and_b32 v%d, 1, v%d' % (x, L))
    b('v_lshl_add_u32 v%d, v%d, 4, v%d' % (tA1, x, tA1))
    b('v_bfe_u32 v%d, v%d, 1, 1' % (x, L))
    b('v_lshl_add_u32 v%d, v%d, 3, v%d' % (tA1, x, tA1))
    b('v_add_u32 v%d, s%d, v%d' % (tA1, sRB, tA1))
    b('v_lshrrev_b32 v%d, 5, v%d' % (x, L))
    b('v_bfe_u32 v%d, v%d, 2, 2' % (y, L))
    b('v_lshl_add_u32 v%d, v%d, 3, v%d' % (x, x, y))
    b('v_lshl_add_u32 v%d, v%d, 7, v%d' % (tA, x, tA1))
    b('v_lshl_add_u32 v%d, v%d, 6, v%d' % (tA1, x, tA1))
    b('v_bfe_u32 v%d, v%d, 3, 1' % (y, L))
    b('v_lshl_add_u32 v%d, v%d, 6, v%d' % (tA, y, tA))
    b('v_xor_b32 v%d, 64, v%d' % (tA + 1, tA))
    if isA:
        b('v_lshrrev_b32 v%d, 2, v%d' % (x, L))
        b('v_mul_u32_u24 v%d, 1280, v%d' % (tW1, x))
        b('v_and_b32 v%d, 3, v%d' % (x, L))
        b('v_lshl_add_u32 v%d, v%d, 4, v%d' % (tW1, x, tW1))
    b('v_lshlrev_b32 v%d, 4, v%d' % (tOB, L))
    b('v_add_u32 v%d, s%d, v%d' % (tSL, sRB, tOB))
    b('v_mov_b32 v%d, 1' % tONE)
    b('v_mov_b32 v%d, 0' % tZERO)
    b('s_lshl_b32 s%d, s%d, 3' % (sT, sGRP))
    b('s_add_u32 s%d, s%d, s%d' % (sT, sT, sME))
    b('s_mul_i32 s%d, s%d, 122880' % (sPUB, sT))
    b('s_mul_i32 s%d, s%d, 12288' % (sT, sT3))
    b('s_add_u32 s%d, s%d, s%d' % (sPUB, sPUB, sT))
    if not isA: b('s_add_u32 s%d, s%d, %d' % (sPUB, sPUB, 8 * 6144))
    b('s_lshl_b32 s%d, s%d, 9' % (sFLG, sGRP))
    b('s_lshl_b32 s%d, s%d, 7' % (sT, sT3))
    b('s_add_u32 s%d, s%d, s%d' % (sFLG, sFLG, sT))
    b('s_lshl_b32 s%d, s%d, 2' % (sT, sME))
    b('s_add_u32 s%d, s%d, s%d' % (sFLG, sFLG, sT))
    b('s_add_u32 s%d, s%d, %d' % (sFLG, sFLG, FLAGS + (0 if isA else 32)))
def wrow(p, k): return (UO[p][k >> 3] * 128 + (k & 7) * 16) * 1280
def ncol(p): return 1 if p == 3 else 2
class Stream:
    def __init__(self, seq, fifo):
        self.seq = seq; self.fifo = fifo; self.vm = VM(); self.nl = 0; self.ob = None
        self.items = []; self.first = []
        for (p, k) in seq:
            self.first.append(len(self.items))
            if not self.direct(p, k): self.items += [(p, k, h) for h in range(ncol(p))]
        self.first.append(len(self.items))
    def direct(self, p, k): return p == 3 and k >= 24
    def load(self):
        if self.nl >= len(self.items): return []
        p, k, h = self.items[self.nl]; r_ = self.fifo[self.nl % len(self.fifo)]
        def ld(b, j=self.nl): self.vm.add(j)
        self.nl += 1
        return ['s_add_u32 s%d, s%d, %d' % (sT, sW3 if p == 3 else sWOB, wrow(p, k) + 10240 * h),
                'buffer_load_dwordx4 %s, v%d, %s, s%d offen' % (vr(r_, 4), tW1 if p == 3 else tW2, srd(sWO), sT), ld]
    def writes(self, i):
        if i >= len(self.seq): return [], []
        js = list(range(self.first[i], self.first[i + 1]))
        if not js: return [], []
        w = [lambda b: emit(b, self.vm.wait(set(js)))]
        w += ['ds_write_b128 v%d, %s offset:%d' % (tSL, vr(self.fifo[j % len(self.fifo)], 4), (i & 1) * 2048 + (j - js[0]) * 1024) for j in js]
        return w, js
    def reads(self, i):
        if i >= len(self.seq): return []
        p, k = self.seq[i]; n = ncol(p); o = []
        ob = obase(p, UO[p][k >> 3])
        if ob != self.ob: o.append('v_add_u32 v%d, %d, v%d' % (tO, ob, tOB)); self.ob = ob
        off = (i & 1) * 2048
        if self.direct(p, k):
            if k == 24:
                o += ['s_lshl_b32 s%d, s%d, 13' % (sT2, sT3), 's_sub_u32 s%d, s%d, s%d' % (sT2, sT2, sRB),
                      'v_add_u32 v%d, s%d, v%d' % (tA1, sT2, tA1), lambda b: emit(b, self.vm.wait({'d'}))]
            off = (k - 24) * 1024
        a_ = []
        for t in range(n):
            for jj in range(2):
                a_.append('ds_read_b64_tr_b16 %s, v%d offset:%d' % (vr(AFR[i & 1] + 4 * t + 2 * jj, 2), tA + t if n == 2 else tA1, off + jj * 256 * n))
        b_ = ['ds_read_b128 %s, v%d offset:%d' % (vr(BFR[i & 1] + 4 * qt, 4), tO, (k & 7) * 3072 + qt * 1024) for qt in range(3)]
        return o + a_[:2] + b_ + a_[2:]
    def kstep(self, b, i, top=None, extra=()):
        p, k = self.seq[i]; n = ncol(p); mf = []
        for t in range(n):
            for qt in range(3):
                acc = vr((AC3 if p == 3 else ACC) + 16 * (qt * n + t), 16)
                mf.append('%s %s, %s, %s, %s' % (MF, acc, vr(AFR[i & 1] + 4 * t, 4), vr(BFR[i & 1] + 4 * qt, 4), acc if k else '0'))
        b.waitfor(rng(AFR[i & 1], 4 * n) | rng(BFR[i & 1], 12))
        if top: top(b)
        rd = self.reads(i + 1)
        wr, js = self.writes(i + 2)
        ld = sum((self.load() for _ in js), [])
        if OPT['fine'] and p == 2 and k >= 1:
            if k & 1:
                b('s_memtime s[46:47]')
                wr = ['s_memtime s[48:49]'] + wr[:1] + ['s_memtime s[50:51]'] + wr[1:]
            else:
                b('s_waitcnt lgkmcnt(0)')
                for n_, r_ in enumerate((46, 48, 50)): b('v_writelane_b32 v250, s%d, %d' % (r_, 16 + 3 * (k // 2 - 1) + n_))
        fill = [[] for _ in mf]
        if n == 2:
            fill[0] += rd[:3]; fill[1] += rd[3:6]; fill[2] += rd[6:]
            fill[3] += wr; fill[4] += ld + list(extra)
        else:
            fill[0] += rd[:5]; fill[1] += rd[5:] + wr; fill[2] += ld + list(extra)
        weave(b, mf, fill)
    def slow(self, b, i, extra=()):
        p, k = self.seq[i]
        emit(b, self.reads(i))
        mf = []
        for t in range(2):
            for qt in range(3):
                acc = vr(ACC + 16 * (qt * 2 + t), 16)
                mf.append('%s %s, %s, %s, %s' % (MF, acc, vr(AFR[i & 1] + 4 * t, 4), vr(BFR[i & 1] + 4 * qt, 4), acc if k else '0'))
        wr, js = self.writes(i + 1)
        ld = sum((self.load() for _ in js), [])
        weave(b, mf, [[], [], wr, ld, list(extra), []])
    def prime(self, b):
        for i in range(2):
            wr, js = self.writes(i)
            emit(b, wr + sum((self.load() for _ in js), []))
def publish(b, n, acc0):
    c = 0
    for t in range(n):
        for qt in range(3):
            base = acc0 + 16 * (qt * n + t)
            for i in range(8):
                b('v_cvt_pk_bf16_f32 v%d, v%d, v%d' % (base + i, base + 2 * i, base + 2 * i + 1))
            b('s_add_u32 s%d, s%d, %d' % (sT2, sPUB, (t * 6 + qt * 2) * 1024))
            for h in range(2):
                if OPT['thr'] and n == 2 and acc0 == ACC and b.name.startswith('L_a') and c >= OPT['thr']: b('s_waitcnt vmcnt(%d)' % (OPT['thr'] - 1))
                b('buffer_store_dwordx4 %s, v%d, %s, s%d offen offset:%d sc1' % (vr(base + 4 * h, 4), tOB, srd(sWS), sT2, h * 1024))
                c += 1
def flag(b):
    b('s_waitcnt vmcnt(0)')
    b('s_mov_b64 exec, 1')
    b('buffer_store_dword v%d, v%d, %s, s%d offen sc1' % (tONE, tZERO, srd(sWS), sFLG))
    b('s_mov_b64 exec, -1')

sOO, sSB, sFB = 36, 42, 45
NP = [2, 2, 1]
def red_addr(b, ps, rFO):
    b('v_lshrrev_b32 v%d, 2, v%d' % (rFO, tOB))
    b('v_and_b32 v%d, 0x7f, v%d' % (rFO, rFO))
    b('s_mul_i32 s%d, s%d, %d' % (sT1, sGRP, 8 * 122880))
    b('s_lshl_b32 s%d, s%d, 11' % (sT, sT3))
    b('s_add_u32 s%d, s%d, s%d' % (sT1, sT1, sT))
    b('s_mul_i32 s%d, s%d, 6144' % (sT, sME))
    b('s_add_u32 s%d, s%d, s%d' % (sSB, sT1, sT))
    b('s_lshr_b32 s%d, s%d, 1' % (sT2, sME))
    if 1 in ps:
        b('s_add_u32 s%d, s%d, %d' % (sSB + 1, sSB, 8 * 6144))
        b('s_mul_i32 s%d, s%d, 6144' % (sT, sT2))
        b('s_add_u32 s%d, s%d, s%d' % (sSB + 2, sT1, sT))
        b('s_and_b32 s%d, s%d, 1' % (sN, sME))
        b('s_lshl_b32 s%d, s%d, 10' % (sT, sN))
        b('s_add_u32 s%d, s%d, s%d' % (sSB + 2, sSB + 2, sT))
        b('s_add_u32 s%d, s%d, %d' % (sSB + 2, sSB + 2, 16 * 6144))
    b('s_lshl_b32 s%d, s%d, 9' % (sFB, sGRP))
    b('s_lshl_b32 s%d, s%d, 7' % (sT, sT2))
    b('s_add_u32 s%d, s%d, s%d' % (sFB, sFB, sT))
    b('s_add_u32 s%d, s%d, %d' % (sFB, sFB, FLAGS))
    b('s_mul_i32 s%d, s%d, %d' % (sT1, sB, 96 * 2560))
    b('s_mul_i32 s%d, s%d, 1280' % (sT, sBR))
    b('s_add_u32 s%d, s%d, s%d' % (sT1, sT1, sT))
    b('s_mul_i32 s%d, s%d, %d' % (sT, sT3, 32 * 2560))
    b('s_add_u32 s%d, s%d, s%d' % (sT1, sT1, sT))
    b('s_lshl_b32 s%d, s%d, 6' % (sT, sME))
    b('s_add_u32 s%d, s%d, s%d' % (sOO, sT1, sT))
    if 1 in ps:
        b('s_add_u32 s%d, s%d, 512' % (sOO + 1, sOO))
        b('s_lshl_b32 s%d, s%d, 6' % (sT, sT2))
        b('s_add_u32 s%d, s%d, s%d' % (sOO + 2, sT1, sT))
        b('s_lshl_b32 s%d, s%d, 5' % (sT, sN))
        b('s_add_u32 s%d, s%d, s%d' % (sOO + 2, sOO + 2, sT))
        b('s_add_u32 s%d, s%d, 1024' % (sOO + 2, sOO + 2))
    b('s_mov_b32 s%d, 0x40000' % sCNT)
def red_sel(b, RA, rOUT, t):
    b('v_lshrrev_b32 v%d, 4, v%d' % (t, tOB))
    b('v_and_b32 v%d, 31, v%d' % (t + 1, t))
    b('v_lshrrev_b32 v%d, 5, v%d' % (t + 2, t))
    b('v_mul_u32_u24 v%d, 2560, v%d' % (rOUT, t + 1))
    b('v_lshl_add_u32 v%d, v%d, 4, v%d' % (rOUT, t + 2, rOUT))
    b('v_bfe_u32 v%d, v%d, 2, 1' % (t + 3, t + 1))
    b('v_xor_b32 v%d, v%d, v%d' % (t + 3, t + 3, t + 2))
    b('v_lshrrev_b32 v%d, 4, v%d' % (t + 4, t + 1))
    b('v_or_b32 v%d, v%d, v%d' % (t + 3, t + 3, t + 4))
    b('v_lshlrev_b32 v%d, 3, v%d' % (t + 3, t + 3))
    b('v_bfe_u32 v%d, v%d, 3, 1' % (t + 4, t + 1))
    b('v_bfe_u32 v%d, v%d, 1, 1' % (t, t + 1))
    b('v_lshl_or_b32 v%d, v%d, 1, v%d' % (t + 4, t + 4, t))
    b('v_or_b32 v%d, v%d, v%d' % (t + 3, t + 3, t + 4))
    b('v_and_b32 v%d, 1, v%d' % (t + 4, t + 1))
    b('v_lshlrev_b32 v%d, 4, v%d' % (t + 4, t + 4))
    b('v_mov_b32 v%d, 0x3f80' % t)
    b('v_lshlrev_b32 v%d, v%d, v%d' % (t + 4, t + 4, t))
    for i in range(4):
        b('v_cmp_eq_u32 vcc, %d, v%d' % (i, t + 3))
        b('v_cndmask_b32 v%d, 0, v%d, vcc' % (RA + i, t + 4))
def poll(p, prev, rF, rFO, raw):
    rp = P.block('L_red_p%d' % p, prev + ['L_red_p%d' % p])
    rp('buffer_load_dword v%d, v%d, %s, s%d offen sc1' % (rF, rFO, srd(sWS), sFB))
    rp('s_sub_u32 s%d, s%d, 1' % (sCNT, sCNT))
    rp('s_waitcnt vmcnt(0)')
    rp('v_cmp_eq_u32 vcc, 1, v%d' % rF)
    rp('s_cmp_gt_i32 s%d, 0' % sCNT)
    rp('s_cselect_b32 s%d, 0, -1' % sT2)
    rp('s_or_b32 s%d, vcc_lo, s%d' % (sT, sT2))
    rp('s_bfe_u32 s%d, s%d, 0x%x' % (sT, sT, (8 << 16) | (8 * p)))
    rp('s_cmp_lg_u32 s%d, 0xff' % sT)
    rp('s_cbranch_scc1 L_red_p%d' % p)
    ri = P.block('L_red_i%d' % p, ['L_red_p%d' % p])
    pmark(ri)
    for src in range(8):
        ri('s_add_u32 s%d, s%d, %d' % (sT, sSB + p, src * 122880))
        for h in range(NP[p]):
            ri('buffer_load_dwordx4 %s, v%d, %s, s%d offen offset:%d sc1' % (vr(raw + 4 * (NP[p] * src + h), 4), tOB, srd(sWS), sT, h * 1024))
    return ri
def finish_stage(b, p, raw, racc, RA, rOUT):
    for src in range(8):
        for h in range(NP[p]):
            acc = vr(racc + 16 * h, 16)
            b('%s %s, %s, %s, %s' % (MF, acc, vr(RA, 4), vr(raw + 4 * (NP[p] * src + h), 4), acc if src else '0'))
    for h in range(NP[p]):
        acc = racc + 16 * h
        for i in range(4):
            b('v_cvt_pk_bf16_f32 v%d, v%d, v%d' % (acc + i, acc + 2 * i, acc + 2 * i + 1))
        b('buffer_store_dwordx4 %s, v%d, %s, s%d offen offset:%d' % (vr(acc, 4), rOUT, srd(sOUT), sOO + p, 32 * h))

M3, N31 = OPT['m3'], OPT['n31']
seqA = [(1, k) for k in range(24)] + [(3, k) for k in range(M3)] + [(1, k) for k in range(24, 32)] + [(3, k) for k in range(M3, 32)]
SA_ = Stream(seqA, FIFO_A)
ta = P.block('L_a24', ['L_qp_e'])
def abar0(b, n):
    pstamp(b, sPA)
    gend(b, lg=True, tail=[pshift] if (n & 7) == 7 else None)
def wo_pf(n):
    if OPT['stag']:
        u, j = divmod(n - OPT['sb'], 8)
        if j >= 4 or not 0 <= u < 4: return []
        return ['s_cmp_lg_u32 s%d, %d' % (sLJ, j), 's_cbranch_scc1 L_npf%d' % n,
                's_add_u32 s%d, s%d, %d' % (sT, sPK, u * 128 * 1280), 's_mov_b64 exec, 0xff',
                'buffer_load_dword v255, v%d, %s, s%d offen' % (aPF, srd(sWO), sT), 's_mov_b64 exec, -1', lambda b: b.raw('L_npf%d:' % n)]
    n -= OPT['wpf0']
    if not 0 <= n < 20: return []
    return ['s_add_u32 s%d, s%d, %d' % (sT, sPK, n * 32768), 's_mov_b64 exec, 15',
            'buffer_load_dword v255, v%d, %s, s%d offen' % (aPF, srd(sWO), sT), 's_mov_b64 exec, -1', lambda b: SA_.vm.add('pf')]
UP, DN = 'v_add_u32 v%d, %d, v%d' % (aQW, BUF - W0, aQW), 'v_subrev_u32 v%d, %d, v%d' % (aQW, BUF - W0, aQW)
emit(ta, [UP] + q_out(1))
if OPT['stag']:
    ta('v_and_b32 v0, 3, v%d' % aPF)
    ta('v_lshrrev_b32 v%d, 2, v%d' % (aPF, aPF))
    ta('v_mul_u32_u24 v%d, 1280, v%d' % (aPF, aPF))
    ta('v_lshl_add_u32 v%d, v0, 7, v%d' % (aPF, aPF))
    ta('s_lshl_b32 s%d, s%d, 2' % (sT, sB))
    ta('s_add_u32 s%d, s%d, s%d' % (sT, sT, sT3))
    ta('s_mul_i32 s%d, s%d, 2560' % (sT, sT))
    ta('s_mul_i32 s%d, s%d, %d' % (sPK, sH0, 128 * 1280))
    ta('s_add_u32 s%d, s%d, s%d' % (sPK, sPK, sT))
    ta('s_and_b32 s%d, s%d, 3' % (sLJ, sB))
abar0(ta, 0)
emit(ta, wo_pf(1))
emit(ta, [DN] + q_out(2) + q_out(3, AC3) + [UP])
if not OPT['stag']:
    ta('v_lshlrev_b32 v%d, 11, v%d' % (aPF, aPF))
    ta('s_mul_i32 s%d, s%d, %d' % (sPK, sH0, 128 * 1280))
    ta('s_lshl_b32 s%d, s%d, 7' % (sT, sB))
    ta('s_add_u32 s%d, s%d, s%d' % (sPK, sPK, sT))
    ta('s_lshl_b32 s%d, s%d, 13' % (sT, sT3))
    ta('s_add_u32 s%d, s%d, s%d' % (sPK, sPK, sT))
abar0(ta, 1)
ta('s_lshl_b32 s%d, s%d, 3' % (sT, sGRP))
ta('v_mov_b32 v0, s%d' % sT)
ta('s_cmp_lg_u32 s%d, 4' % sWAVE)
ta('s_cbranch_scc1 L_qp2')
ta('v_mov_b32 v1, 1')
ta('s_mov_b64 exec, 1')
ta('s_waitcnt vmcnt(0)')
ta('global_atomic_add v0, v1, s[%d:%d] sc1' % (sDBG, sDBG + 1))
ta('s_mov_b64 exec, -1')
ta.raw('L_qp2:')
tail_setup(ta, True)
tail_setup2(ta, True)
red_addr(ta, [0], 2)
for n in range(2, 8):
    emit(ta, wo_pf(n))
    if n >= 5:
        for _ in range(OPT['pre'] // 3): emit(ta, SA_.load())
    if n == 7:
        ta('global_load_dword v1, v0, s[%d:%d] sc1' % (sDBG, sDBG + 1))
    abar0(ta, n)
ta('s_waitcnt vmcnt(0)')
SA_.vm.q = []
tc = P.block('L_a_c', ['L_a24', 'L_a_c2'])
tc('v_readfirstlane_b32 s%d, v1' % sT)
tc('s_sub_u32 s%d, s%d, 1' % (sCNT, sCNT))
tc('s_cmp_ge_u32 s%d, 8' % sT)
tc('s_cbranch_scc1 L_a_m')
tc2 = P.block('L_a_c2', ['L_a_c'])
tc2('global_load_dword v1, v0, s[%d:%d] sc1' % (sDBG, sDBG + 1))
tc2('s_cmp_gt_i32 s%d, 0' % sCNT)
tc2('s_waitcnt vmcnt(0)')
tc2('s_cbranch_scc1 L_a_c')
ta = P.block('L_a_m', ['L_a_c', 'L_a_c2'])
wr, js = SA_.writes(0)
emit(ta, wr + sum((SA_.load() for _ in js), []) + wo_pf(8))
abar0(ta, 8)
OSV = AC3 + 24
LAST = OPT['last']
for n in range(9, 30):
    if n == 17:
        for j in range(6): ta('ds_read_b128 %s, v%d offset:%d' % (vr(OSV + 4 * j, 4), aQW, (j >> 1) * 1024 + (j & 1) * 3072))
    if n - 9 <= LAST: SA_.slow(ta, n - 9, wo_pf(n))
    else: emit(ta, wo_pf(n))
    if n == 17:
        ta.waitfor(rng(OSV, 24))
        for j in range(6): ta('ds_write_b128 v%d, %s offset:%d' % (aQW, vr(AC3 + 4 * j, 4), (j >> 1) * 1024 + (j & 1) * 3072))
    if OPT['grad'] and n >= OPT['grad'] and SA_.nl < len(FIFO_A) + SA_.first[min(n - 9, LAST) + 2]: emit(ta, SA_.load())
    if n == OPT['top']:
        while SA_.nl < len(FIFO_A) + SA_.first[min(n - 9, LAST) + 2]: emit(ta, SA_.load())
    abar0(ta, n)
I0 = LAST + 1
ta('v_subrev_u32 v%d, %d, v%d' % (aQW, BUF - OB[0], aQW))
emit(ta, SA_.reads(I0))
for j in range(6): ta('ds_write_b128 v%d, %s offset:%d' % (aQW, vr(OSV + 4 * j, 4), (j >> 1) * 1024 + (j & 1) * 3072))
wr, js = SA_.writes(I0 + 1)
emit(ta, wr + sum((SA_.load() for _ in js), []))
def abar(tail=None):
    def f(b):
        pstamp(b, sPA)
        gend(b, tail=tail)
    return f
def b30(b):
    b('s_waitcnt lgkmcnt(0)')
    abar()(b)
    b('s_setprio %d' % OPT['pc'])
def bend(b):
    if OPT['prof']:
        b('s_waitcnt lgkmcnt(0)')
        pwrite(b, [sPC]); pstamp(b, sPC)
    b('s_barrier')
D_ = 24 - (I0 + 3)
tops = {24 - D_: b30, 24 + N31 - D_: abar([pshift]), 24 + M3 - 1 - (D_ + 4 if D_ else 0): bend}
tops[24 + M3 - (D_ + 4 if D_ else 0)] = lambda b: b('s_setprio %d' % OPT['pa'])
assert 0 < N31 < M3 - 1
def direct_dma(k):
    def f(b):
        b('s_lshl_b32 s%d, s%d, 13' % (sT2, sT3))
        b('s_add_u32 m0, s%d, %d' % (sT2, (k - 24) * 1024))
        b('s_add_u32 s%d, s%d, %d' % (sT, sW3, wrow(3, k)))
        b('buffer_load_dwordx4 v%d, %s, s%d offen lds' % (tW1, srd(sWO), sT))
        SA_.vm.add('d')
    return f
for i in range(I0, 32 + M3):
    SA_.kstep(ta, i, tops.get(i), [direct_dma(i)] if 24 <= i < 32 else ())
assert SA_.nl == len(SA_.items)
pmark(ta, True)
ta('s_setprio %d' % OPT['pc'])
publish(ta, 2, ACC)
pmark(ta)
flag(ta)
SA_.vm.q = []
pmark(ta)
ta('s_mul_i32 s%d, s%d, 6144' % (sT, sT3))
ta('s_sub_u32 s%d, s%d, s%d' % (sPUB, sPUB, sT))
ta('s_add_u32 s%d, s%d, %d' % (sPUB, sPUB, 16 * 6144))
ta('s_add_u32 s%d, s%d, 64' % (sFLG, sFLG))
ta('v_lshrrev_b32 v65, 2, v%d' % tOB)
ta('v_and_b32 v65, 0x7f, v65')
ta('s_waitcnt lgkmcnt(0)')
if OPT['bld'] >= 0: ta('s_barrier')
ta('s_cmp_eq_u32 s%d, 3' % sT3)
ta('s_cbranch_scc1 L_a_x')
ri = poll(0, ['L_a_m'], 64, 65, 0)
tx = P.block('L_a_x', ['L_a_m', 'L_red_i0'])
for i in range(32 + M3, len(seqA)): SA_.kstep(tx, i)
pmark(tx)
publish(tx, 1, AC3)
pmark(tx)
flag(tx)
pmark(tx)
tx('s_cmp_eq_u32 s%d, 3' % sT3)
tx('s_cbranch_scc1 %s' % ('L_a_y' if OPT['prof'] else 'L_end'))
tz = P.block('L_a_z', ['L_a_x'])
red_sel(tz, 196, 200, 202)
finish_stage(tz, 0, 0, 64, 196, 200)
ty = P.block('L_a_y', ['L_a_x', 'L_a_z'])
if OPT['prof']: ty('s_branch L_fin')
else: ty('s_endpgm')

SB_ = Stream([(2, k) for k in range(32)], FIFO_B)
tb = P.block('L_tb', ['L_att_fin', 'L_ld_w'])
tb('s_setprio %d' % OPT['pb'])
tail_setup(tb, False)
if OPT['early']:
    assert UO[2][0] == 2
    for _ in FB0: SB_.load()[-1](tb)
while SB_.nl < len(FIFO_B): emit(tb, SB_.load())
tail_setup2(tb, False)
SB_.prime(tb)
emit(tb, SB_.reads(0))
for i in range(32): SB_.kstep(tb, i, (lambda b: b('s_barrier')) if i == OPT['bld'] else None)
pmark(tb, True)
publish(tb, 2, ACC)
pmark(tb)
RA, rOUT, rF, rFO = 240, 244, 246, 247
red_addr(tb, [1, 2], rFO)
red_sel(tb, RA, rOUT, 230)
flag(tb)
pmark(tb)
tb('s_cmp_eq_u32 s%d, 3' % sWAVE)
tb('s_cbranch_scc1 %s' % ('L_fin' if OPT['prof'] else 'L_end'))
ri = poll(1, ['L_tb'], rF, rFO, 0)
ri = poll(2, ['L_red_i1'], rF, rFO, 64)
finish_stage(ri, 1, 0, 96, RA, rOUT)
ri('s_waitcnt vmcnt(2)')
pmark(ri)
finish_stage(ri, 2, 64, 128, RA, rOUT)
f = P.block('L_fin', ['L_red_i2', 'L_a_z', 'L_a_y', 'L_tb'])
if OPT['prof']:
    f('s_waitcnt vmcnt(0)')
    pmark(f)
    f('s_lshl_b32 s%d, s2, 3' % sT2)
    f('s_add_u32 s%d, s%d, s%d' % (sT2, sT2, sWAVE))
    f('s_mul_i32 s%d, s%d, 1280' % (sT2, sT2))
    f('s_add_u32 s%d, s%d, %d' % (sT2, sT2, 72 << 20))
    f('v_mbcnt_lo_u32_b32 v4, -1, 0')
    f('v_mbcnt_hi_u32_b32 v4, -1, v4')
    f('v_lshlrev_b32 v4, 2, v4')
    for i in range(5):
        f('buffer_store_dword v%d, v4, %s, s%d offen offset:%d' % (254 - i, srd(sWS), sT2, 256 * i))
if OPT['stamps']:
    f('s_waitcnt vmcnt(0)')
    f('s_cmp_lg_u32 s%d, 0' % sWAVE)
    f('s_cbranch_scc1 L_end')
    f('s_memrealtime s[%d:%d]' % (sT, sT + 1))
    f('s_waitcnt lgkmcnt(0)')
    f('v_mov_b32 v0, s%d' % sST0)
    f('v_mov_b32 v1, s%d' % (sST0 + 1))
    f('v_mov_b32 v2, s%d' % sT)
    f('v_mov_b32 v3, s%d' % (sT + 1))
    f('s_lshl_b32 s%d, s2, 4' % sT2)
    f('s_add_u32 s%d, s%d, %d' % (sT2, sT2, 64 << 20))
    f('v_mov_b32 v4, 0')
    f('s_mov_b64 exec, 1')
    f('buffer_store_dwordx4 v[0:3], v4, %s, s%d offen' % (srd(sWS), sT2))
en = P.block('L_end', ['L_fin'])
en('s_endpgm')

for (name, X, frm) in slow:
    s = P.block('L_slow_%s' % name, [frm])
    s('s_nop 15')
    s('v_mov_b32 v%d, v%d' % (TM + 1, TM))
    s('v_permlane32_swap_b32 v%d, v%d' % (TM, TM + 1))
    s('v_max3_f32 v%d, v%d, v%d, 0' % (TM, TM, TM + 1))
    s('v_exp_f32 v%d, -v%d' % (TM + 1, TM))
    for i in range(16):
        s('v_sub_f32 v%d, v%d, v%d' % (X + i, X + i, TM))
        s('v_sub_f32 v%d, v%d, v%d' % (NM + i, NM + i, TM))
    for i in range(64):
        s('v_mul_f32 v%d, v%d, v%d' % (OA + i, TM + 1, OA + i))
    s('v_mul_f32 v%d, v%d, v%d' % (LS, TM + 1, LS))
    s('v_mul_f32 v%d, v%d, v%d' % (LS + 1, TM + 1, LS + 1))
    s('s_nop 1')
    s('s_branch L_back_%s' % name)

body = P.finish()
hdr = open('concat_heads__gqa_block_cached__gqa_block_cached__near_ridge.s.ref').read().split('; Override launch')[0]
out = hdr + """; Override launch geometry by editing the next line (default: block=256,
; grid=ceil(out_elems/256), lds=0). Harness parses it; keep it on one line.
; @launch grid=(256,1,1) block=(512,1,1) lds=%d
.amdgcn_target "amdgcn-amd-amdhsa--gfx950"
.text
.globl %s
.p2align 8
.type %s,@function
%s:
%s
.section .rodata,"a"
.p2align 6
.amdhsa_kernel %s
  .amdhsa_next_free_vgpr 256
  .amdhsa_next_free_sgpr 102
  .amdhsa_accum_offset 256
  .amdhsa_group_segment_fixed_size 0
  .amdhsa_kernarg_size 104
  .amdhsa_user_sgpr_count 2
  .amdhsa_user_sgpr_kernarg_segment_ptr 1
  .amdhsa_system_sgpr_workgroup_id_x 1
.end_amdhsa_kernel
""" % (LDS_BYTES, KN, KN, KN, body, KN)
open(sys.argv[1], 'w').write(out)
```
